```python
import torch

def _softmax(x, axis=-1):
    return torch.softmax(x, dim=axis)
def _gelu(x):
    return torch.nn.functional.gelu(x, approximate="tanh")
def _silu(x):
    return torch.nn.functional.silu(x)
def _sigmoid(x):
    return torch.sigmoid(x)
def _layernorm(x, axis=-1, eps=1e-5):
    m = x.mean(dim=axis, keepdim=True)
    v = x.var(dim=axis, keepdim=True, unbiased=False)
    return (x - m) / torch.sqrt(v + eps)
def _scatter_add(tgt, idx, src, axis=0):
    return tgt.clone().index_add_(axis, idx, src)
def _segment_sum(src, seg, n):
    out = torch.zeros((n,) + src.shape[1:], dtype=src.dtype)
    return out.index_add_(0, seg, src)
def _pad(x, pw):
    flat = tuple(v for pair in reversed(pw) for v in pair)
    return torch.nn.functional.pad(x, flat)

kernel_name = 'sequential_preLN__linear_attn_block__mixer_channel_mlp__prompt'

def setup_inputs():

    _w = (lambda a: (lambda t: t.to(torch.bfloat16) if t.is_floating_point() else t)(torch.as_tensor(a)))
    def _A_setup():
        B, S, D = 1, 2048, 512
        return {
            "x": _w((lambda *s: torch.randn(*s, dtype=torch.bfloat16) * 0.05)(B, S, D)),
            "wqkv": _w((lambda *s: torch.randn(*s, dtype=torch.bfloat16) * 0.1)(D, 3 * D)),
            "wo": _w((lambda *s: torch.randn(*s, dtype=torch.bfloat16) * 0.05)(D, D)),
        }
    _A_in = _A_setup()

    def _B_setup():
        B, S, D, F = 1, 2048, 512, 1792
        return {
            "x": _w((lambda *s: torch.randn(*s, dtype=torch.bfloat16) * 0.05)(B, S, D)),
            "w1": _w((lambda *s: torch.randn(*s, dtype=torch.bfloat16) * 3.2)(D, F) * (D ** -0.5)),
            "b1": _w((lambda *s: torch.randn(*s, dtype=torch.bfloat16) * 0.8)(F)),
            "w2": _w((lambda *s: torch.randn(*s, dtype=torch.bfloat16) * 0.05)(F, D) * (F ** -0.5)),
            "b2": _w((lambda *s: torch.randn(*s, dtype=torch.bfloat16) * 0.05)(D)),
        }
    _B_in = _B_setup()

    return {
        "A_x": _A_in["x"],
        "A_wqkv": _A_in["wqkv"],
        "A_wo": _A_in["wo"],
        "B_x": _B_in["x"],
        "B_w1": _B_in["w1"],
        "B_b1": _B_in["b1"],
        "B_w2": _B_in["w2"],
        "B_b2": _B_in["b2"],
    }

def reference(A_x, A_wqkv, A_wo, B_x, B_w1, B_b1, B_w2, B_b2):
    def _A_ref(x, wqkv, wo):
        B, S, D = x.shape
        H = 32; Dh = D // H
        qkv = (lambda x, *d: x.permute(*d))((x @ wqkv).reshape(B, S, 3, H, Dh), 2, 0, 3, 1, 4)
        q, k, v = qkv[0], qkv[1], qkv[2]
        phi = lambda t: torch.where(t > 0, t + 1, torch.exp(t)) + 1e-6
        pq, pk = phi(q), phi(k)
        kv = torch.einsum("bhsd,bhse->bhde", pk, v)
        z = torch.einsum("bhsd->bhd", pk)
        num = torch.einsum("bhqd,bhde->bhqe", pq, kv)
        den = torch.einsum("bhqd,bhd->bhq", pq, z)[..., None] + 1e-6
        o = num / den
        return (lambda x, *d: x.permute(*d))(o, 0, 2, 1, 3).reshape(B, S, D) @ wo

    def _B_ref(x, w1, b1, w2, b2):
        y = _layernorm(x, axis=-1)
        h = _gelu(torch.einsum("bsd,df->bsf", y, w1) + b1)
        return torch.einsum("bsf,fd->bsd", h, w2) + b2

    x = A_x
    h = x + _A_ref(_layernorm(x, axis=-1), A_wqkv, A_wo)
    h2 = h + _B_ref(_layernorm(h, axis=-1), B_w1, B_b1, B_w2, B_b2)
    return h2
```

```python
import re

TRANS = ("v_exp_f32", "v_log_f32", "v_rcp_f32", "v_rsq_f32", "v_sqrt_f32", "v_sin_f32", "v_cos_f32")

def regs_of(op):
    op = op.strip()
    m = re.fullmatch(r"-?\|?([vsa])(\d+)\|?", op)
    if m:
        return [(m.group(1), int(m.group(2)))]
    m = re.fullmatch(r"-?([vsa])\[(\d+):(\d+)\]", op)
    if m:
        return [(m.group(1), i) for i in range(int(m.group(2)), int(m.group(3)) + 1)]
    if op == "vcc":
        return [("vcc", 0)]
    if op == "m0":
        return [("m0", 0)]
    if op == "exec":
        return [("exec", 0)]
    return []

class Inst:
    __slots__ = ("text", "kind", "wr", "rd", "mn", "srcc", "ab", "nops", "passes")
    def __init__(self, text, kind, wr, rd, mn, srcc=(), ab=(), nops=0, passes=0):
        self.text, self.kind, self.wr, self.rd, self.mn = text, kind, set(wr), set(rd), mn
        self.srcc, self.ab, self.nops, self.passes = tuple(srcc), set(ab), nops, passes

class Kern:
    def __init__(self, name):
        self.name = name
        self.ins = []
        self.vnext = 0
        self.snext = 0
        self.vmq = []
        self.lgq = []
        self.maxv = 0
        self.maxs = 0
    def valloc(self, n=1, align=None):
        a = align or (1 if n == 1 else (2 if n == 2 else 4))
        self.vnext = (self.vnext + a - 1) // a * a
        b = self.vnext
        self.vnext += n
        self.maxv = max(self.maxv, self.vnext)
        return b
    def salloc(self, n=1, align=None):
        a = align or (1 if n == 1 else (2 if n == 2 else 4))
        self.snext = (self.snext + a - 1) // a * a
        b = self.snext
        self.snext += n
        self.maxs = max(self.maxs, self.snext)
        return b
    def raw(self, text):
        self.ins.append(Inst(text, "RAW", [], [], ""))
    def label(self, name):
        self.ins.append(Inst(name + ":", "LABEL", [], [], ""))
    def comment(self, t):
        self.ins.append(Inst("; " + t, "COMMENT", [], [], ""))
    def nop(self, n):
        while n > 0:
            k = min(n, 16)
            self.ins.append(Inst("s_nop %d" % (k - 1), "NOP", [], [], "s_nop", nops=k))
            n -= k
    def __call__(self, mn, *ops, mods="", tag=None):
        ops = [str(o) for o in ops]
        text = mn + " " + ", ".join(ops) + ((" " + mods) if mods else "")
        R = [regs_of(o) for o in ops]
        for r in R:
            for (c, i) in r:
                if c == "v": self.maxv = max(self.maxv, i + 1)
                if c == "s": self.maxs = max(self.maxs, i + 1)
        wr, rd, kind, srcc, ab, passes = [], [], None, (), (), 0
        flat = lambda L: [x for l in L for x in l]
        if mn.startswith("v_mfma"):
            kind = "MFMA"; wr = R[0]; rd = flat(R[1:]); srcc = tuple(R[3]); ab = R[1] + R[2]
            passes = 8 if "32x32" in mn else 4
        elif mn.startswith("v_permlane") and "swap" in mn:
            kind = "PERM"; wr = R[0] + R[1]; rd = R[0] + R[1]
        elif mn.startswith("v_cmp"):
            kind = "VALU"; wr = R[0]; rd = flat(R[1:])
        elif mn.startswith("v_readfirstlane") or mn.startswith("v_readlane"):
            kind = "RDLANE"; wr = R[0]; rd = flat(R[1:])
        elif mn.startswith("v_"):
            kind = "TRANS" if mn in TRANS else ("DOT" if mn.startswith("v_dot") else "VALU")
            wr = R[0]; rd = flat(R[1:])
            if mn.startswith("v_fmac") or mn.startswith("v_dot2c") or mn.startswith("v_pk_fmac"):
                rd = rd + R[0]
            if mn.startswith("v_cndmask") and len(ops) == 3:
                rd = rd + [("vcc", 0)]
            if "_co_" in mn:
                wr = R[0] + R[1]; rd = flat(R[2:])
            if "dpp" in mn or "dpp" in mods or "row_" in mods:
                kind = "DPP"
        elif mn.startswith("buffer_load") or mn.startswith("global_load"):
            kind = "VMEM"
            if "lds" in mods.split() or "_lds_" in mn:
                rd = flat(R) + [("m0", 0)]; kind = "DMA"
            else:
                wr = R[0]; rd = flat(R[1:])
            self.vmq.append(tag)
        elif mn.startswith("buffer_store") or mn.startswith("global_store"):
            kind = "VMEMST"; rd = flat(R)
            self.vmq.append(tag)
        elif mn.startswith("buffer_atomic") or mn.startswith("global_atomic"):
            kind = "VMEMST"; rd = flat(R)
            if "sc0" in mods.split(): wr = R[0]
            self.vmq.append(tag)
        elif mn.startswith("buffer_wbl2") or mn.startswith("buffer_inv"):
            kind = "VMEMST"; self.vmq.append(tag)
        elif mn.startswith("ds_read") or mn.startswith("ds_bpermute") or mn.startswith("ds_swizzle"):
            kind = "DS"; wr = R[0]; rd = flat(R[1:]); self.lgq.append(tag)
        elif mn.startswith("ds_write") or mn.startswith("ds_add"):
            kind = "DS"; rd = flat(R); self.lgq.append(tag)
        elif mn.startswith("s_load"):
            kind = "SMEM"; wr = R[0]; rd = flat(R[1:])
        elif mn.startswith("s_cmp") or mn.startswith("s_cbranch") or mn in ("s_branch", "s_barrier", "s_endpgm", "s_waitcnt", "s_setprio", "s_sleep"):
            kind = "SALU"; rd = flat(R)
        elif mn.startswith("s_"):
            kind = "SALU"; wr = R[0]; rd = flat(R[1:])
        else:
            raise ValueError("unknown mnemonic " + mn)
        self.ins.append(Inst(text, kind, wr, rd, mn, srcc, ab, passes=passes))
    def wait_vm(self, tag=None, all=False, lg=None):
        if all or tag is None:
            n = 0; self.vmq = []
        else:
            idx = [i for i, t in enumerate(self.vmq) if t == tag]
            if not idx:
                return
            last = idx[-1]
            n = len(self.vmq) - 1 - last
            self.vmq = self.vmq[last + 1:]
        assert n <= 63
        self.ins.append(Inst("s_waitcnt vmcnt(%d)" % n, "SALU", [], [], "s_waitcnt"))
    def wait_lg(self, tag=None):
        if tag is None:
            n = 0; self.lgq = []
        else:
            idx = [i for i, t in enumerate(self.lgq) if t == tag]
            if not idx:
                return
            last = idx[-1]
            n = len(self.lgq) - 1 - last
            self.lgq = self.lgq[last + 1:]
        if n > 15:
            return self.wait_lg_n(15)
        self.ins.append(Inst("s_waitcnt lgkmcnt(%d)" % n, "SALU", [], [], "s_waitcnt"))
    def wait_lg_n(self, n):
        self.lgq = self.lgq[max(0, len(self.lgq) - n):]
        self.ins.append(Inst("s_waitcnt lgkmcnt(%d)" % n, "SALU", [], [], "s_waitcnt"))
    def wait_smem(self):
        self.lgq = []
        self.ins.append(Inst("s_waitcnt lgkmcnt(0)", "SALU", [], [], "s_waitcnt"))
    def need(self, p, c):
        n = 0
        pv = {r for r in p.wr if r[0] in "va"}
        ps = {r for r in p.wr if r[0] in ("s", "vcc")}
        crd, cwr = c.rd, c.wr
        isvalu = lambda k: k in ("VALU", "TRANS", "DOT", "PERM", "RDLANE", "DPP")
        if p.kind == "MFMA":
            big = {4: 8, 8: 12}[p.passes]
            if c.kind == "MFMA":
                if pv & c.ab: n = max(n, big)
                if pv & set(c.srcc):
                    if tuple(sorted(p.wr)) == tuple(sorted(c.srcc)) and p.passes == c.passes: pass
                    else: n = max(n, big - 2)
            elif isvalu(c.kind):
                if pv & (crd | cwr): n = max(n, big)
                if set(p.srcc) & cwr: n = max(n, {4: 3, 8: 7}[p.passes])
            elif c.kind in ("VMEM", "VMEMST", "DS", "DMA"):
                if pv & (crd | cwr): n = max(n, big)
        if isvalu(p.kind):
            if c.kind == "MFMA":
                if pv & crd: n = max(n, 3 if p.kind == "DOT" else 2)
                if ("exec", 0) in p.wr: n = max(n, 4)
            if p.kind == "DOT" and isvalu(c.kind):
                if pv & (crd | cwr):
                    if c.mn == p.mn and not (pv & (crd - c.wr)) : pass
                    else: n = max(n, 3)
            if p.kind == "DOT" and c.kind in ("VMEM", "VMEMST", "DS", "DMA") and pv & crd:
                n = max(n, 3)
            if p.kind == "TRANS" and isvalu(c.kind) and c.kind != "TRANS" and pv & crd:
                n = max(n, 1)
            if c.kind == "RDLANE" and pv & crd: n = max(n, 1)
            if c.kind in ("PERM", "DPP") and pv & crd: n = max(n, 2)
            if ps:
                if isvalu(c.kind) and ps & crd: n = max(n, 4 if c.kind == "RDLANE" else 2)
                if c.kind in ("VMEM", "VMEMST", "DMA") and ps & crd: n = max(n, 5)
                if c.kind == "SALU" and ps & crd: n = max(n, 1)
        if p.kind == "SALU" and ("m0", 0) in p.wr and c.kind == "DMA":
            n = max(n, 1)
        if p.kind == "VMEMST" and ("x4" in p.mn or "x3" in p.mn):
            data = p.rd
            if isvalu(c.kind) and data & cwr: n = max(n, 2)
            elif c.kind in ("VMEM", "DS") and data & cwr: n = max(n, 1)
        return n
    def finalize(self):
        out = []
        for c in self.ins:
            if c.kind in ("RAW", "COMMENT", "LABEL", "NOP"):
                out.append(c); continue
            dist = 0; extra = 0
            for p in reversed(out):
                if p.kind in ("COMMENT",): continue
                if p.kind in ("LABEL", "RAW"): continue
                if p.kind == "NOP":
                    dist += p.nops
                else:
                    nd = self.need(p, c)
                    if nd > dist: extra = max(extra, nd - dist)
                    dist += 1
                if dist > 24: break
            k = extra
            while k > 0:
                q = min(k, 16)
                out.append(Inst("s_nop %d" % (q - 1), "NOP", [], [], "s_nop", nops=q))
                k -= q
            out.append(c)
        return out
    def text(self):
        L = []
        for i in self.finalize():
            if i.kind == "LABEL": L.append(i.text)
            else: L.append("    " + i.text)
        return "\n".join(L)

def v(b, n=1):
    return "v%d" % b if n == 1 else "v[%d:%d]" % (b, b + n - 1)
def s(b, n=1):
    return "s%d" % b if n == 1 else "s[%d:%d]" % (b, b + n - 1)
```

```python
import sys
sys.path.insert(0, "dev")
from asmlib import *

NAME = "sequential_preLN__linear_attn_block__mixer_channel_mlp__prompt"
MB = 1 << 20
WS_PQ, WS_PART, WS_OF, WS_HF, WS_GF = 0, 2 * MB, 3 * MB, 5 * MB, 7 * MB
SZ_PQ, SZ_PART, SZ_OF, SZ_HF, SZ_GF = 2 * MB, 1 * MB, 2 * MB, 2 * MB, 128 * 56 * 1024
LOG2E = "0x3fb8aa3b"
HI = "0xffff0000"

def srd(k, base, off, size):
    d = k.salloc(4)
    if off:
        k("s_add_u32", s(d), s(base), hex(off))
        k("s_addc_u32", s(d + 1), s(base + 1), 0)
    else:
        k("s_mov_b32", s(d), s(base))
        k("s_mov_b32", s(d + 1), s(base + 1))
    k("s_and_b32", s(d + 1), s(d + 1), "0xffff")
    k("s_mov_b32", s(d + 2), hex(size))
    k("s_mov_b32", s(d + 3), "0x20000")
    return d

def prologue(k, ptr_slots):
    k.snext = 4
    k.vnext = 1
    k("s_cmp_ge_u32", "s2", 256)
    k("s_cbranch_scc1", k.name + "_done")
    P = {}
    for sl in ptr_slots:
        r = k.salloc(2)
        k("s_load_dwordx2", s(r, 2), "s[0:1]", sl * 8)
        P[sl] = r
    return P

def lane_ids(k):
    t = k.valloc()
    k("v_lshrrev_b32", v(t), 6, "v0")
    sW = k.salloc()
    k("v_readfirstlane_b32", s(sW), v(t))
    vL = k.valloc(); vM = k.valloc(); vG = k.valloc()
    k("v_and_b32", v(vL), 63, "v0")
    k("v_and_b32", v(vM), 15, "v0")
    k("v_bfe_u32", v(vG), "v0", 4, 2)
    return sW, vL, vM, vG

def decode_16x16(k):
    sx = k.salloc(); sl = k.salloc(); smb = k.salloc(); snb = k.salloc(); t = k.salloc()
    k("s_and_b32", s(sx), "s2", 7)
    k("s_lshr_b32", s(sl), "s2", 3)
    k("s_lshr_b32", s(smb), s(sx), 1)
    k("s_lshl_b32", s(smb), s(smb), 2)
    k("s_and_b32", s(t), s(sl), 3)
    k("s_add_u32", s(smb), s(smb), s(t))
    k("s_and_b32", s(snb), s(sx), 1)
    k("s_lshl_b32", s(snb), s(snb), 3)
    k("s_lshr_b32", s(t), s(sl), 2)
    k("s_add_u32", s(snb), s(snb), s(t))
    return smb, snb

def decode_32x8(k):
    sx = k.salloc(); sl = k.salloc(); smb = k.salloc(); snb = k.salloc(); t = k.salloc()
    k("s_and_b32", s(sx), "s2", 7)
    k("s_lshr_b32", s(sl), "s2", 3)
    k("s_lshl_b32", s(smb), s(sx), 2)
    k("s_and_b32", s(t), s(sl), 3)
    k("s_add_u32", s(smb), s(smb), s(t))
    k("s_lshr_b32", s(snb), s(sl), 2)
    return smb, snb

def unpack(k, lo, hi, src):
    k("v_lshlrev_b32", v(lo), 16, v(src))
    k("v_and_b32", v(hi), HI, v(src))

def layernorm(k, xa, nd, ones, T):
    S = T
    mean, mb, dl, sq0, sq1, nm0, nm1, t0 = T + 4, T + 5, T + 6, T + 8, T + 9, T + 10, T + 11, T + 12
    P = [T + 12 + 2 * i for i in range(6)]
    for j in range(nd // 4):
        k("v_mfma_f32_16x16x32_bf16", v(S, 4), v(ones, 4), v(xa + 4 * j, 4), (v(S, 4) if j else 0))
    k("v_mul_f32", v(mean), "0x3b000000", v(S))
    k("v_cvt_pk_bf16_f32", v(mb), v(mean), v(mean))
    k("v_lshlrev_b32", v(mb), 16, v(mb))
    k("v_sub_f32", v(dl), v(mean), v(mb))
    k("v_sub_f32", v(nm0), 0, v(mb))
    k("v_sub_f32", v(nm1), 0, v(mb))
    k("v_mov_b32", v(sq0), 0)
    k("v_mov_b32", v(sq1), 0)
    for d0 in range(0, nd, 6):
        ds = list(range(d0, min(nd, d0 + 6)))
        for i, d in enumerate(ds): unpack(k, P[i], P[i] + 1, xa + d)
        for i, d in enumerate(ds): k("v_pk_add_f32", v(P[i], 2), v(P[i], 2), v(nm0, 2))
        for i, d in enumerate(ds): k("v_pk_fma_f32", v(sq0, 2), v(P[i], 2), v(P[i], 2), v(sq0, 2))
        for i, d in enumerate(ds): k("v_cvt_pk_bf16_f32", v(xa + d), v(P[i]), v(P[i] + 1))
    k("v_add_f32", v(sq0), v(sq0), v(sq1))
    k("v_mov_b32", v(sq1), v(sq0))
    k("v_permlane16_swap_b32", v(sq0), v(sq1))
    k("v_add_f32", v(sq0), v(sq0), v(sq1))
    k("v_mov_b32", v(sq1), v(sq0))
    k("v_permlane32_swap_b32", v(sq0), v(sq1))
    k("v_add_f32", v(sq0), v(sq0), v(sq1))
    k("v_mul_f32", v(dl), v(dl), v(dl))
    k("v_mul_f32", v(sq0), "0x3b000000", v(sq0))
    k("v_sub_f32", v(sq0), v(sq0), v(dl))
    k("v_max_f32", v(sq0), 0, v(sq0))
    k("v_cvt_pk_bf16_f32", v(sq0), v(sq0), v(sq0))
    k("v_lshlrev_b32", v(sq0), 16, v(sq0))
    k("v_add_f32", v(sq0), "0x3727c5ac", v(sq0))
    k("v_cvt_pk_bf16_f32", v(sq0), v(sq0), v(sq0))
    k("v_lshlrev_b32", v(sq0), 16, v(sq0))
    k("v_sqrt_f32", v(sq0), v(sq0))
    k("v_cvt_pk_bf16_f32", v(sq0), v(sq0), v(sq0))
    k("v_lshlrev_b32", v(sq0), 16, v(sq0))
    k("v_rcp_f32", v(nm0), v(sq0))
    k("v_rcp_f32", v(nm1), v(sq0))
    for d0 in range(0, nd, 6):
        ds = list(range(d0, min(nd, d0 + 6)))
        for i, d in enumerate(ds): unpack(k, P[i], P[i] + 1, xa + d)
        for i, d in enumerate(ds): k("v_pk_mul_f32", v(P[i], 2), v(P[i], 2), v(nm0, 2))
        for i, d in enumerate(ds): k("v_cvt_pk_bf16_f32", v(xa + d), v(P[i]), v(P[i] + 1))

def phi_pack(k, src, dst, T, sC):
    a = [T + i for i in range(4)]; e = [T + 4 + i for i in range(4)]; t0, t1 = T + 8, T + 9
    k("v_cvt_pk_bf16_f32", v(t0), v(src), v(src + 1))
    k("v_cvt_pk_bf16_f32", v(t1), v(src + 2), v(src + 3))
    unpack(k, a[0], a[1], t0); unpack(k, a[2], a[3], t1)
    for i in range(4): k("v_mul_f32", v(e[i]), LOG2E, v(a[i]))
    for i in range(4): k("v_exp_f32", v(e[i]), v(e[i]))
    for i in range(4): k("v_cmp_lt_f32", s(sC + 2 * i, 2), 0, v(a[i]))
    for i in range(4): k("v_add_f32", v(a[i]), 1.0, v(a[i]))
    for i in range(4): k("v_cndmask_b32", v(a[i]), v(e[i]), v(a[i]), s(sC + 2 * i, 2))
    k("v_cvt_pk_bf16_f32", v(t0), v(a[0]), v(a[1]))
    k("v_cvt_pk_bf16_f32", v(t1), v(a[2]), v(a[3]))
    unpack(k, a[0], a[1], t0); unpack(k, a[2], a[3], t1)
    for i in range(4): k("v_add_f32", v(a[i]), "0x358637bd", v(a[i]))
    k("v_cvt_pk_bf16_f32", v(dst), v(a[0]), v(a[1]))
    k("v_cvt_pk_bf16_f32", v(dst + 1), v(a[2]), v(a[3]))

def gen_k1():
    k = Kern("k1_qkv_kernel")
    P = prologue(k, [0, 1, 10])
    smb, shg = decode_16x16(k)
    sW, vL, vM, vG = lane_ids(k)
    xa = k.valloc(64); acc = k.valloc(24); bf = k.valloc(48); ones = k.valloc(4)
    T = k.valloc(24)
    vA = k.valloc(); vB = k.valloc(); vT = [k.valloc() for _ in range(4)]
    t0 = k.valloc(); t1 = k.valloc(); t2 = k.valloc()
    sT0 = k.salloc(); sx = k.salloc()
    k("s_lshl_b32", s(sT0), s(smb), 3)
    k("s_add_u32", s(sT0), s(sT0), s(sW))
    k("s_lshl_b32", s(sx), s(sT0), 14)
    k("v_lshlrev_b32", v(vA), 10, v(vM))
    k("v_lshl_add_u32", v(vA), v(vG), 4, v(vA))
    k("v_add_u32", v(vA), s(sx), v(vA))
    k("v_lshrrev_b32", v(t0), 2, v(vL))
    k("v_and_b32", v(t1), 3, v(vL))
    k("v_lshrrev_b32", v(t2), 3, v(t0))
    k("v_lshlrev_b32", v(t2), 1, v(t2))
    k("v_xor_b32", v(t1), v(t1), v(t2))
    k("v_mul_u32_u24", v(vB), "0xc00", v(t0))
    k("v_lshl_add_u32", v(vB), v(t1), 4, v(vB))
    sh64 = k.salloc()
    k("s_lshl_b32", s(sh64), s(shg), 6)
    k("v_add_u32", v(vB), s(sh64), v(vB))
    k("v_bfe_u32", v(t0), v(vL), 2, 2)
    k("v_lshl_add_u32", v(t0), v(vG), 3, v(t0))
    k("v_lshlrev_b32", v(t0), 6, v(t0))
    k("v_and_b32", v(t1), 1, v(vL))
    k("v_lshl_add_u32", v(t0), v(t1), 3, v(t0))
    k("v_bfe_u32", v(t1), v(vL), 1, 1)
    k("v_and_b32", v(t2), 1, v(vG))
    k("v_lshlrev_b32", v(t2), 1, v(t2))
    k("v_xor_b32", v(t1), v(t1), v(t2))
    k("v_lshl_add_u32", v(vT[0]), v(t1), 4, v(t0))
    k("v_xor_b32", v(t1), 2, v(t1))
    k("v_lshl_add_u32", v(vT[1]), v(t1), 4, v(t0))
    k("v_add_u32", v(vT[2]), "0x10000", v(vT[0]))
    k("v_add_u32", v(vT[3]), "0x10000", v(vT[1]))
    for i in range(4): k("v_mov_b32", v(ones + i), "0x3f803f80")
    k.wait_smem()
    sX = srd(k, P[0], 0, 2 * MB)
    sWq = srd(k, P[1], 0, 512 * 1536 * 2)
    sPQ = srd(k, P[10], WS_PQ, SZ_PQ)
    sPT = srd(k, P[10], WS_PART, SZ_PART)
    for j in range(16):
        k("buffer_load_dwordx4", v(xa + 4 * j, 4), v(vA), s(sX, 4), 0, mods="offen offset:%d" % (64 * j), tag="A")
    sWo = k.salloc(); sWm = k.salloc(); sO = k.salloc()
    k("s_mul_i32", s(sWo), s(sW), 49152)
    k("s_lshl_b32", s(sWm), s(sW), 10)
    for c in range(4):
        for seg in range(3):
            k("s_add_u32", s(sO), s(sWo), hex(c * 8 * 49152 + seg * 1024))
            k("s_add_u32", "m0", s(sWm), hex(seg * 32768 + c * 8192))
            k("buffer_load_dwordx4", v(vB), s(sWq, 4), s(sO), mods="offen lds", tag="B%d" % c)
    k.wait_vm("A")
    layernorm(k, xa, 64, ones, T)
    def rd(j, buf):
        for t6 in range(6):
            seg, t = t6 >> 1, t6 & 1
            for h in range(2):
                off = j * 2048 + h * 256 + (seg * 32768 if seg < 2 else 0)
                k("ds_read_b64_tr_b16", v(bf + buf * 24 + t6 * 4 + 2 * h, 2), v(vT[t + (2 if seg == 2 else 0)]), mods="offset:%d" % off, tag="f%d" % j)
    for c in range(4):
        k.wait_vm("B%d" % c)
        k("s_barrier")
        rd(4 * c, 0)
        for j in range(4 * c, 4 * c + 4):
            buf = j & 1
            if j + 1 < 4 * c + 4: rd(j + 1, buf ^ 1)
            k.wait_lg("f%d" % j)
            for t6 in range(6):
                W = v(bf + buf * 24 + t6 * 4, 4); X = v(xa + 4 * j, 4); C = v(acc + 4 * t6, 4)
                a, b = (W, X) if t6 < 2 else (X, W)
                k("v_mfma_f32_16x16x32_bf16", C, a, b, (C if j else 0))
    sC = k.salloc(8, 2)
    pq = bf
    pk = bf + 4
    vv = bf + 8
    kv = bf + 12
    for t in range(2):
        phi_pack(k, acc + 4 * t, pq + 2 * t, T, sC)
    k("s_lshl_b32", s(sx), s(sT0), 4)
    k("s_add_u32", s(sx), s(sx), s(shg))
    k("s_lshl_b32", s(sx), s(sx), 10)
    k("v_lshlrev_b32", v(t0), 4, v(vL))
    k("buffer_store_dwordx4", v(pq, 4), v(t0), s(sPQ, 4), s(sx), mods="offen")
    for t in range(2):
        phi_pack(k, acc + 8 + 4 * t, pk + 2 * t, T, sC)
        k("v_cvt_pk_bf16_f32", v(vv + 2 * t), v(acc + 16 + 4 * t), v(acc + 17 + 4 * t))
        k("v_cvt_pk_bf16_f32", v(vv + 2 * t + 1), v(acc + 18 + 4 * t), v(acc + 19 + 4 * t))
    for t in range(2):
        k("v_mfma_f32_16x16x16_bf16", v(kv + 4 * t, 4), v(pk + 2 * t, 2), v(vv + 2 * t, 2), 0)
        k("v_mfma_f32_16x16x16_bf16", v(kv + 8 + 4 * t, 4), v(pk + 2 * t, 2), v(ones, 2), 0)
    k("s_lshl_b32", s(sx), s(sW), 12)
    k("s_add_u32", s(sx), s(sx), 98304)
    k("v_add_u32", v(t1), s(sx), v(t0))
    for a in range(4):
        k("ds_write_b128", v(t1), v(kv + 4 * a, 4), mods="offset:%d" % (a * 1024))
    k.wait_lg()
    k("s_barrier")
    k("s_cmp_ge_u32", s(sW), 4)
    k("s_cbranch_scc1", k.name + "_done")
    k("v_lshlrev_b32", v(t1), 4, "v0")
    k("v_add_u32", v(t2), 98304, v(t1))
    R = xa
    for w in range(8):
        k("ds_read_b128", v(R + 4 * w, 4), v(t2), mods="offset:%d" % (w * 4096))
    k.wait_lg()
    for w in range(1, 8):
        k("v_pk_add_f32", v(R, 2), v(R, 2), v(R + 4 * w, 2))
        k("v_pk_add_f32", v(R + 2, 2), v(R + 2, 2), v(R + 4 * w + 2, 2))
    k("s_lshl_b32", s(sx), s(shg), 4)
    k("s_add_u32", s(sx), s(sx), s(smb))
    k("s_lshl_b32", s(sx), s(sx), 12)
    k("buffer_store_dwordx4", v(R, 4), v(t1), s(sPT, 4), s(sx), mods="offen")
    k.label(k.name + "_done")
    k("s_endpgm")
    return k, 512, 131072

def gen_k2a():
    k = Kern("k2a_attn_kernel")
    P = prologue(k, [10])
    smb, shg = decode_16x16(k)
    sW, vL, vM, vG = lane_ids(k)
    pr = k.valloc(64); t0 = k.valloc(); t1 = k.valloc(); fr = k.valloc(8); pq = k.valloc(8)
    nd = k.valloc(16); T = k.valloc(16); o = k.valloc(4)
    sx = k.salloc(); sy = k.salloc()
    k("v_lshlrev_b32", v(t0), 4, "v0")
    k("v_lshlrev_b32", v(t1), 4, v(vL))
    k.wait_smem()
    sPQ = srd(k, P[10], WS_PQ, SZ_PQ)
    sPT = srd(k, P[10], WS_PART, SZ_PART)
    sOF = srd(k, P[10], WS_OF, SZ_OF)
    k("s_lshl_b32", s(sx), s(shg), 16)
    for m in range(16):
        k("s_add_u32", s(sy), s(sx), m * 4096)
        k("buffer_load_dwordx4", v(pr + 4 * m, 4), v(t0), s(sPT, 4), s(sy), mods="offen", tag="P")
    smt = k.salloc(); so = [k.salloc(), k.salloc()]
    k("s_lshl_b32", s(smt), s(smb), 3)
    k("s_lshl_b32", s(sy), s(sW), 1)
    k("s_add_u32", s(smt), s(smt), s(sy))
    for i in range(2):
        k("s_add_u32", s(sy), s(smt), i)
        k("s_lshl_b32", s(sy), s(sy), 4)
        k("s_add_u32", s(sy), s(sy), s(shg))
        k("s_lshl_b32", s(so[i]), s(sy), 10)
        k("buffer_load_dwordx4", v(pq + 4 * i, 4), v(t1), s(sPQ, 4), s(so[i]), mods="offen", tag="Q%d" % i)
    k.wait_vm("P")
    for m in range(1, 16):
        k("v_pk_add_f32", v(pr, 2), v(pr, 2), v(pr + 4 * m, 2))
        k("v_pk_add_f32", v(pr + 2, 2), v(pr + 2, 2), v(pr + 4 * m + 2, 2))
    k("v_cvt_pk_bf16_f32", v(pr + 4), v(pr), v(pr + 1))
    k("v_cvt_pk_bf16_f32", v(pr + 5), v(pr + 2), v(pr + 3))
    k("v_lshlrev_b32", v(t0), 3, "v0")
    k("ds_write_b64", v(t0), v(pr + 4, 2))
    k.wait_lg()
    k("s_barrier")
    k("v_lshlrev_b32", v(t0), 3, v(vL))
    for a in range(4):
        k("ds_read_b64", v(fr + 2 * a, 2), v(t0), mods="offset:%d" % (a * 512))
    k.wait_lg()
    for i in range(2):
        k.wait_vm("Q%d" % i)
        for h in range(2):
            k("v_mfma_f32_16x16x16_bf16", v(nd + 4 * h, 4), v(fr + 2 * h, 2), v(pq + 4 * i + 2 * h, 2), 0)
            k("v_mfma_f32_16x16x16_bf16", v(nd + 8 + 4 * h, 4), v(fr + 4 + 2 * h, 2), v(pq + 4 * i + 2 * h, 2), 0)
        for h in range(2):
            d = T; a = [T + 1 + q for q in range(4)]; u0, u1 = T + 5, T + 6
            k("v_cvt_pk_bf16_f32", v(d), v(nd + 8 + 4 * h), v(nd + 8 + 4 * h))
            k("v_lshlrev_b32", v(d), 16, v(d))
            k("v_add_f32", v(d), "0x358637bd", v(d))
            k("v_cvt_pk_bf16_f32", v(d), v(d), v(d))
            k("v_lshlrev_b32", v(d), 16, v(d))
            k("v_rcp_f32", v(d), v(d))
            k("v_cvt_pk_bf16_f32", v(u0), v(nd + 4 * h), v(nd + 4 * h + 1))
            k("v_cvt_pk_bf16_f32", v(u1), v(nd + 4 * h + 2), v(nd + 4 * h + 3))
            unpack(k, a[0], a[1], u0); unpack(k, a[2], a[3], u1)
            for q in range(4): k("v_mul_f32", v(a[q]), v(a[q]), v(d))
            k("v_cvt_pk_bf16_f32", v(o + 2 * h), v(a[0]), v(a[1]))
            k("v_cvt_pk_bf16_f32", v(o + 2 * h + 1), v(a[2]), v(a[3]))
        k("buffer_store_dwordx4", v(o, 4), v(t1), s(sOF, 4), s(so[i]), mods="offen")
    k.label(k.name + "_done")
    k("s_endpgm")
    return k, 256, 2048

def b64_addr(k, vL, vG, snb, vB, vT, t0, t1, t2, row_bytes):
    k("v_lshrrev_b32", v(t0), 3, v(vL))
    k("v_and_b32", v(t1), 7, v(vL))
    k("v_bfe_u32", v(t2), v(t0), 1, 2)
    k("v_lshlrev_b32", v(t2), 1, v(t2))
    k("v_xor_b32", v(t1), v(t1), v(t2))
    k("v_mul_u32_u24", v(vB), hex(row_bytes), v(t0))
    k("v_lshl_add_u32", v(vB), v(t1), 4, v(vB))
    sn = k.salloc()
    k("s_lshl_b32", s(sn), s(snb), 7)
    k("v_add_u32", v(vB), s(sn), v(vB))
    k("v_bfe_u32", v(t0), v(vL), 2, 2)
    k("v_lshl_add_u32", v(t1), v(vG), 2, v(t0))
    k("v_bfe_u32", v(t2), v(t1), 1, 2)
    k("v_lshlrev_b32", v(t0), 7, v(t1))
    k("v_and_b32", v(t1), 3, v(vL))
    k("v_lshl_add_u32", v(t0), v(t1), 3, v(t0))
    for t in range(4):
        k("v_xor_b32", v(t1), t, v(t2))
        k("v_lshl_add_u32", v(vT[t]), v(t1), 5, v(t0))

def gen_k2b():
    k = Kern("k2b_wo_kernel")
    P = prologue(k, [0, 2, 10])
    smb, snb = decode_32x8(k)
    sW, vL, vM, vG = lane_ids(k)
    xa = k.valloc(64); acc = k.valloc(16); bf = k.valloc(32); xr = k.valloc(8); T = k.valloc(16)
    vA = k.valloc(); vB = k.valloc(); vT = [k.valloc() for _ in range(4)]; vX = k.valloc()
    t0 = k.valloc(); t1 = k.valloc(); t2 = k.valloc()
    smt = k.salloc(); sx = k.salloc(); sO = k.salloc()
    k("s_lshl_b32", s(smt), s(smb), 2)
    k("s_add_u32", s(smt), s(smt), s(sW))
    k("v_lshlrev_b32", v(vA), 4, v(vL))
    b64_addr(k, vL, vG, snb, vB, vT, t0, t1, t2, 1024)
    k("s_lshl_b32", s(sx), s(smt), 14)
    k("s_lshl_b32", s(sO), s(snb), 7)
    k("s_add_u32", s(sx), s(sx), s(sO))
    k("v_lshlrev_b32", v(vX), 10, v(vM))
    k("v_lshl_add_u32", v(vX), v(vG), 3, v(vX))
    k("v_add_u32", v(vX), s(sx), v(vX))
    k.wait_smem()
    sX = srd(k, P[0], 0, 2 * MB)
    sWo = srd(k, P[2], 0, 512 * 512 * 2)
    sOF = srd(k, P[10], WS_OF, SZ_OF)
    sHF = srd(k, P[10], WS_HF, SZ_HF)
    sAb = k.salloc(); sWr = k.salloc(); sWm = k.salloc()
    k("s_lshl_b32", s(sAb), s(smt), 14)
    k("s_lshl_b32", s(sWr), s(sW), 13)
    k("s_lshl_b32", s(sWm), s(sW), 10)
    for c in range(4):
        for j in range(4 * c, 4 * c + 4):
            k("s_add_u32", s(sO), s(sAb), (j * 1024))
            k("buffer_load_dwordx4", v(xa + 4 * j, 4), v(vA), s(sOF, 4), s(sO), mods="offen", tag="C%d" % c)
        for u in range(4):
            i0 = 16 * c + 4 * u
            k("s_add_u32", s(sO), s(sWr), hex(i0 * 8192))
            k("s_add_u32", "m0", s(sWm), hex(i0 * 1024))
            k("buffer_load_dwordx4", v(vB), s(sWo, 4), s(sO), mods="offen lds", tag="C%d" % c)
    for t in range(4):
        k("buffer_load_dwordx2", v(xr + 2 * t, 2), v(vX), s(sX, 4), 0, mods="offen offset:%d" % (32 * t), tag="X")
    def rd(j, buf):
        for t in range(4):
            for h in range(2):
                k("ds_read_b64_tr_b16", v(bf + buf * 16 + t * 4 + 2 * h, 2), v(vT[t]), mods="offset:%d" % (j * 4096 + h * 2048), tag="f%d" % j)
    for c in range(4):
        k.wait_vm("C%d" % c)
        k("s_barrier")
        rd(4 * c, 0)
        for j in range(4 * c, 4 * c + 4):
            buf = j & 1
            if j + 1 < 4 * c + 4: rd(j + 1, buf ^ 1)
            k.wait_lg("f%d" % j)
            for t in range(4):
                C = v(acc + 4 * t, 4)
                k("v_mfma_f32_16x16x32_bf16", C, v(bf + buf * 16 + t * 4, 4), v(xa + 4 * j, 4), (C if j else 0))
    k.wait_vm("X")
    hp = bf
    for t in range(4):
        a = [T + q for q in range(4)]; b = [T + 4 + q for q in range(4)]; u0, u1 = T + 8, T + 9
        k("v_cvt_pk_bf16_f32", v(u0), v(acc + 4 * t), v(acc + 4 * t + 1))
        k("v_cvt_pk_bf16_f32", v(u1), v(acc + 4 * t + 2), v(acc + 4 * t + 3))
        unpack(k, a[0], a[1], u0); unpack(k, a[2], a[3], u1)
        unpack(k, b[0], b[1], xr + 2 * t); unpack(k, b[2], b[3], xr + 2 * t + 1)
        for q in range(4): k("v_add_f32", v(a[q]), v(a[q]), v(b[q]))
        k("v_cvt_pk_bf16_f32", v(hp + 2 * t), v(a[0]), v(a[1]))
        k("v_cvt_pk_bf16_f32", v(hp + 2 * t + 1), v(a[2]), v(a[3]))
    k("s_lshl_b32", s(sO), s(snb), 11)
    k("s_add_u32", s(sO), s(sO), s(sAb))
    for u in range(2):
        k("buffer_store_dwordx4", v(hp + 4 * u, 4), v(vA), s(sHF, 4), s(sO), mods="offen offset:%d" % (1024 * u))
    k.label(k.name + "_done")
    k("s_endpgm")
    return k, 256, 65536

def gen_k3():
    k = Kern("k3_mlp1_kernel")
    P = prologue(k, [4, 5, 10])
    smb, snb = decode_16x16(k)
    sW, vL, vM, vG = lane_ids(k)
    xa = k.valloc(64); acc = k.valloc(28); bf = k.valloc(56); ones = k.valloc(4); T = k.valloc(24); br = k.valloc(14)
    vA = k.valloc(); vB = k.valloc(); vT = [k.valloc(), k.valloc()]; vBi = k.valloc(); vS = k.valloc()
    t0 = k.valloc(); t1 = k.valloc(); t2 = k.valloc()
    smt = k.salloc(); sx = k.salloc(); sO = k.salloc(); sy = k.salloc()
    k("s_lshl_b32", s(smt), s(smb), 3)
    k("s_add_u32", s(smt), s(smt), s(sW))
    k("v_lshlrev_b32", v(vA), 4, v(vL))
    k("s_lshl_b32", s(sx), s(sW), 6)
    k("v_add_u32", v(t0), s(sx), v(vL))
    k("v_mul_u32_u24", v(t1), 4682, v(t0))
    k("v_lshrrev_b32", v(t1), 16, v(t1))
    k("v_mul_u32_u24", v(t2), 14, v(t1))
    k("v_sub_u32", v(t2), v(t0), v(t2))
    k("v_mul_u32_u24", v(vB), 3584, v(t1))
    k("v_lshl_add_u32", v(vB), v(t2), 4, v(vB))
    k("s_mul_i32", s(sy), s(snb), 224)
    k("v_add_u32", v(vB), s(sy), v(vB))
    k("v_bfe_u32", v(t0), v(vL), 2, 2)
    k("v_lshl_add_u32", v(t0), v(vG), 2, v(t0))
    k("v_mul_u32_u24", v(t0), 224, v(t0))
    k("v_and_b32", v(t1), 3, v(vL))
    k("v_lshl_add_u32", v(vT[0]), v(t1), 3, v(t0))
    k("v_add_u32", v(vT[1]), 57344, v(vT[0]))
    k("v_lshlrev_b32", v(vBi), 3, v(vG))
    k("v_add_u32", v(vBi), s(sy), v(vBi))
    for i in range(4): k("v_mov_b32", v(ones + i), "0x3f803f80")
    k.wait_smem()
    sW1 = srd(k, P[4], 0, 512 * 1792 * 2)
    sB1 = srd(k, P[5], 0, 1792 * 2)
    sHF = srd(k, P[10], WS_HF, SZ_HF)
    sGF = srd(k, P[10], WS_GF, SZ_GF)
    sAb = k.salloc(); sWm = k.salloc()
    k("s_lshl_b32", s(sAb), s(smt), 14)
    k("s_lshl_b32", s(sWm), s(sW), 10)
    for j in range(16):
        k("s_add_u32", s(sO), s(sAb), (j * 1024))
        k("buffer_load_dwordx4", v(xa + 4 * j, 4), v(vA), s(sHF, 4), s(sO), mods="offen", tag="A")
    k("s_cmp_ge_u32", s(sW), 7)
    k("s_cbranch_scc1", k.name + "_nodma")
    for a in range(16):
        k("s_add_u32", "m0", s(sWm), hex(a * 7168))
        k("s_mov_b32", s(sO), hex(a * 32 * 3584))
        k("buffer_load_dwordx4", v(vB), s(sW1, 4), s(sO), mods="offen lds", tag="B%d" % (a // 4))
    k.label(k.name + "_nodma")
    for t in range(7):
        k("buffer_load_dwordx2", v(br + 2 * t, 2), v(vBi), s(sB1, 4), 0, mods="offen offset:%d" % (32 * t), tag="BI")
    k("s_cmp_ge_u32", s(sW), 7)
    k("s_cbranch_scc0", k.name + "_w06")
    k.raw("s_waitcnt vmcnt(7)")
    k.label(k.name + "_w06")
    k.wait_vm("A")
    layernorm(k, xa, 64, ones, T)
    layernorm(k, xa, 64, ones, T)
    def rd(j, buf):
        for t in range(7):
            for h in range(2):
                off = (j & 7) * 7168 + h * 3584 + 32 * t
                k("ds_read_b64_tr_b16", v(bf + buf * 28 + t * 4 + 2 * h, 2), v(vT[j >> 3]), mods="offset:%d" % off, tag="f%d" % j)
    for c in range(4):
        k.wait_vm("B%d" % c)
        k("s_barrier")
        rd(4 * c, 0)
        for j in range(4 * c, 4 * c + 4):
            buf = j & 1
            if j + 1 < 4 * c + 4: rd(j + 1, buf ^ 1)
            k.wait_lg("f%d" % j)
            for t in range(7):
                C = v(acc + 4 * t, 4)
                k("v_mfma_f32_16x16x32_bf16", C, v(bf + buf * 28 + t * 4, 4), v(xa + 4 * j, 4), (C if j else 0))
    k.wait_vm("BI")
    import math, struct
    f2h = lambda f: "0x%08x" % struct.unpack("<I", struct.pack("<f", f))[0]
    c1 = 2 * math.sqrt(2 / math.pi) * math.log2(math.e)
    sc1 = k.salloc(); sc2 = k.salloc()
    k("s_mov_b32", s(sc1), f2h(-c1))
    k("s_mov_b32", s(sc2), f2h(-c1 * 0.044715))
    k("s_mul_i32", s(sx), s(smt), 56 * 1024)
    k("s_mul_i32", s(sy), s(snb), 7)
    for t in range(7):
        a = [T + q for q in range(4)]; b = [T + 4 + q for q in range(4)]; u0, u1 = T + 8, T + 9; o = T + 10
        k("v_cvt_pk_bf16_f32", v(u0), v(acc + 4 * t), v(acc + 4 * t + 1))
        k("v_cvt_pk_bf16_f32", v(u1), v(acc + 4 * t + 2), v(acc + 4 * t + 3))
        unpack(k, a[0], a[1], u0); unpack(k, a[2], a[3], u1)
        unpack(k, b[0], b[1], br + 2 * t); unpack(k, b[2], b[3], br + 2 * t + 1)
        for q in range(4): k("v_add_f32", v(a[q]), v(a[q]), v(b[q]))
        k("v_cvt_pk_bf16_f32", v(u0), v(a[0]), v(a[1]))
        k("v_cvt_pk_bf16_f32", v(u1), v(a[2]), v(a[3]))
        unpack(k, a[0], a[1], u0); unpack(k, a[2], a[3], u1)
        for q in range(4): k("v_mul_f32", v(b[q]), v(a[q]), v(a[q]))
        for q in range(4): k("v_mul_f32", v(b[q]), s(sc2), v(b[q]))
        for q in range(4): k("v_add_f32", v(b[q]), s(sc1), v(b[q]))
        for q in range(4): k("v_mul_f32", v(b[q]), v(a[q]), v(b[q]))
        for q in range(4): k("v_exp_f32", v(b[q]), v(b[q]))
        for q in range(4): k("v_add_f32", v(b[q]), 1.0, v(b[q]))
        for q in range(4): k("v_rcp_f32", v(b[q]), v(b[q]))
        for q in range(4): k("v_mul_f32", v(a[q]), v(a[q]), v(b[q]))
        oo = o + 2 * (t & 1)
        k("v_cvt_pk_bf16_f32", v(oo), v(a[0]), v(a[1]))
        k("v_cvt_pk_bf16_f32", v(oo + 1), v(a[2]), v(a[3]))
        k("s_add_u32", s(sO), s(sy), t)
        k("s_lshr_b32", s(sAb), s(sO), 1)
        k("s_lshl_b32", s(sAb), s(sAb), 10)
        k("s_and_b32", s(sO), s(sO), 1)
        k("s_lshl_b32", s(sO), s(sO), 3)
        k("s_add_u32", s(sO), s(sO), s(sAb))
        k("s_add_u32", s(sO), s(sO), s(sx))
        k("buffer_store_dwordx2", v(oo, 2), v(vA), s(sGF, 4), s(sO), mods="offen")
    k.label(k.name + "_done")
    k("s_endpgm")
    return k, 512, 114688

def gen_k4():
    R = 7
    k = Kern("k4_mlp2_kernel")
    P = prologue(k, [6, 7, 8, 10])
    smb, snb = decode_32x8(k)
    sW, vL, vM, vG = lane_ids(k)
    xa = k.valloc(16 * R); acc = k.valloc(16); bf = k.valloc(32); hr = k.valloc(8); br = k.valloc(8); T = k.valloc(16)
    vA = k.valloc(); vB = k.valloc(); vT = [k.valloc() for _ in range(8)]; vX = k.valloc(); vBi = k.valloc()
    t0 = k.valloc(); t1 = k.valloc(); t2 = k.valloc()
    smt = k.salloc(); sx = k.salloc(); sO = k.salloc()
    k("s_lshl_b32", s(smt), s(smb), 2)
    k("s_add_u32", s(smt), s(smt), s(sW))
    k("v_lshlrev_b32", v(vA), 4, v(vL))
    b64_addr(k, vL, vG, snb, vB, vT, t0, t1, t2, 1024)
    for t in range(4): k("v_add_u32", v(vT[4 + t]), "0x10000", v(vT[t]))
    k("s_lshl_b32", s(sx), s(smt), 14)
    k("s_lshl_b32", s(sO), s(snb), 7)
    k("s_add_u32", s(sx), s(sx), s(sO))
    k("v_lshlrev_b32", v(vX), 10, v(vM))
    k("v_lshl_add_u32", v(vX), v(vG), 3, v(vX))
    k("v_add_u32", v(vX), s(sx), v(vX))
    k("v_lshlrev_b32", v(vBi), 3, v(vG))
    k("v_add_u32", v(vBi), s(sO), v(vBi))
    k.wait_smem()
    sW2 = srd(k, P[6], 0, 1792 * 512 * 2)
    sB2 = srd(k, P[7], 0, 512 * 2)
    sOut = srd(k, P[8], 0, 2 * MB)
    sHF = srd(k, P[10], WS_HF, SZ_HF)
    sGF = srd(k, P[10], WS_GF, SZ_GF)
    sAb = k.salloc(); sWr = k.salloc(); sWm = k.salloc(); sHb = k.salloc()
    k("s_mul_i32", s(sAb), s(smt), 56 * 1024)
    k("s_lshl_b32", s(sWr), s(sW), 13)
    k("s_lshl_b32", s(sWm), s(sW), 10)
    k("s_lshl_b32", s(sHb), s(smt), 14)
    k("s_lshl_b32", s(sO), s(snb), 11)
    k("s_add_u32", s(sHb), s(sHb), s(sO))
    for u in range(2):
        k("buffer_load_dwordx4", v(hr + 4 * u, 4), v(vA), s(sHF, 4), s(sHb), mods="offen offset:%d" % (1024 * u), tag="H")
    for t in range(4):
        k("buffer_load_dwordx2", v(br + 2 * t, 2), v(vBi), s(sB2, 4), 0, mods="offen offset:%d" % (32 * t), tag="H")
    def issue(c):
        for j in range(4 * c, 4 * c + 4):
            k("s_add_u32", s(sO), s(sAb), (j * 1024))
            k("buffer_load_dwordx4", v(xa + 16 * (c % R) + 4 * (j & 3), 4), v(vA), s(sGF, 4), s(sO), mods="offen", tag="C%d" % c)
        for u in range(4):
            i0 = 16 * c + 4 * u
            k("s_add_u32", s(sO), s(sWr), hex(i0 * 8192))
            k("s_add_u32", "m0", s(sWm), hex((c % R) * 16384 + 4 * u * 1024))
            k("buffer_load_dwordx4", v(vB), s(sW2, 4), s(sO), mods="offen lds", tag="C%d" % c)
    def rd(j, buf):
        c = j // 4
        base = (c % R) * 16384 + (j & 3) * 4096
        hi = base >= 65536
        for t in range(4):
            for h in range(2):
                k("ds_read_b64_tr_b16", v(bf + buf * 16 + t * 4 + 2 * h, 2), v(vT[t + (4 if hi else 0)]),
                  mods="offset:%d" % (base - (65536 if hi else 0) + h * 2048), tag="f%d" % j)
    NC = 14
    for c in range(R): issue(c)
    for c in range(NC):
        k.wait_vm("C%d" % c)
        k("s_barrier")
        if c >= 1 and c - 1 + R < NC: issue(c - 1 + R)
        rd(4 * c, 0)
        for j in range(4 * c, 4 * c + 4):
            buf = j & 1
            if j + 1 < 4 * c + 4: rd(j + 1, buf ^ 1)
            k.wait_lg("f%d" % j)
            for t in range(4):
                C = v(acc + 4 * t, 4)
                k("v_mfma_f32_16x16x32_bf16", C, v(bf + buf * 16 + t * 4, 4), v(xa + 16 * (c % R) + 4 * (j & 3), 4), (C if j else 0))
    for t in range(4):
        a = [T + q for q in range(4)]; b = [T + 4 + q for q in range(4)]; u0, u1 = T + 8, T + 9; o = T + 10 + 2 * (t & 1)
        k("v_cvt_pk_bf16_f32", v(u0), v(acc + 4 * t), v(acc + 4 * t + 1))
        k("v_cvt_pk_bf16_f32", v(u1), v(acc + 4 * t + 2), v(acc + 4 * t + 3))
        unpack(k, a[0], a[1], u0); unpack(k, a[2], a[3], u1)
        unpack(k, b[0], b[1], br + 2 * t); unpack(k, b[2], b[3], br + 2 * t + 1)
        for q in range(4): k("v_add_f32", v(a[q]), v(a[q]), v(b[q]))
        k("v_cvt_pk_bf16_f32", v(u0), v(a[0]), v(a[1]))
        k("v_cvt_pk_bf16_f32", v(u1), v(a[2]), v(a[3]))
        unpack(k, a[0], a[1], u0); unpack(k, a[2], a[3], u1)
        unpack(k, b[0], b[1], hr + 2 * t); unpack(k, b[2], b[3], hr + 2 * t + 1)
        for q in range(4): k("v_add_f32", v(a[q]), v(b[q]), v(a[q]))
        k("v_cvt_pk_bf16_f32", v(o), v(a[0]), v(a[1]))
        k("v_cvt_pk_bf16_f32", v(o + 1), v(a[2]), v(a[3]))
        k("buffer_store_dwordx2", v(o, 2), v(vX), s(sOut, 4), 0, mods="offen offset:%d" % (32 * t))
    k.label(k.name + "_done")
    k("s_endpgm")
    return k, 256, R * 16384

def build(path):
    ks = [gen_k1(), gen_k2a(), gen_k2b(), gen_k3(), gen_k4()]
    head = open("cdna_kernels/%s.s.ref" % NAME).read().split("\n")
    hdr = [l for l in head if l.startswith(";") and "@launch" not in l and "Override launch" not in l and "grid=ceil" not in l]
    out = hdr[:]
    for k, threads, lds in ks:
        out.append("; @launch kernel=%s grid=(256,1,1) block=(%d,1,1) lds=%d" % (k.name, threads, lds))
    out.append('.amdgcn_target "amdgcn-amd-amdhsa--gfx950"')
    out.append(".text")
    for k, threads, lds in ks:
        out += [".globl %s" % k.name, ".p2align 8", ".type %s,@function" % k.name, "%s:" % k.name, k.text()]
    out.append('.section .rodata,"a"')
    for k, threads, lds in ks:
        nv = max(k.maxv, 8)
        acc = (nv + 3) // 4 * 4
        out += [".p2align 6", ".amdhsa_kernel %s" % k.name,
                "  .amdhsa_next_free_vgpr %d" % nv,
                "  .amdhsa_next_free_sgpr %d" % max(k.maxs, 16),
                "  .amdhsa_accum_offset %d" % acc,
                "  .amdhsa_group_segment_fixed_size 0",
                "  .amdhsa_kernarg_size 88",
                "  .amdhsa_user_sgpr_count 2",
                "  .amdhsa_user_sgpr_kernarg_segment_ptr 1",
                "  .amdhsa_system_sgpr_workgroup_id_x 1",
                "  .amdhsa_float_denorm_mode_32 3",
                "  .amdhsa_float_denorm_mode_16_64 3",
                ".end_amdhsa_kernel"]
        print(k.name, "vgpr", nv, "sgpr", k.maxs, "insts", len(k.ins))
    open(path, "w").write("\n".join(out) + "\n")

if __name__ == "__main__":
    build(sys.argv[1] if len(sys.argv) > 1 else "cdna_kernels/%s.s" % NAME)
```

```python
import re

TRANS = ("v_exp_f32", "v_log_f32", "v_rcp_f32", "v_rsq_f32", "v_sqrt_f32", "v_sin_f32", "v_cos_f32")

def regs_of(op):
    op = op.strip()
    m = re.fullmatch(r"-?\|?([vsa])(\d+)\|?", op)
    if m:
        return [(m.group(1), int(m.group(2)))]
    m = re.fullmatch(r"-?([vsa])\[(\d+):(\d+)\]", op)
    if m:
        return [(m.group(1), i) for i in range(int(m.group(2)), int(m.group(3)) + 1)]
    if op == "vcc":
        return [("vcc", 0)]
    if op == "m0":
        return [("m0", 0)]
    if op == "exec":
        return [("exec", 0)]
    return []

class Inst:
    __slots__ = ("text", "kind", "wr", "rd", "mn", "srcc", "ab", "nops", "passes")
    def __init__(self, text, kind, wr, rd, mn, srcc=(), ab=(), nops=0, passes=0):
        self.text, self.kind, self.wr, self.rd, self.mn = text, kind, set(wr), set(rd), mn
        self.srcc, self.ab, self.nops, self.passes = tuple(srcc), set(ab), nops, passes

class Kern:
    def __init__(self, name):
        self.name = name
        self.ins = []
        self.vnext = 0
        self.snext = 0
        self.vmq = []
        self.lgq = []
        self.maxv = 0
        self.maxs = 0
    def valloc(self, n=1, align=None):
        a = align or (1 if n == 1 else (2 if n == 2 else 4))
        self.vnext = (self.vnext + a - 1) // a * a
        b = self.vnext
        self.vnext += n
        self.maxv = max(self.maxv, self.vnext)
        return b
    def salloc(self, n=1, align=None):
        a = align or (1 if n == 1 else (2 if n == 2 else 4))
        self.snext = (self.snext + a - 1) // a * a
        b = self.snext
        self.snext += n
        self.maxs = max(self.maxs, self.snext)
        return b
    def raw(self, text):
        self.ins.append(Inst(text, "RAW", [], [], ""))
    def label(self, name):
        self.ins.append(Inst(name + ":", "LABEL", [], [], ""))
    def comment(self, t):
        self.ins.append(Inst("; " + t, "COMMENT", [], [], ""))
    def nop(self, n):
        while n > 0:
            k = min(n, 16)
            self.ins.append(Inst("s_nop %d" % (k - 1), "NOP", [], [], "s_nop", nops=k))
            n -= k
    def __call__(self, mn, *ops, mods="", tag=None, cond=False):
        ops = [str(o) for o in ops]
        if cond: tag = ("?", tag)
        text = mn + " " + ", ".join(ops) + ((" " + mods) if mods else "")
        R = [regs_of(o) for o in ops]
        for r in R:
            for (c, i) in r:
                if c == "v": self.maxv = max(self.maxv, i + 1)
                if c == "s": self.maxs = max(self.maxs, i + 1)
        wr, rd, kind, srcc, ab, passes = [], [], None, (), (), 0
        flat = lambda L: [x for l in L for x in l]
        if mn.startswith("v_mfma"):
            kind = "MFMA"; wr = R[0]; rd = flat(R[1:]); srcc = tuple(R[3]); ab = R[1] + R[2]
            passes = 8 if "32x32" in mn else 4
        elif mn == "v_swap_b32":
            kind = "VALU"; wr = R[0] + R[1]; rd = R[0] + R[1]
        elif mn.startswith("v_permlane") and "swap" in mn:
            kind = "PERM"; wr = R[0] + R[1]; rd = R[0] + R[1]
        elif mn.startswith("v_cmp"):
            kind = "VALU"; wr = R[0]; rd = flat(R[1:])
        elif mn.startswith("v_readfirstlane") or mn.startswith("v_readlane"):
            kind = "RDLANE"; wr = R[0]; rd = flat(R[1:])
        elif mn.startswith("v_"):
            kind = "TRANS" if mn in TRANS else ("DOT" if mn.startswith("v_dot") else "VALU")
            wr = R[0]; rd = flat(R[1:])
            if mn.startswith("v_fmac") or mn.startswith("v_dot2c") or mn.startswith("v_pk_fmac"):
                rd = rd + R[0]
            if mn.startswith("v_cndmask") and len(ops) == 3:
                rd = rd + [("vcc", 0)]
            if "_co_" in mn:
                wr = R[0] + R[1]; rd = flat(R[2:])
            if "dpp" in mn or "dpp" in mods or "row_" in mods:
                kind = "DPP"
        elif mn.startswith("buffer_load") or mn.startswith("global_load"):
            kind = "VMEM"
            if "lds" in mods.split() or "_lds_" in mn:
                rd = flat(R) + [("m0", 0)]; kind = "DMA"
            else:
                wr = R[0]; rd = flat(R[1:])
            self.vmq.append(tag)
        elif mn.startswith("buffer_store") or mn.startswith("global_store"):
            kind = "VMEMST"; rd = flat(R)
            self.vmq.append(tag)
        elif mn.startswith("buffer_atomic") or mn.startswith("global_atomic"):
            kind = "VMEMST"; rd = flat(R)
            if "sc0" in mods.split(): wr = R[0]
            self.vmq.append(tag)
        elif mn.startswith("buffer_wbl2") or mn.startswith("buffer_inv"):
            kind = "VMEMST"; self.vmq.append(tag)
        elif mn.startswith("ds_read") or mn.startswith("ds_bpermute") or mn.startswith("ds_swizzle"):
            kind = "DS"; wr = R[0]; rd = flat(R[1:]); self.lgq.append(tag)
        elif mn.startswith("ds_write") or mn.startswith("ds_add"):
            kind = "DS"; rd = flat(R); self.lgq.append(tag)
        elif mn.startswith("s_load"):
            kind = "SMEM"; wr = R[0]; rd = flat(R[1:])
        elif mn.startswith("s_cmp") or mn.startswith("s_cbranch") or mn in ("s_branch", "s_barrier", "s_endpgm", "s_waitcnt", "s_setprio", "s_sleep"):
            kind = "SALU"; rd = flat(R)
        elif mn.startswith("s_"):
            kind = "SALU"; wr = R[0]; rd = flat(R[1:])
        else:
            raise ValueError("unknown mnemonic " + mn)
        self.ins.append(Inst(text, kind, wr, rd, mn, srcc, ab, passes=passes))
    def stamp(self, slot=None):
        if not getattr(self, "prof", False): return
        if slot is None:
            i = self.nstamp = getattr(self, "nstamp", 0) + 1
        else:
            i = slot + 1
            self.nstamp = max(getattr(self, "nstamp", 0), i)
        assert i <= 16
        r = 98 - i
        self.lgq = []
        self.ins.append(Inst("s_waitcnt lgkmcnt(0)", "SALU", [], [], "s_waitcnt"))
        self.ins.append(Inst("s_memtime s[98:99]", "SMEM", [("s", 98), ("s", 99)], [], "s_memtime"))
        self.ins.append(Inst("s_waitcnt lgkmcnt(0)", "SALU", [], [], "s_waitcnt"))
        self.ins.append(Inst("s_mov_b32 s%d, s98" % r, "SALU", [("s", r)], [("s", 98)], "s_mov_b32"))
        self.maxs = 102
    def dump_stamps(self, wsptr, kidx):
        if not getattr(self, "prof", False): return
        n = getattr(self, "ndump", None) or self.nstamp
        self.raw("s_add_u32 s60, s%d, 0x%x" % (wsptr, (64 + kidx) << 20))
        self.raw("s_addc_u32 s61, s%d, 0" % (wsptr + 1))
        self.raw("s_and_b32 s61, s61, 0xffff")
        self.raw("s_mov_b32 s62, 0x100000")
        self.raw("s_mov_b32 s63, 0x20000")
        self.raw("v_lshrrev_b32 v2, 6, v0")
        self.raw("s_lshl_b32 s64, s2, 4")
        self.raw("v_add_u32 v2, s64, v2")
        self.raw("v_lshlrev_b32 v2, 7, v2")
        self.raw("v_and_b32 v3, 63, v0")
        self.raw("v_cmp_eq_u32 vcc, 0, v3")
        self.raw("s_nop 4")
        self.raw("s_and_saveexec_b64 s[66:67], vcc")
        for i in range(1, n + 1):
            r = 98 - i
            self.raw("v_mov_b32 v4, s%d" % r)
            self.raw("v_mov_b32 v5, 1")
            self.raw("buffer_store_dwordx2 v[4:5], v2, s[60:63], 0 offen offset:%d" % (8 * (i - 1)))
            self.raw("s_nop 1")
        self.raw("s_mov_b64 exec, s[66:67]")
    def wait_vm(self, tag=None, all=False, lg=None):
        if all or tag is None:
            n = 0; self.vmq = []
        else:
            idx = [i for i, t in enumerate(self.vmq) if t == tag or t == ("?", tag)]
            if not idx:
                return
            last = idx[-1]
            n = sum(1 for t in self.vmq[last + 1:] if not (isinstance(t, tuple) and t[0] == "?"))
            self.vmq = self.vmq[last + 1:]
        assert n <= 63
        self.ins.append(Inst("s_waitcnt vmcnt(%d)" % n, "SALU", [], [], "s_waitcnt"))
    def wait_lg(self, tag=None):
        if tag is None:
            n = 0; self.lgq = []
        else:
            idx = [i for i, t in enumerate(self.lgq) if t == tag]
            if not idx:
                return
            last = idx[-1]
            n = len(self.lgq) - 1 - last
            self.lgq = self.lgq[last + 1:]
        if n > 15:
            return self.wait_lg_n(15)
        self.ins.append(Inst("s_waitcnt lgkmcnt(%d)" % n, "SALU", [], [], "s_waitcnt"))
    def wait_lg_n(self, n):
        self.lgq = self.lgq[max(0, len(self.lgq) - n):]
        self.ins.append(Inst("s_waitcnt lgkmcnt(%d)" % n, "SALU", [], [], "s_waitcnt"))
    def wait_smem(self):
        self.lgq = []
        self.ins.append(Inst("s_waitcnt lgkmcnt(0)", "SALU", [], [], "s_waitcnt"))
    def need(self, p, c):
        n = 0
        pv = {r for r in p.wr if r[0] in "va"}
        ps = {r for r in p.wr if r[0] in ("s", "vcc")}
        crd, cwr = c.rd, c.wr
        isvalu = lambda k: k in ("VALU", "TRANS", "DOT", "PERM", "RDLANE", "DPP")
        if p.kind == "MFMA":
            big = {4: 8, 8: 12}[p.passes]
            if c.kind == "MFMA":
                if pv & c.ab: n = max(n, big)
                if pv & set(c.srcc):
                    if tuple(sorted(p.wr)) == tuple(sorted(c.srcc)) and p.passes == c.passes: pass
                    else: n = max(n, big - 2)
            elif isvalu(c.kind):
                if pv & (crd | cwr): n = max(n, big)
                if set(p.srcc) & cwr: n = max(n, {4: 3, 8: 7}[p.passes])
            elif c.kind in ("VMEM", "VMEMST", "DS", "DMA"):
                if pv & (crd | cwr): n = max(n, big)
        if isvalu(p.kind):
            if c.kind == "MFMA":
                if pv & crd: n = max(n, 3 if p.kind == "DOT" else 2)
                if ("exec", 0) in p.wr: n = max(n, 4)
            if p.kind == "DOT" and isvalu(c.kind):
                if pv & (crd | cwr):
                    if c.mn == p.mn and not (pv & (crd - c.wr)) : pass
                    else: n = max(n, 3)
            if p.kind == "DOT" and c.kind in ("VMEM", "VMEMST", "DS", "DMA") and pv & crd:
                n = max(n, 3)
            if p.kind == "TRANS" and isvalu(c.kind) and c.kind != "TRANS" and pv & crd:
                n = max(n, 1)
            if c.kind == "RDLANE" and pv & crd: n = max(n, 1)
            if c.kind in ("PERM", "DPP") and pv & crd: n = max(n, 2)
            if ps:
                if isvalu(c.kind) and ps & crd: n = max(n, 4 if c.kind == "RDLANE" else 2)
                if c.kind in ("VMEM", "VMEMST", "DMA") and ps & crd: n = max(n, 5)
                if c.kind == "SALU" and ps & crd: n = max(n, 1)
        if p.kind == "SALU" and ("m0", 0) in p.wr and c.kind == "DMA":
            n = max(n, 1)
        if p.kind == "VMEMST" and ("x4" in p.mn or "x3" in p.mn):
            data = p.rd
            if isvalu(c.kind) and data & cwr: n = max(n, 2)
            elif c.kind in ("VMEM", "DS") and data & cwr: n = max(n, 1)
        return n
    def finalize(self):
        out = []
        for c in self.ins:
            if c.kind in ("RAW", "COMMENT", "LABEL", "NOP"):
                out.append(c); continue
            dist = 0; extra = 0
            for p in reversed(out):
                if p.kind in ("COMMENT",): continue
                if p.kind in ("LABEL", "RAW"): continue
                if p.kind == "NOP":
                    dist += p.nops
                else:
                    nd = self.need(p, c)
                    if nd > dist: extra = max(extra, nd - dist)
                    dist += 1
                if dist > 24: break
            k = extra
            while k > 0:
                q = min(k, 16)
                out.append(Inst("s_nop %d" % (q - 1), "NOP", [], [], "s_nop", nops=q))
                k -= q
            out.append(c)
        return out
    def text(self):
        L = []
        for i in self.finalize():
            if i.kind == "LABEL": L.append(i.text)
            else: L.append("    " + i.text)
        return "\n".join(L)

def v(b, n=1):
    return "v%d" % b if n == 1 else "v[%d:%d]" % (b, b + n - 1)
def s(b, n=1):
    return "s%d" % b if n == 1 else "s[%d:%d]" % (b, b + n - 1)
```

```python
import sys
sys.path.insert(0, "dev")
from asmlib import *

NAME = "sequential_preLN__linear_attn_block__mixer_channel_mlp__prompt"
MB = 1 << 20
WS_PQ, WS_PART, WS_OF, WS_HF, WS_GF, WS_YF = 0, 2 * MB, 3 * MB, 5 * MB, 7 * MB, 15 * MB
SZ_PQ, SZ_PART, SZ_OF, SZ_HF, SZ_GF = 2 * MB, 1 * MB, 2 * MB, 2 * MB, 128 * 56 * 1024
LOG2E = "0x3fb8aa3b"
import os
PROF = bool(int(os.environ.get("PROF", "0")))
HI = "0xffff0000"

def srd(k, base, off, size):
    d = k.salloc(4)
    if off:
        k("s_add_u32", s(d), s(base), hex(off))
        k("s_addc_u32", s(d + 1), s(base + 1), 0)
    else:
        k("s_mov_b32", s(d), s(base))
        k("s_mov_b32", s(d + 1), s(base + 1))
    k("s_and_b32", s(d + 1), s(d + 1), "0xffff")
    k("s_mov_b32", s(d + 2), hex(size))
    k("s_mov_b32", s(d + 3), "0x20000")
    return d

def prologue(k, ptr_slots, nwg=256):
    k.snext = 4
    k.vnext = 6
    k.prof = PROF
    k.stamp()
    k("s_cmp_ge_u32", "s2", nwg)
    k("s_cbranch_scc1", k.name + "_done")
    P = {}
    for sl in ptr_slots:
        r = k.salloc(2)
        k("s_load_dwordx2", s(r, 2), "s[0:1]", sl * 8)
        P[sl] = r
    return P

def lane_ids(k):
    t = k.valloc()
    k("v_lshrrev_b32", v(t), 6, "v0")
    sW = k.salloc()
    k("v_readfirstlane_b32", s(sW), v(t))
    vL = k.valloc(); vM = k.valloc(); vG = k.valloc()
    k("v_and_b32", v(vL), 63, "v0")
    k("v_and_b32", v(vM), 15, "v0")
    k("v_bfe_u32", v(vG), "v0", 4, 2)
    return sW, vL, vM, vG

def decode_16x16(k):
    sx = k.salloc(); sl = k.salloc(); smb = k.salloc(); snb = k.salloc(); t = k.salloc()
    k("s_and_b32", s(sx), "s2", 7)
    k("s_lshr_b32", s(sl), "s2", 3)
    k("s_lshl_b32", s(smb), s(sx), 1)
    k("s_and_b32", s(t), s(sl), 1)
    k("s_add_u32", s(smb), s(smb), s(t))
    k("s_lshr_b32", s(snb), s(sl), 1)
    k.sloc = sl
    return smb, snb

def prefetch(k, sSrd, total, nwaves, sW, vL, vtmp, vdummy):
    per_wg = total // 32
    n = per_wg // 4096
    assert per_wg % 4096 == 0
    so = k.salloc(); st = k.salloc()
    k("s_mul_i32", s(so), s(k.sloc), per_wg)
    k("v_lshlrev_b32", v(vtmp), 6, v(vL))
    per_wave = (n + nwaves - 1) // nwaves
    k("s_mul_i32", s(st), s(sW), per_wave * 4096)
    k("s_add_u32", s(so), s(so), s(st))
    for i in range(per_wave):
        k("buffer_load_dword", v(vdummy), v(vtmp), s(sSrd, 4), s(so), mods="offen", tag="PF")
        if i + 1 < per_wave: k("s_add_u32", s(so), s(so), 4096)

def decode_32x8(k):
    sx = k.salloc(); sl = k.salloc(); smb = k.salloc(); snb = k.salloc(); t = k.salloc()
    k("s_and_b32", s(sx), "s2", 7)
    k("s_lshr_b32", s(sl), "s2", 3)
    k("s_lshl_b32", s(smb), s(sx), 2)
    k("s_and_b32", s(t), s(sl), 3)
    k("s_add_u32", s(smb), s(smb), s(t))
    k("s_lshr_b32", s(snb), s(sl), 2)
    k.sloc = sl
    return smb, snb

def unpack(k, lo, hi, src):
    k("v_lshlrev_b32", v(lo), 16, v(src))
    k("v_and_b32", v(hi), HI, v(src))

def layernorm(k, xa, nd, ones, T, extra=None):
    S = T
    mean, mb, dl, sq0, sq1, nm0, nm1, t0 = T + 4, T + 5, T + 6, T + 8, T + 9, T + 10, T + 11, T + 12
    P = [T + 12 + 2 * i for i in range(6)]
    for j in range(nd // 4):
        k("v_mfma_f32_16x16x32_bf16", v(S, 4), v(ones, 4), v(xa + 4 * j, 4), (v(S, 4) if j else 0))
    k("v_mul_f32", v(mean), "0x3b000000", v(S))
    k("v_cvt_pk_bf16_f32", v(mb), v(mean), v(mean))
    k("v_lshlrev_b32", v(mb), 16, v(mb))
    k("v_sub_f32", v(dl), v(mean), v(mb))
    k("v_sub_f32", v(nm0), 0, v(mb))
    k("v_sub_f32", v(nm1), 0, v(mb))
    k("v_mov_b32", v(sq0), 0)
    k("v_mov_b32", v(sq1), 0)
    for d0 in range(0, nd, 6):
        ds = list(range(d0, min(nd, d0 + 6)))
        for i, d in enumerate(ds): unpack(k, P[i], P[i] + 1, xa + d)
        for i, d in enumerate(ds): k("v_pk_add_f32", v(P[i], 2), v(P[i], 2), v(nm0, 2))
        for i, d in enumerate(ds): k("v_pk_fma_f32", v(sq0, 2), v(P[i], 2), v(P[i], 2), v(sq0, 2))
        for i, d in enumerate(ds): k("v_cvt_pk_bf16_f32", v(xa + d), v(P[i]), v(P[i] + 1))
        if extra: extra.pop(0)()
    k("v_add_f32", v(sq0), v(sq0), v(sq1))
    k("v_mov_b32", v(sq1), v(sq0))
    k("v_permlane16_swap_b32", v(sq0), v(sq1))
    k("v_add_f32", v(sq0), v(sq0), v(sq1))
    k("v_mov_b32", v(sq1), v(sq0))
    k("v_permlane32_swap_b32", v(sq0), v(sq1))
    k("v_add_f32", v(sq0), v(sq0), v(sq1))
    k("v_mul_f32", v(dl), v(dl), v(dl))
    k("v_mul_f32", v(sq0), "0x3b000000", v(sq0))
    k("v_sub_f32", v(sq0), v(sq0), v(dl))
    k("v_max_f32", v(sq0), 0, v(sq0))
    k("v_cvt_pk_bf16_f32", v(sq0), v(sq0), v(sq0))
    k("v_lshlrev_b32", v(sq0), 16, v(sq0))
    k("v_add_f32", v(sq0), "0x3727c5ac", v(sq0))
    k("v_cvt_pk_bf16_f32", v(sq0), v(sq0), v(sq0))
    k("v_lshlrev_b32", v(sq0), 16, v(sq0))
    k("v_sqrt_f32", v(sq0), v(sq0))
    k("v_cvt_pk_bf16_f32", v(sq0), v(sq0), v(sq0))
    k("v_lshlrev_b32", v(sq0), 16, v(sq0))
    k("v_rcp_f32", v(nm0), v(sq0))
    k("v_rcp_f32", v(nm1), v(sq0))
    for d0 in range(0, nd, 6):
        ds = list(range(d0, min(nd, d0 + 6)))
        for i, d in enumerate(ds): unpack(k, P[i], P[i] + 1, xa + d)
        for i, d in enumerate(ds): k("v_pk_mul_f32", v(P[i], 2), v(P[i], 2), v(nm0, 2))
        for i, d in enumerate(ds): k("v_cvt_pk_bf16_f32", v(xa + d), v(P[i]), v(P[i] + 1))
        if extra: extra.pop(0)()
    while extra: extra.pop(0)()

def phi_pack(k, src, dst, T, sC):
    a = [T + i for i in range(4)]; e = [T + 4 + i for i in range(4)]; t0, t1 = T + 8, T + 9
    k("v_cvt_pk_bf16_f32", v(t0), v(src), v(src + 1))
    k("v_cvt_pk_bf16_f32", v(t1), v(src + 2), v(src + 3))
    unpack(k, a[0], a[1], t0); unpack(k, a[2], a[3], t1)
    for i in range(4): k("v_mul_f32", v(e[i]), LOG2E, v(a[i]))
    for i in range(4): k("v_exp_f32", v(e[i]), v(e[i]))
    for i in range(4): k("v_cmp_lt_f32", s(sC + 2 * i, 2), 0, v(a[i]))
    for i in range(4): k("v_add_f32", v(a[i]), 1.0, v(a[i]))
    for i in range(4): k("v_cndmask_b32", v(a[i]), v(e[i]), v(a[i]), s(sC + 2 * i, 2))
    k("v_cvt_pk_bf16_f32", v(t0), v(a[0]), v(a[1]))
    k("v_cvt_pk_bf16_f32", v(t1), v(a[2]), v(a[3]))
    unpack(k, a[0], a[1], t0); unpack(k, a[2], a[3], t1)
    for i in range(4): k("v_add_f32", v(a[i]), "0x358637bd", v(a[i]))
    k("v_cvt_pk_bf16_f32", v(dst), v(a[0]), v(a[1]))
    k("v_cvt_pk_bf16_f32", v(dst + 1), v(a[2]), v(a[3]))

def gemm_steps(k, steps, T, rd, mfma, pre=None):
    j0 = steps[0]
    if pre: pre(j0)
    for t in range(T): rd(j0, t)
    for n, j in enumerate(steps):
        nxt = steps[n + 1] if n + 1 < len(steps) else None
        if nxt is not None and pre: pre(nxt)
        for t in range(T):
            k.wait_lg("f%d_%d" % (j, t))
            mfma(j, t)
            if nxt is not None: rd(nxt, t)

def gen_k1():
    k = Kern("k1_qkv_kernel")
    P = prologue(k, [0, 1, 2, 10])
    smb, shg = decode_16x16(k)
    sW, vL, vM, vG = lane_ids(k)
    xa = k.valloc(64); acc = k.valloc(24); bf = k.valloc(48); ones = k.valloc(4)
    T = k.valloc(24); vpf = k.valloc(); vpd = k.valloc()
    vB = k.valloc(); vT = [k.valloc() for _ in range(6)]; vXr = [k.valloc() for _ in range(4)]; vL16 = k.valloc()
    t0 = k.valloc(); t1 = k.valloc(); t2 = k.valloc(); t3 = k.valloc()
    sT0 = k.salloc(); sx = k.salloc(); sW16k = k.salloc()
    k("s_lshl_b32", s(sT0), s(smb), 3)
    k("s_add_u32", s(sT0), s(sT0), s(sW))
    k("s_lshl_b32", s(sx), s(sT0), 14)
    k("s_lshl_b32", s(sW16k), s(sW), 14)
    k("v_lshlrev_b32", v(vL16), 4, v(vL))
    k("v_lshrrev_b32", v(t0), 2, v(vL))
    k("v_and_b32", v(t1), 3, v(vL))
    k("v_lshrrev_b32", v(t2), 3, v(t0))
    k("v_lshlrev_b32", v(t2), 1, v(t2))
    k("v_xor_b32", v(t1), v(t1), v(t2))
    k("v_mul_u32_u24", v(vB), "0xc00", v(t0))
    k("v_lshl_add_u32", v(vB), v(t1), 4, v(vB))
    sh64 = k.salloc()
    k("s_lshl_b32", s(sh64), s(shg), 6)
    k("v_add_u32", v(vB), s(sh64), v(vB))
    k("v_bfe_u32", v(t0), v(vL), 2, 2)
    k("v_and_b32", v(t2), 1, v(vG))
    k("v_lshl_add_u32", v(t0), v(t2), 3, v(t0))
    k("v_lshlrev_b32", v(t0), 6, v(t0))
    k("v_and_b32", v(t1), 1, v(vL))
    k("v_lshl_add_u32", v(t0), v(t1), 3, v(t0))
    k("v_bfe_u32", v(t1), v(vL), 1, 1)
    k("v_lshlrev_b32", v(t2), 1, v(t2))
    k("v_xor_b32", v(t1), v(t1), v(t2))
    k("v_lshrrev_b32", v(t3), 1, v(vG))
    for t in range(2):
        if t: k("v_xor_b32", v(t1), 2, v(t1))
        k("v_lshl_add_u32", v(t2), v(t1), 4, v(t0))
        k("v_lshl_add_u32", v(vT[t]), v(t3), 10, v(t2))
        k("v_add_u32", v(vT[t]), "0x20000", v(vT[t]))
        k("v_lshl_add_u32", v(vT[2 + t]), v(t3), 14, v(t2))
        k("v_add_u32", v(vT[4 + t]), "0x10000", v(vT[2 + t]))
    k("v_lshlrev_b32", v(t0), 10, v(vM))
    k("v_add_u32", v(t0), s(sW16k), v(t0))
    for jj in range(4):
        k("v_add_u32", v(t1), 4 * jj, v(vG))
        k("v_xor_b32", v(t1), v(t1), v(vM))
        k("v_lshl_add_u32", v(vXr[jj]), v(t1), 4, v(t0))
    for i in range(4): k("v_mov_b32", v(ones + i), "0x3f803f80")
    k.wait_smem()
    k.stamp()
    sX = srd(k, P[0], 0, 2 * MB)
    sWq = srd(k, P[1], 0, 512 * 1536 * 2)
    sPQ = srd(k, P[10], WS_PQ, SZ_PQ)
    sPT = srd(k, P[10], WS_PART, SZ_PART)
    sWo = k.salloc(); sWm = k.salloc(); sO = k.salloc()
    k("s_mul_i32", s(sWo), s(sW), 49152)
    k("s_lshl_b32", s(sWm), s(sW), 10)
    tx = [t0, t1, t2, t3]
    for m in range(16):
        k("v_xor_b32", v(tx[m & 3]), m << 4, v(vL16))
        k("s_add_u32", s(sO), s(sx), m * 1024)
        k("s_add_u32", "m0", s(sW16k), m * 1024)
        k("buffer_load_dwordx4", v(tx[m & 3]), s(sX, 4), s(sO), mods="offen lds", tag="A")
    for seg in range(3):
        k("s_add_u32", s(sO), s(sWo), hex(seg * 1024))
        k("s_add_u32", "m0", s(sWm), hex(131072 + seg * 8192))
        k("buffer_load_dwordx4", v(vB), s(sWq, 4), s(sO), mods="offen lds", tag="B0")
    prefetch(k, sWq, 512 * 1536 * 2, 8, sW, vL, vpf, vpd)
    k.stamp()
    k.wait_vm("A")
    k.stamp()
    for j in range(16):
        k("ds_read_b128", v(xa + 4 * j, 4), v(vXr[j & 3]), mods="offset:%d" % (256 * (j >> 2)))
    k.wait_lg()
    def dma_b(c, seg):
        def f():
            k("s_add_u32", s(sO), s(sWo), hex(c * 8 * 49152 + seg * 1024))
            k("s_add_u32", "m0", s(sW16k), hex(((c - 1) * 3 + seg) * 1024))
            k("buffer_load_dwordx4", v(vB), s(sWq, 4), s(sO), mods="offen lds", tag="B%d" % c)
        return f
    extra = [dma_b(c, seg) for c in range(1, 4) for seg in range(3)]
    def pf_wo():
        sWoP = srd(k, P[2], 0, 512 * 512 * 2)
        prefetch(k, sWoP, 512 * 512 * 2, 8, sW, vL, vpf, vpd)
    extra.append(pf_wo)
    k.stamp()
    layernorm(k, xa, 64, ones, T, extra)
    k.stamp()
    def rd(j, t6):
        seg, t = t6 >> 1, t6 & 1
        c, jj = j >> 2, j & 3
        for h in range(2):
            if c == 0:
                a, off = vT[t], seg * 8192 + 2 * jj * 1024 + 256 * h
            else:
                off = 2 * jj * 16384 + ((c - 1) * 3 + seg) * 1024 + 256 * h
                a = vT[2 + t]
                if off >= 65536: a, off = vT[4 + t], off - 65536
            k("ds_read_b64_tr_b16", v(bf + (j & 1) * 24 + t6 * 4 + 2 * h, 2), v(a), mods="offset:%d" % off, tag="f%d_%d" % (j, t6))
    def mf(j, t6):
        W = v(bf + (j & 1) * 24 + t6 * 4, 4); X = v(xa + 4 * j, 4); C = v(acc + 4 * t6, 4)
        a, b = (W, X) if t6 < 2 else (X, W)
        k("v_mfma_f32_16x16x32_bf16", C, a, b, (C if j else 0))
    def pre(j):
        if j & 3 == 0:
            k.wait_vm("B%d" % (j >> 2))
            k("s_barrier")
    gemm_steps(k, list(range(16)), 6, rd, mf, pre)
    k.stamp()
    sC = k.salloc(8, 2)
    pq = bf
    pk = bf + 4
    vv = bf + 8
    kv = bf + 12
    for t in range(2):
        phi_pack(k, acc + 8 + 4 * t, pk + 2 * t, T, sC)
        k("v_cvt_pk_bf16_f32", v(vv + 2 * t), v(acc + 16 + 4 * t), v(acc + 17 + 4 * t))
        k("v_cvt_pk_bf16_f32", v(vv + 2 * t + 1), v(acc + 18 + 4 * t), v(acc + 19 + 4 * t))
    for t in range(2):
        k("v_mfma_f32_16x16x16_bf16", v(kv + 4 * t, 4), v(pk + 2 * t, 2), v(vv + 2 * t, 2), 0)
        k("v_mfma_f32_16x16x16_bf16", v(kv + 8 + 4 * t, 4), v(pk + 2 * t, 2), v(ones, 2), 0)
    for t in range(2):
        phi_pack(k, acc + 4 * t, pq + 2 * t, T, sC)
    k("v_add_u32", v(t1), s(sW16k), v(vL16))
    for a in range(4):
        k("ds_write_b128", v(t1), v(kv + 4 * a, 4), mods="offset:%d" % (12288 + a * 1024))
    k("s_lshl_b32", s(sx), s(sT0), 4)
    k("s_add_u32", s(sx), s(sx), s(shg))
    k("s_lshl_b32", s(sx), s(sx), 10)
    k("buffer_store_dwordx4", v(pq, 4), v(vL16), s(sPQ, 4), s(sx), mods="offen")
    k.wait_lg()
    k("s_barrier")
    k.stamp()
    k.dump_stamps(P[10], 0)
    k("s_cmp_ge_u32", s(sW), 4)
    k("s_cbranch_scc1", k.name + "_done")
    k("v_lshlrev_b32", v(t1), 4, "v0")
    R = xa
    for w in range(8):
        k("ds_read_b128", v(R + 4 * w, 4), v(t1), mods="offset:%d" % 12288) if w == 0 else None
    k("v_add_u32", v(t2), "0x10000", v(t1))
    for w in range(1, 8):
        a, off = (t1, w * 16384 + 12288) if w < 4 else (t2, (w - 4) * 16384 + 12288)
        k("ds_read_b128", v(R + 4 * w, 4), v(a), mods="offset:%d" % off)
    k.wait_lg()
    for w in range(1, 8):
        k("v_pk_add_f32", v(R, 2), v(R, 2), v(R + 4 * w, 2))
        k("v_pk_add_f32", v(R + 2, 2), v(R + 2, 2), v(R + 4 * w + 2, 2))
    k("s_lshl_b32", s(sx), s(shg), 4)
    k("s_add_u32", s(sx), s(sx), s(smb))
    k("s_lshl_b32", s(sx), s(sx), 12)
    k("buffer_store_dwordx4", v(R, 4), v(t1), s(sPT, 4), s(sx), mods="offen")
    k.label(k.name + "_done")
    k("s_endpgm")
    return k, 512, 155648

def gen_k2a():
    k = Kern("k2a_attn_kernel")
    P = prologue(k, [4, 10])
    smb, shg = decode_16x16(k)
    sW, vL, vM, vG = lane_ids(k)
    pr = k.valloc(64); t0 = k.valloc(); t1 = k.valloc(); fr = k.valloc(8); pq = k.valloc(8)
    nd = k.valloc(16); T = k.valloc(16); o = k.valloc(4)
    sx = k.salloc(); sy = k.salloc()
    k("v_lshlrev_b32", v(t0), 4, "v0")
    k("v_lshlrev_b32", v(t1), 4, v(vL))
    k.wait_smem()
    sPQ = srd(k, P[10], WS_PQ, SZ_PQ)
    sPT = srd(k, P[10], WS_PART, SZ_PART)
    sOF = srd(k, P[10], WS_OF, SZ_OF)
    k("s_lshl_b32", s(sx), s(shg), 16)
    for m in range(16):
        k("s_add_u32", s(sy), s(sx), m * 4096)
        k("buffer_load_dwordx4", v(pr + 4 * m, 4), v(t0), s(sPT, 4), s(sy), mods="offen", tag="P")
    smt = k.salloc(); so = [k.salloc(), k.salloc()]
    k("s_lshl_b32", s(smt), s(smb), 3)
    k("s_lshl_b32", s(sy), s(sW), 1)
    k("s_add_u32", s(smt), s(smt), s(sy))
    for i in range(2):
        k("s_add_u32", s(sy), s(smt), i)
        k("s_lshl_b32", s(sy), s(sy), 4)
        k("s_add_u32", s(sy), s(sy), s(shg))
        k("s_lshl_b32", s(so[i]), s(sy), 10)
        k("buffer_load_dwordx4", v(pq + 4 * i, 4), v(t1), s(sPQ, 4), s(so[i]), mods="offen", tag="Q%d" % i)
    vpf = k.valloc(); vpd = k.valloc()
    sW1P = srd(k, P[4], 0, 512 * 1792 * 2)
    prefetch(k, sW1P, 512 * 1792 * 2, 4, sW, vL, vpf, vpd)
    k.stamp()
    k.wait_vm("P")
    k.stamp()
    for m in range(1, 16):
        k("v_pk_add_f32", v(pr, 2), v(pr, 2), v(pr + 4 * m, 2))
        k("v_pk_add_f32", v(pr + 2, 2), v(pr + 2, 2), v(pr + 4 * m + 2, 2))
    k("v_cvt_pk_bf16_f32", v(pr + 4), v(pr), v(pr + 1))
    k("v_cvt_pk_bf16_f32", v(pr + 5), v(pr + 2), v(pr + 3))
    k("v_lshlrev_b32", v(t0), 3, "v0")
    k("ds_write_b64", v(t0), v(pr + 4, 2))
    k.wait_lg()
    k("s_barrier")
    k("v_lshlrev_b32", v(t0), 3, v(vL))
    for a in range(4):
        k("ds_read_b64", v(fr + 2 * a, 2), v(t0), mods="offset:%d" % (a * 512))
    k.wait_lg()
    for i in range(2):
        k.wait_vm("Q%d" % i)
        for h in range(2):
            k("v_mfma_f32_16x16x16_bf16", v(nd + 4 * h, 4), v(fr + 2 * h, 2), v(pq + 4 * i + 2 * h, 2), 0)
            k("v_mfma_f32_16x16x16_bf16", v(nd + 8 + 4 * h, 4), v(fr + 4 + 2 * h, 2), v(pq + 4 * i + 2 * h, 2), 0)
        for h in range(2):
            d = T; a = [T + 1 + q for q in range(4)]; u0, u1 = T + 5, T + 6
            k("v_cvt_pk_bf16_f32", v(d), v(nd + 8 + 4 * h), v(nd + 8 + 4 * h))
            k("v_lshlrev_b32", v(d), 16, v(d))
            k("v_add_f32", v(d), "0x358637bd", v(d))
            k("v_cvt_pk_bf16_f32", v(d), v(d), v(d))
            k("v_lshlrev_b32", v(d), 16, v(d))
            k("v_rcp_f32", v(d), v(d))
            k("v_cvt_pk_bf16_f32", v(u0), v(nd + 4 * h), v(nd + 4 * h + 1))
            k("v_cvt_pk_bf16_f32", v(u1), v(nd + 4 * h + 2), v(nd + 4 * h + 3))
            unpack(k, a[0], a[1], u0); unpack(k, a[2], a[3], u1)
            for q in range(4): k("v_mul_f32", v(a[q]), v(a[q]), v(d))
            k("v_cvt_pk_bf16_f32", v(o + 2 * h), v(a[0]), v(a[1]))
            k("v_cvt_pk_bf16_f32", v(o + 2 * h + 1), v(a[2]), v(a[3]))
        k("buffer_store_dwordx4", v(o, 4), v(t1), s(sOF, 4), s(so[i]), mods="offen")
    k.stamp()
    k.dump_stamps(P[10], 1)
    k.label(k.name + "_done")
    k("s_endpgm")
    return k, 256, 2048

def b64_addr(k, vL, vG, snb, vB, vT, t0, t1, t2, row_bytes):
    k("v_lshrrev_b32", v(t0), 3, v(vL))
    k("v_and_b32", v(t1), 7, v(vL))
    k("v_bfe_u32", v(t2), v(t0), 1, 2)
    k("v_lshlrev_b32", v(t2), 1, v(t2))
    k("v_xor_b32", v(t1), v(t1), v(t2))
    k("v_mul_u32_u24", v(vB), hex(row_bytes), v(t0))
    k("v_lshl_add_u32", v(vB), v(t1), 4, v(vB))
    sn = k.salloc()
    k("s_lshl_b32", s(sn), s(snb), 7)
    k("v_add_u32", v(vB), s(sn), v(vB))
    k("v_bfe_u32", v(t0), v(vL), 2, 2)
    k("v_lshl_add_u32", v(t1), v(vG), 2, v(t0))
    k("v_bfe_u32", v(t2), v(t1), 1, 2)
    k("v_lshlrev_b32", v(t0), 7, v(t1))
    k("v_and_b32", v(t1), 3, v(vL))
    k("v_lshl_add_u32", v(t0), v(t1), 3, v(t0))
    for t in range(4):
        k("v_xor_b32", v(t1), t, v(t2))
        k("v_lshl_add_u32", v(vT[t]), v(t1), 5, v(t0))

def gen_g64(which):
    K4 = which == "k4"
    NP, R = (7, 4) if K4 else (2, 2)
    AJ = 56 if K4 else 16
    k = Kern("k4_mlp2_kernel" if K4 else "k2b_wo_kernel")
    P = prologue(k, [6, 7, 8, 10] if K4 else [0, 2, 10])
    smb, snb = decode_32x8(k)
    sW, vL, vM, vG = lane_ids(k)
    xa = k.valloc(16 * R); acc = k.valloc(16); bf = k.valloc(32); hr = k.valloc(4); br = k.valloc(4); T = k.valloc(16)
    vA = k.valloc(); vB = k.valloc(); vT = [k.valloc() for _ in range(8)]; vX = k.valloc(); vBi = k.valloc()
    t0 = k.valloc(); t1 = k.valloc(); t2 = k.valloc()
    smt = k.salloc(); sx = k.salloc(); sO = k.salloc(); sG = k.salloc(); sy = k.salloc()
    k("s_lshr_b32", s(sG), s(sW), 2)
    k("s_and_b32", s(sy), s(sW), 3)
    k("s_lshl_b32", s(smt), s(smb), 2)
    k("s_add_u32", s(smt), s(smt), s(sy))
    k("v_lshlrev_b32", v(vA), 4, v(vL))
    b64_addr(k, vL, vG, snb, vB, vT, t0, t1, t2, 1024)
    k("s_lshl_b32", s(sy), s(sG), 14)
    for t in range(4): k("v_add_u32", v(vT[t]), s(sy), v(vT[t]))
    for t in range(4): k("v_add_u32", v(vT[4 + t]), "0x10000", v(vT[t]))
    k("s_lshl_b32", s(sx), s(smt), 14)
    k("s_lshl_b32", s(sO), s(snb), 7)
    k("s_lshl_b32", s(sy), s(sG), 6)
    k("s_add_u32", s(sO), s(sO), s(sy))
    k("s_add_u32", s(sx), s(sx), s(sO))
    k("v_lshlrev_b32", v(vX), 10, v(vM))
    k("v_lshl_add_u32", v(vX), v(vG), 3, v(vX))
    k("v_add_u32", v(vX), s(sx), v(vX))
    k("v_lshlrev_b32", v(vBi), 3, v(vG))
    k("v_add_u32", v(vBi), s(sO), v(vBi))
    k.wait_smem()
    if K4:
        sWt = srd(k, P[6], 0, 1792 * 512 * 2)
        sB2 = srd(k, P[7], 0, 512 * 2)
        sOut = srd(k, P[8], 0, 2 * MB)
        sAF = srd(k, P[10], WS_GF, SZ_GF)
    else:
        sX = srd(k, P[0], 0, 2 * MB)
        sWt = srd(k, P[2], 0, 512 * 512 * 2)
        sAF = srd(k, P[10], WS_OF, SZ_OF)
    sHF = srd(k, P[10], WS_HF, SZ_HF)
    sAb = k.salloc(); sWr = k.salloc(); sWm = k.salloc(); sHb = k.salloc()
    k("s_mul_i32", s(sAb), s(smt), AJ * 1024)
    k("s_lshl_b32", s(sy), s(sG), 12)
    k("s_add_u32", s(sAb), s(sAb), s(sy))
    k("s_lshl_b32", s(sWr), s(sW), 14)
    k("s_lshl_b32", s(sWm), s(sW), 11)
    k("s_lshl_b32", s(sHb), s(smt), 14)
    k("s_lshl_b32", s(sO), s(snb), 11)
    k("s_add_u32", s(sHb), s(sHb), s(sO))
    k("s_lshl_b32", s(sO), s(sG), 10)
    k("s_add_u32", s(sHb), s(sHb), s(sO))
    def issue(p):
        for jj in range(4):
            k("s_add_u32", s(sO), s(sAb), (8 * p + jj) * 1024)
            k("buffer_load_dwordx4", v(xa + 16 * (p % R) + 4 * jj, 4), v(vA), s(sAF, 4), s(sO), mods="offen", tag="C%d" % p)
        for cc in range(2):
            for u in range(2):
                k("s_add_u32", s(sO), s(sWr), hex(((2 * p + cc) * 16 + u) * 8192))
                k("s_add_u32", "m0", s(sWm), hex((p % R) * 32768 + cc * 16384 + u * 1024))
                k("buffer_load_dwordx4", v(vB), s(sWt, 4), s(sO), mods="offen lds", tag="C%d" % p)
    def small_loads():
        if K4:
            k("buffer_load_dwordx4", v(hr, 4), v(vA), s(sHF, 4), s(sHb), mods="offen", tag="H")
            for t in range(2):
                k("buffer_load_dwordx2", v(br + 2 * t, 2), v(vBi), s(sB2, 4), 0, mods="offen offset:%d" % (32 * t), tag="H")
        else:
            for t in range(2):
                k("buffer_load_dwordx2", v(br + 2 * t, 2), v(vX), s(sX, 4), 0, mods="offen offset:%d" % (32 * t), tag="H")
    for p in range(2): issue(p)
    small_loads()
    k.stamp()
    def rd(j, t):
        p, jj = j >> 2, j & 3
        base = (p % R) * 32768 + jj * 4096
        hi = base >= 65536
        for h in range(2):
            k("ds_read_b64_tr_b16", v(bf + (j & 1) * 16 + t * 4 + 2 * h, 2), v(vT[t + (4 if hi else 0)]),
              mods="offset:%d" % (base - (65536 if hi else 0) + h * 2048), tag="f%d_%d" % (j, t))
    def mf(j, t):
        C = v(acc + 4 * t, 4)
        k("v_mfma_f32_16x16x32_bf16", C, v(bf + (j & 1) * 16 + t * 4, 4), v(xa + 16 * ((j >> 2) % R) + 4 * (j & 3), 4), (C if j else 0))
    pend = []
    def pre(j):
        if j & 3 == 0:
            p = j >> 2
            k.wait_vm("C%d" % p)
            k("s_barrier")
            if p in (0, 1, 3, 5): k.stamp()
            if p + 2 < NP: issue(p + 2)
    gemm_steps(k, list(range(4 * NP)), 4, rd, mf, pre)
    k.stamp()
    k("s_cmp_eq_u32", s(sG), 0)
    k("s_cbranch_scc1", k.name + "_nosw")
    for i in range(8): k("v_swap_b32", v(acc + i), v(acc + 8 + i))
    k.label(k.name + "_nosw")
    SCR = R * 32768
    k("s_lshl_b32", s(sy), s(sW), 11)
    k("s_add_u32", s(sy), s(sy), SCR)
    k("v_add_u32", v(t0), s(sy), v(vA))
    k("s_xor_b32", s(sy), s(sW), 4)
    k("s_lshl_b32", s(sy), s(sy), 11)
    k("s_add_u32", s(sy), s(sy), SCR)
    k("v_add_u32", v(t1), s(sy), v(vA))
    k("ds_write_b128", v(t0), v(acc + 8, 4))
    k("ds_write_b128", v(t0), v(acc + 12, 4), mods="offset:1024")
    k.wait_lg()
    k("s_barrier")
    k("ds_read_b128", v(acc + 8, 4), v(t1))
    k("ds_read_b128", v(acc + 12, 4), v(t1), mods="offset:1024")
    k.wait_lg()
    k.wait_vm("H")
    for i in range(0, 8, 2): k("v_pk_add_f32", v(acc + i, 2), v(acc + i, 2), v(acc + 8 + i, 2))
    hp = bf
    for t in range(2):
        a = [T + q for q in range(4)]; b = [T + 4 + q for q in range(4)]; u0, u1 = T + 8, T + 9
        k("v_cvt_pk_bf16_f32", v(u0), v(acc + 4 * t), v(acc + 4 * t + 1))
        k("v_cvt_pk_bf16_f32", v(u1), v(acc + 4 * t + 2), v(acc + 4 * t + 3))
        unpack(k, a[0], a[1], u0); unpack(k, a[2], a[3], u1)
        unpack(k, b[0], b[1], br + 2 * t); unpack(k, b[2], b[3], br + 2 * t + 1)
        for q in range(4): k("v_add_f32", v(a[q]), v(a[q]), v(b[q]))
        if K4:
            k("v_cvt_pk_bf16_f32", v(u0), v(a[0]), v(a[1]))
            k("v_cvt_pk_bf16_f32", v(u1), v(a[2]), v(a[3]))
            unpack(k, a[0], a[1], u0); unpack(k, a[2], a[3], u1)
            unpack(k, b[0], b[1], hr + 2 * t); unpack(k, b[2], b[3], hr + 2 * t + 1)
            for q in range(4): k("v_add_f32", v(a[q]), v(b[q]), v(a[q]))
        k("v_cvt_pk_bf16_f32", v(hp + 2 * t), v(a[0]), v(a[1]))
        k("v_cvt_pk_bf16_f32", v(hp + 2 * t + 1), v(a[2]), v(a[3]))
        if K4:
            k("buffer_store_dwordx2", v(hp + 2 * t, 2), v(vX), s(sOut, 4), 0, mods="offen offset:%d" % (32 * t))
    if not K4:
        k("buffer_store_dwordx4", v(hp, 4), v(vA), s(sHF, 4), s(sHb), mods="offen")
    k.stamp()
    k.dump_stamps(P[10], 4 if K4 else 2)
    k.label(k.name + "_done")
    k("s_endpgm")
    return k, 512, R * 32768 + 16384

def gen_k2b(): return gen_g64("k2b")
def gen_k4(): return gen_g64("k4")


def rowsum_xchg(k, val, tmp, vWr, vRd, R8, scr):
    k("v_mov_b32", v(tmp), v(val))
    k("v_permlane16_swap_b32", v(val), v(tmp))
    k("v_add_f32", v(val), v(val), v(tmp))
    k("v_mov_b32", v(tmp), v(val))
    k("v_permlane32_swap_b32", v(val), v(tmp))
    k("v_add_f32", v(val), v(val), v(tmp))
    k("ds_write_b32", v(vWr), v(val), mods="offset:%d" % scr)
    k.wait_lg()
    k("s_barrier")
    k("ds_read_b128", v(R8, 4), v(vRd), mods="offset:%d" % scr)
    k("ds_read_b128", v(R8 + 4, 4), v(vRd), mods="offset:%d" % (scr + 16))
    k.wait_lg()
    k("v_pk_add_f32", v(R8, 2), v(R8, 2), v(R8 + 2, 2))
    k("v_pk_add_f32", v(R8 + 4, 2), v(R8 + 4, 2), v(R8 + 6, 2))
    k("v_pk_add_f32", v(R8, 2), v(R8, 2), v(R8 + 4, 2))
    k("v_add_f32", v(val), v(R8), v(R8 + 1))

def ln_rows(k, H, T, vWr, vRd, scr):
    sm, tmp, mb, dl, nm = T, T + 1, T + 2, T + 3, T + 4
    R8 = T + 8; S2 = T + 16; pk = T + 18
    k("v_pk_add_f32", v(S2, 2), v(H, 2), v(H + 2, 2))
    for i in range(4, 16, 2): k("v_pk_add_f32", v(S2, 2), v(S2, 2), v(H + i, 2))
    k("v_add_f32", v(sm), v(S2), v(S2 + 1))
    rowsum_xchg(k, sm, tmp, vWr, vRd, R8, scr)
    k("v_mul_f32", v(sm), "0x3b000000", v(sm))
    k("v_cvt_pk_bf16_f32", v(mb), v(sm), v(sm))
    k("v_lshlrev_b32", v(mb), 16, v(mb))
    k("v_sub_f32", v(dl), v(sm), v(mb))
    k("v_sub_f32", v(nm), 0, v(mb))
    k("v_sub_f32", v(nm + 1), 0, v(mb))
    for i in range(0, 16, 2): k("v_pk_add_f32", v(H + i, 2), v(H + i, 2), v(nm, 2))
    k("v_pk_mul_f32", v(S2, 2), v(H, 2), v(H, 2))
    for i in range(2, 16, 2): k("v_pk_fma_f32", v(S2, 2), v(H + i, 2), v(H + i, 2), v(S2, 2))
    k("v_add_f32", v(sm), v(S2), v(S2 + 1))
    for i in range(0, 16, 2):
        k("v_cvt_pk_bf16_f32", v(pk), v(H + i), v(H + i + 1))
        unpack(k, H + i, H + i + 1, pk)
    rowsum_xchg(k, sm, tmp, vWr, vRd, R8, scr + 512)
    k("v_mul_f32", v(dl), v(dl), v(dl))
    k("v_mul_f32", v(sm), "0x3b000000", v(sm))
    k("v_sub_f32", v(sm), v(sm), v(dl))
    k("v_max_f32", v(sm), 0, v(sm))
    k("v_cvt_pk_bf16_f32", v(sm), v(sm), v(sm))
    k("v_lshlrev_b32", v(sm), 16, v(sm))
    k("v_add_f32", v(sm), "0x3727c5ac", v(sm))
    k("v_cvt_pk_bf16_f32", v(sm), v(sm), v(sm))
    k("v_lshlrev_b32", v(sm), 16, v(sm))
    k("v_sqrt_f32", v(sm), v(sm))
    k("v_cvt_pk_bf16_f32", v(sm), v(sm), v(sm))
    k("v_lshlrev_b32", v(sm), 16, v(sm))
    k("v_rcp_f32", v(nm), v(sm))
    k("v_rcp_f32", v(nm + 1), v(sm))
    for i in range(0, 16, 2): k("v_pk_mul_f32", v(H + i, 2), v(H + i, 2), v(nm, 2))

def gen_k2():
    k = Kern("k2_wo_ln_kernel")
    k.nwg = 128
    P = prologue(k, [0, 2, 10], nwg=128)
    sW, vL, vM, vG = lane_ids(k)
    xa = k.valloc(64); acc = k.valloc(16); bf = k.valloc(32); xr = k.valloc(8); T = k.valloc(24); H = k.valloc(16); o8 = k.valloc(8)
    vA = k.valloc(); vB = [k.valloc() for _ in range(4)]; vT = [k.valloc() for _ in range(8)]; vX = k.valloc(); vWr = k.valloc(); vRd = k.valloc()
    t0 = k.valloc(); t1 = k.valloc(); t2 = k.valloc(); t3 = k.valloc()
    smt = k.salloc(); sx = k.salloc(); sO = k.salloc(); sy = k.salloc()
    k("s_and_b32", s(smt), "s2", 7)
    k("s_lshl_b32", s(smt), s(smt), 4)
    k("s_lshr_b32", s(sy), "s2", 3)
    k("s_add_u32", s(smt), s(smt), s(sy))
    k("v_lshlrev_b32", v(vA), 4, v(vL))
    k("s_lshl_b32", s(sy), s(sW), 2)
    for i in range(4):
        k("s_add_u32", s(sx), s(sy), i)
        k("s_and_b32", s(sO), s(sx), 7)
        k("s_lshl_b32", s(sO), s(sO), 1)
        k("v_xor_b32", v(t0), s(sO), v(vL))
        k("s_lshl_b32", s(sx), s(sx), 10)
        k("v_lshl_add_u32", v(vB[i]), v(t0), 4, s(sx))
    k("v_bfe_u32", v(t0), v(vL), 2, 2)
    k("v_lshl_add_u32", v(t0), v(vG), 2, v(t0))
    k("v_and_b32", v(t1), 7, v(t0))
    k("v_lshlrev_b32", v(t1), 1, v(t1))
    k("v_lshlrev_b32", v(t0), 10, v(t0))
    k("v_and_b32", v(t2), 1, v(vL))
    k("v_lshl_add_u32", v(t0), v(t2), 3, v(t0))
    k("v_add_u32", v(t0), 16384, v(t0))
    k("v_bfe_u32", v(t2), v(vL), 1, 1)
    k("s_lshl_b32", s(sx), s(sW), 3)
    k("v_add_u32", v(t2), s(sx), v(t2))
    for t in range(4):
        k("v_add_u32", v(t3), 2 * t, v(t2))
        k("v_xor_b32", v(t3), v(t3), v(t1))
        k("v_lshl_add_u32", v(vT[t]), v(t3), 4, v(t0))
        k("v_add_u32", v(vT[4 + t]), "0x10000", v(vT[t]))
    k("s_lshl_b32", s(sx), s(smt), 14)
    k("s_lshl_b32", s(sO), s(sW), 7)
    k("s_add_u32", s(sx), s(sx), s(sO))
    k("v_lshlrev_b32", v(vX), 10, v(vM))
    k("v_lshl_add_u32", v(vX), v(vG), 3, v(vX))
    k("v_add_u32", v(vX), s(sx), v(vX))
    k("v_lshlrev_b32", v(vRd), 5, v(vM))
    k("s_lshl_b32", s(sx), s(sW), 2)
    k("v_add_u32", v(vWr), s(sx), v(vRd))
    k("v_add_u32", v(vRd), "0x24000", v(vRd))
    k("v_add_u32", v(vWr), "0x24000", v(vWr))
    k.wait_smem()
    sX = srd(k, P[0], 0, 2 * MB)
    sWt = srd(k, P[2], 0, 512 * 512 * 2)
    sOF = srd(k, P[10], WS_OF, SZ_OF)
    sHF = srd(k, P[10], WS_HF, SZ_HF)
    sYF = srd(k, P[10], WS_YF, SZ_HF)
    sAb = k.salloc(); sWm = k.salloc()
    k("s_lshl_b32", s(sAb), s(smt), 14)
    k("s_lshl_b32", s(sWm), s(sW), 12)
    k("s_lshl_b32", s(sy), s(sW), 11)
    for i in range(2):
        k("s_add_u32", s(sO), s(sAb), s(sy))
        if i: k("s_add_u32", s(sO), s(sO), 1024)
        k("s_add_u32", "m0", s(sy), i * 1024)
        k("buffer_load_dwordx4", v(vA), s(sOF, 4), s(sO), mods="offen lds", tag="S0")
    def issue(j):
        for i in range(4):
            k("s_add_u32", "m0", s(sWm), hex(16384 + (j % 4) * 32768 + i * 1024))
            k("s_mov_b32", s(sO), hex(j * 32768))
            k("buffer_load_dwordx4", v(vB[i]), s(sWt, 4), s(sO), mods="offen lds", tag="S%d" % j)
    issue(0); issue(1)
    for t in range(4):
        k("buffer_load_dwordx2", v(xr + 2 * t, 2), v(vX), s(sX, 4), 0, mods="offen offset:%d" % (32 * t), tag="X")
    k.stamp()
    def rd(j, t):
        base = (j % 4) * 32768
        hi = base >= 65536
        for h in range(2):
            k("ds_read_b64_tr_b16", v(bf + (j & 1) * 16 + t * 4 + 2 * h, 2), v(vT[t + (4 if hi else 0)]),
              mods="offset:%d" % (base - (65536 if hi else 0) + h * 16384), tag="f%d_%d" % (j, t))
    def mf(j, t):
        C = v(acc + 4 * t, 4)
        k("v_mfma_f32_16x16x32_bf16", C, v(bf + (j & 1) * 16 + t * 4, 4), v(xa + 4 * j, 4), (C if j else 0))
    def pre(j):
        k.wait_vm("S%d" % j)
        k("s_barrier")
        if j == 0:
            k.stamp()
            for jj in range(16):
                k("ds_read_b128", v(xa + 4 * jj, 4), v(vA), mods="offset:%d" % (jj * 1024), tag="f0_0")
        if j + 2 < 16: issue(j + 2)
    gemm_steps(k, list(range(16)), 4, rd, mf, pre)
    k.stamp()
    k.wait_vm("X")
    hp = o8
    for t in range(4):
        b = [T + 4 + q for q in range(4)]; u0, u1 = T + 8, T + 9
        a = [H + 4 * t + q for q in range(4)]
        k("v_cvt_pk_bf16_f32", v(u0), v(acc + 4 * t), v(acc + 4 * t + 1))
        k("v_cvt_pk_bf16_f32", v(u1), v(acc + 4 * t + 2), v(acc + 4 * t + 3))
        unpack(k, a[0], a[1], u0); unpack(k, a[2], a[3], u1)
        unpack(k, b[0], b[1], xr + 2 * t); unpack(k, b[2], b[3], xr + 2 * t + 1)
        k("v_pk_add_f32", v(a[0], 2), v(a[0], 2), v(b[0], 2))
        k("v_pk_add_f32", v(a[2], 2), v(a[2], 2), v(b[2], 2))
        k("v_cvt_pk_bf16_f32", v(hp + 2 * t), v(a[0]), v(a[1]))
        k("v_cvt_pk_bf16_f32", v(hp + 2 * t + 1), v(a[2]), v(a[3]))
        unpack(k, a[0], a[1], hp + 2 * t); unpack(k, a[2], a[3], hp + 2 * t + 1)
    k("s_lshl_b32", s(sO), s(sW), 11)
    k("s_add_u32", s(sO), s(sO), s(sAb))
    for u in range(2):
        k("buffer_store_dwordx4", v(hp + 4 * u, 4), v(vA), s(sHF, 4), s(sO), mods="offen offset:%d" % (1024 * u))
    ln_rows(k, H, T, vWr, vRd, 0)
    for i in range(0, 16, 2):
        k("v_cvt_pk_bf16_f32", v(T + 18), v(H + i), v(H + i + 1))
        unpack(k, H + i, H + i + 1, T + 18)
    ln_rows(k, H, T, vWr, vRd, 1024)
    yp = bf
    for i in range(8):
        k("v_cvt_pk_bf16_f32", v(yp + i), v(H + 2 * i), v(H + 2 * i + 1))
    for u in range(2):
        k("buffer_store_dwordx4", v(yp + 4 * u, 4), v(vA), s(sYF, 4), s(sO), mods="offen offset:%d" % (1024 * u))
    k.stamp()
    k.dump_stamps(P[10], 2)
    k.label(k.name + "_done")
    k("s_endpgm")
    return k, 512, 0x24000 + 2048

def gen_k3():
    k = Kern("k3_mlp1_kernel")
    P = prologue(k, [4, 5, 6, 10])
    smb, snb = decode_16x16(k)
    sW, vL, vM, vG = lane_ids(k)
    xa = k.valloc(64); acc = k.valloc(28); bf = k.valloc(56); ones = k.valloc(4); T = k.valloc(24); br = k.valloc(14)
    vA = k.valloc(); vB = k.valloc(); vT = [k.valloc() for _ in range(14)]; vBi = k.valloc(); vS = k.valloc()
    t0 = k.valloc(); t1 = k.valloc(); t2 = k.valloc()
    smt = k.salloc(); sx = k.salloc(); sO = k.salloc(); sy = k.salloc()
    k("s_lshl_b32", s(smt), s(smb), 3)
    k("s_add_u32", s(smt), s(smt), s(sW))
    k("v_lshlrev_b32", v(vA), 4, v(vL))
    k("s_mul_i32", s(sy), s(snb), 224)
    sal = k.salloc(); ssh = k.salloc()
    k("s_and_b32", s(sal), s(sy), "0xffffffc0")
    k("s_and_b32", s(ssh), s(sy), 32)
    k("v_lshrrev_b32", v(t0), 4, v(vL))
    k("s_lshl_b32", s(sx), s(sW), 2)
    k("v_add_u32", v(t0), s(sx), v(t0))
    k("v_and_b32", v(t1), 7, v(t0))
    k("v_lshlrev_b32", v(t1), 1, v(t1))
    k("v_and_b32", v(t2), 15, v(vL))
    k("v_xor_b32", v(t2), v(t2), v(t1))
    k("v_mul_u32_u24", v(vB), 3584, v(t0))
    k("v_lshl_add_u32", v(vB), v(t2), 4, v(vB))
    k("v_add_u32", v(vB), s(sal), v(vB))
    k("v_bfe_u32", v(t0), v(vL), 2, 2)
    k("v_lshl_add_u32", v(t0), v(vG), 2, v(t0))
    k("v_and_b32", v(t1), 7, v(t0))
    k("v_lshlrev_b32", v(t1), 1, v(t1))
    k("v_lshlrev_b32", v(t0), 8, v(t0))
    k("v_and_b32", v(t2), 1, v(vL))
    k("v_lshl_add_u32", v(t0), v(t2), 3, v(t0))
    k("v_bfe_u32", v(t2), v(vL), 1, 1)
    k("s_lshr_b32", s(sx), s(ssh), 4)
    k("v_add_u32", v(t2), s(sx), v(t2))
    for t in range(7):
        k("v_add_u32", v(vS), 2 * t, v(t2))
        k("v_xor_b32", v(vS), v(vS), v(t1))
        k("v_lshl_add_u32", v(vT[t]), v(vS), 4, v(t0))
        k("v_add_u32", v(vT[7 + t]), "0x10000", v(vT[t]))
    k("v_lshlrev_b32", v(vBi), 3, v(vG))
    k("v_add_u32", v(vBi), s(sy), v(vBi))
    for i in range(4): k("v_mov_b32", v(ones + i), "0x3f803f80")
    k.wait_smem()
    sW1 = srd(k, P[4], 0, 512 * 1792 * 2)
    sB1 = srd(k, P[5], 0, 1792 * 2)
    sHF = srd(k, P[10], WS_YF, SZ_HF)
    sGF = srd(k, P[10], WS_GF, SZ_GF)
    sAb = k.salloc(); sWm = k.salloc()
    k("s_lshl_b32", s(sAb), s(smt), 14)
    k("s_lshl_b32", s(sWm), s(sW), 10)
    def lda(j):
        k("s_add_u32", s(sO), s(sAb), (j * 1024))
        k("buffer_load_dwordx4", v(xa + 4 * j, 4), v(vA), s(sHF, 4), s(sO), mods="offen", tag="B%d" % (j // 4))
    def dma_b(a):
        def f():
            k("s_add_u32", "m0", s(sWm), hex(a * 8192))
            k("s_mov_b32", s(sO), hex(a * 32 * 3584))
            k("buffer_load_dwordx4", v(vB), s(sW1, 4), s(sO), mods="offen lds", tag="B%d" % (a // 4))
        return f
    vpf = k.valloc(); vpd = k.valloc()
    k.stamp()
    def rd(j, t):
        for h in range(2):
            off = (j & 7) * 8192 + h * 4096
            k("ds_read_b64_tr_b16", v(bf + (j & 1) * 28 + t * 4 + 2 * h, 2), v(vT[t + 7 * (j >> 3)]), mods="offset:%d" % off, tag="f%d_%d" % (j, t))
    def mf(j, t):
        C = v(acc + 4 * t, 4)
        k("v_mfma_f32_16x16x32_bf16", C, v(bf + (j & 1) * 28 + t * 4, 4), v(xa + 4 * j, 4), (C if j else 0))
    def chunk(c):
        for a in range(4 * c, 4 * c + 4): lda(a); dma_b(a)()
    def bias():
        for t in range(7):
            k("buffer_load_dwordx2", v(br + 2 * t, 2), v(vBi), s(sB1, 4), 0, mods="offen offset:%d" % (32 * t), tag="BI")
    chunk(0); chunk(1)
    def pre(j):
        if j & 3 == 0:
            c = j >> 2
            k.wait_vm("B%d" % c)
            k("s_barrier")
            if c == 0: k.stamp()
            if c + 2 < 4: chunk(c + 2)
            if c == 2: bias()
            if c == 3:
                sW2P = srd(k, P[6], 0, 512 * 1792 * 2)
                prefetch(k, sW2P, 512 * 1792 * 2, 8, sW, vL, vpf, vpd)
    gemm_steps(k, list(range(16)), 7, rd, mf, pre)
    k.stamp()
    k.wait_vm("BI")
    import math, struct
    f2h = lambda f: "0x%08x" % struct.unpack("<I", struct.pack("<f", f))[0]
    c1 = 2 * math.sqrt(2 / math.pi) * math.log2(math.e)
    sc1 = k.salloc(); sc2 = k.salloc()
    k("s_mov_b32", s(sc1), f2h(-c1))
    k("s_mov_b32", s(sc2), f2h(-c1 * 0.044715))
    k("s_mul_i32", s(sx), s(smt), 56 * 1024)
    k("s_mul_i32", s(sy), s(snb), 7)
    for t in range(7):
        a = [T + q for q in range(4)]; b = [T + 4 + q for q in range(4)]; u0, u1 = T + 8, T + 9; o = T + 10
        k("v_cvt_pk_bf16_f32", v(u0), v(acc + 4 * t), v(acc + 4 * t + 1))
        k("v_cvt_pk_bf16_f32", v(u1), v(acc + 4 * t + 2), v(acc + 4 * t + 3))
        unpack(k, a[0], a[1], u0); unpack(k, a[2], a[3], u1)
        unpack(k, b[0], b[1], br + 2 * t); unpack(k, b[2], b[3], br + 2 * t + 1)
        for q in range(4): k("v_add_f32", v(a[q]), v(a[q]), v(b[q]))
        k("v_cvt_pk_bf16_f32", v(u0), v(a[0]), v(a[1]))
        k("v_cvt_pk_bf16_f32", v(u1), v(a[2]), v(a[3]))
        unpack(k, a[0], a[1], u0); unpack(k, a[2], a[3], u1)
        for q in range(4): k("v_mul_f32", v(b[q]), v(a[q]), v(a[q]))
        for q in range(4): k("v_mul_f32", v(b[q]), s(sc2), v(b[q]))
        for q in range(4): k("v_add_f32", v(b[q]), s(sc1), v(b[q]))
        for q in range(4): k("v_mul_f32", v(b[q]), v(a[q]), v(b[q]))
        for q in range(4): k("v_exp_f32", v(b[q]), v(b[q]))
        for q in range(4): k("v_add_f32", v(b[q]), 1.0, v(b[q]))
        for q in range(4): k("v_rcp_f32", v(b[q]), v(b[q]))
        for q in range(4): k("v_mul_f32", v(a[q]), v(a[q]), v(b[q]))
        oo = o + 2 * (t & 1)
        k("v_cvt_pk_bf16_f32", v(oo), v(a[0]), v(a[1]))
        k("v_cvt_pk_bf16_f32", v(oo + 1), v(a[2]), v(a[3]))
        k("s_add_u32", s(sO), s(sy), t)
        k("s_lshr_b32", s(sAb), s(sO), 1)
        k("s_lshl_b32", s(sAb), s(sAb), 10)
        k("s_and_b32", s(sO), s(sO), 1)
        k("s_lshl_b32", s(sO), s(sO), 3)
        k("s_add_u32", s(sO), s(sO), s(sAb))
        k("s_add_u32", s(sO), s(sO), s(sx))
        k("buffer_store_dwordx2", v(oo, 2), v(vA), s(sGF, 4), s(sO), mods="offen")
    k.stamp()
    k.dump_stamps(P[10], 3)
    k.label(k.name + "_done")
    k("s_endpgm")
    return k, 512, 131072

def build(path):
    ks = [gen_k1(), gen_k2a(), gen_k2(), gen_k3(), gen_k4()]
    build_list(ks, path)

def build_list(ks, path):
    head = open("cdna_kernels/%s.s.ref" % NAME).read().split("\n")
    hdr = [l for l in head if l.startswith(";") and "@launch" not in l and "Override launch" not in l and "grid=ceil" not in l]
    out = hdr[:]
    for k, threads, lds in ks:
        out.append("; @launch kernel=%s grid=(%d,1,1) block=(%d,1,1) lds=%d" % (k.name, getattr(k, "nwg", 256), threads, lds))
    out.append('.amdgcn_target "amdgcn-amd-amdhsa--gfx950"')
    out.append(".text")
    for k, threads, lds in ks:
        out += [".globl %s" % k.name, ".p2align 8", ".type %s,@function" % k.name, "%s:" % k.name, k.text()]
    out.append('.section .rodata,"a"')
    for k, threads, lds in ks:
        nv = max(k.maxv, 8)
        acc = (nv + 3) // 4 * 4
        out += [".p2align 6", ".amdhsa_kernel %s" % k.name,
                "  .amdhsa_next_free_vgpr %d" % nv,
                "  .amdhsa_next_free_sgpr %d" % max(k.maxs, 16),
                "  .amdhsa_accum_offset %d" % acc,
                "  .amdhsa_group_segment_fixed_size 0",
                "  .amdhsa_kernarg_size 88",
                "  .amdhsa_user_sgpr_count 2",
                "  .amdhsa_user_sgpr_kernarg_segment_ptr 1",
                "  .amdhsa_system_sgpr_workgroup_id_x 1",
                "  .amdhsa_float_denorm_mode_32 3",
                "  .amdhsa_float_denorm_mode_16_64 3",
                ".end_amdhsa_kernel"]
        print(k.name, "vgpr", nv, "sgpr", k.maxs, "insts", len(k.ins))
    open(path, "w").write("\n".join(out) + "\n")

if __name__ == "__main__":
    build(sys.argv[1] if len(sys.argv) > 1 else "cdna_kernels/%s.s" % NAME)
```

```python
import sys, os, math, struct
sys.path.insert(0, "dev")
from asmlib import *
import gen
from gen import unpack, phi_pack, gemm_steps, LOG2E, HI

NAME = gen.NAME
MB = 1 << 20
WS_XN, WS_PART, WS_OF, WS_HF, WS_GF, WS_YF, WS_FLA, WS_PROG = 0, 2 * MB, 3 * MB, 5 * MB, 7 * MB, 15 * MB, 17 * MB, 18 * MB
PROF = bool(int(os.environ.get("PROF", "0")))
FORCE_FB = bool(int(os.environ.get("FORCE_FB", "0")))
f2h = lambda f: "0x%08x" % struct.unpack("<I", struct.pack("<f", f))[0]

rX, rWQ, rWO, rW1, rB1, rW2, rB2, rOUT, rDBG, rWS = 4, 8, 12, 16, 20, 24, 28, 32, 36, 40
BLK = 8192
W1BLK = [8, 9, 10, 11, 4, 5, 6, 0, 1, 2, 3, 7, 16, 17, 18, 19]
W2BLK = [12, 13, 14, 15] + W1BLK
W2BLK = W2BLK + W2BLK[:8]
WOBLK = [12 + n for n in range(8)]
P0SCR = 12 * BLK
KVSCR = 4 * BLK
OSCR = 7 * BLK
P2SCR = 12 * BLK
LSCR = 14 * BLK
LIMIT = 1 << 15

def bf16r(k, d, src):
    k("v_cvt_pk_bf16_f32", v(d), v(src), v(src))
    k("v_lshlrev_b32", v(d), 16, v(d))

def rowln(k, D, T, sOne, reps):
    s0, s1, q0, q1, tm, mbv, nm, P = T, T + 1, T + 2, T + 3, T + 4, T + 5, T + 6, T + 8
    for rep in range(reps):
        k("v_dot2_f32_bf16", v(s0), v(D), s(sOne), 0)
        k("v_dot2_f32_bf16", v(s1), v(D + 1), s(sOne), 0)
        k("v_dot2_f32_bf16", v(q0), v(D), v(D), 0)
        k("v_dot2_f32_bf16", v(q1), v(D + 1), v(D + 1), 0)
        for i in range(2, 8, 2):
            k("v_dot2_f32_bf16", v(s0), v(D + i), s(sOne), v(s0))
            k("v_dot2_f32_bf16", v(s1), v(D + i + 1), s(sOne), v(s1))
            k("v_dot2_f32_bf16", v(q0), v(D + i), v(D + i), v(q0))
            k("v_dot2_f32_bf16", v(q1), v(D + i + 1), v(D + i + 1), v(q1))
        for i in range(8): unpack(k, P + 2 * i, P + 2 * i + 1, D + i)
        k("v_add_f32", v(s0), v(s0), v(s1))
        k("v_add_f32", v(q0), v(q0), v(q1))
        for ctl in ("quad_perm:[1,0,3,2]", "quad_perm:[2,3,0,1]", "row_half_mirror", "row_mirror"):
            k("v_add_f32_dpp", v(s0), v(s0), v(s0), mods=ctl + " row_mask:0xf bank_mask:0xf")
            k("v_add_f32_dpp", v(q0), v(q0), v(q0), mods=ctl + " row_mask:0xf bank_mask:0xf")
        k("v_mov_b32", v(s1), v(s0))
        k("v_mov_b32", v(q1), v(q0))
        k("v_permlane16_swap_b32", v(s0), v(s1))
        k("v_permlane16_swap_b32", v(q0), v(q1))
        k("v_add_f32", v(s0), v(s0), v(s1))
        k("v_add_f32", v(q0), v(q0), v(q1))
        k("v_mul_f32", v(s0), "0x3b000000", v(s0))
        k("v_mul_f32", v(q0), "0x3b000000", v(q0))
        bf16r(k, mbv, s0)
        k("v_mul_f32", v(tm), v(s0), v(s0))
        k("v_sub_f32", v(nm), 0, v(mbv))
        k("v_sub_f32", v(nm + 1), 0, v(mbv))
        k("v_sub_f32", v(q0), v(q0), v(tm))
        k("v_max_f32", v(q0), 0, v(q0))
        bf16r(k, q0, q0)
        for i in range(8): k("v_pk_add_f32", v(P + 2 * i, 2), v(P + 2 * i, 2), v(nm, 2))
        k("v_add_f32", v(q0), "0x3727c5ac", v(q0))
        bf16r(k, q0, q0)
        k("v_sqrt_f32", v(q0), v(q0))
        for i in range(8): k("v_cvt_pk_bf16_f32", v(D + i), v(P + 2 * i), v(P + 2 * i + 1))
        bf16r(k, q0, q0)
        k("v_rcp_f32", v(nm), v(q0))
        k("v_rcp_f32", v(nm + 1), v(q0))
        for i in range(8): unpack(k, P + 2 * i, P + 2 * i + 1, D + i)
        for i in range(8): k("v_pk_mul_f32", v(P + 2 * i, 2), v(P + 2 * i, 2), v(nm, 2))
        for i in range(8): k("v_cvt_pk_bf16_f32", v(D + i), v(P + 2 * i), v(P + 2 * i + 1))

PROFSET = os.environ.get("PROFSET", "m")
def gen_main():
    k = Kern("fused_kernel")
    k.prof = PROF
    k.stnames = []
    def ST(name, grp="m"):
        if set(grp) & set(PROFSET):
            k.stamp(); k.stnames.append(name)
    k.snext = 44
    k.vnext = 6
    N = k.name
    ST("start", "mabcd")
    k("s_cmp_ge_u32", "s2", 256)
    k("s_cbranch_scc1", N + "_done")
    srds = [(rX, 0, 2 * MB), (rWQ, 1, 512 * 1536 * 2), (rWO, 2, 512 * 512 * 2), (rW1, 4, 512 * 1792 * 2), (rB1, 5, 1792 * 2),
            (rW2, 6, 1792 * 512 * 2), (rB2, 7, 1024), (rOUT, 8, 2 * MB), (rDBG, 9, 256), (rWS, 10, 32 * MB)]
    for r, sl, sz in srds:
        k("s_load_dwordx2", s(r, 2), "s[0:1]", sl * 8)
    for r, sl, sz in srds:
        k("s_mov_b32", s(r + 2), hex(sz))
        k("s_mov_b32", s(r + 3), "0x20000")
    S = lambda: k.salloc()
    sW, sX, sR, sMode, sAb, sBad = S(), S(), S(), S(), S(), S()
    sx, sy, sO, sit, sOne = S(), S(), S(), S(), S()
    sB, sHg, smt1, smt2, sNb, sG, sWq, sW1k = S(), S(), S(), S(), S(), S(), S(), S()
    sC = k.salloc(8, 2)
    assert k.snext <= 80
    V = lambda n=1: k.valloc(n)
    vL, vM, vG, vL16, vL4, vT8 = V(), V(), V(), V(), V(), V()
    t0, t1, t2, t3 = V(), V(), V(), V()
    vReg, vZero, vMask = V(), V(), V()
    pq, hr, xr, b2r = V(4), V(4), V(4), V(4)
    ones = V(4)
    br = V(14)
    vBq, vB64, vBw1 = V(), V(), V()
    vXo = V()
    vT = [V() for _ in range(21)]
    T = V(28)
    acc = V(28)
    bf = V(56)
    xa = V(64)
    k("v_lshrrev_b32", v(t0), 6, "v0")
    k("v_readfirstlane_b32", s(sW), v(t0))
    k("s_and_b32", s(sX), "s2", 7)
    k("s_lshr_b32", s(sR), "s2", 3)
    k("v_and_b32", v(vL), 63, "v0")
    k("v_and_b32", v(vM), 15, "v0")
    k("v_bfe_u32", v(vG), "v0", 4, 2)
    k("v_lshlrev_b32", v(vL16), 4, v(vL))
    k("v_lshlrev_b32", v(vL4), 2, v(vL))
    k("v_lshlrev_b32", v(vT8), 3, "v0")
    k("v_mov_b32", v(vZero), 0)
    k("s_mov_b32", s(sOne), "0x3f803f80")
    for i in range(4): k("v_mov_b32", v(ones + i), "0x3f803f80")
    k("s_and_b32", s(sB), s(sR), 1)
    k("s_lshr_b32", s(sHg), s(sR), 1)
    k("s_lshl_b32", s(smt1), s(sX), 4)
    k("s_lshl_b32", s(sx), s(sB), 3)
    k("s_add_u32", s(smt1), s(smt1), s(sx))
    k("s_add_u32", s(smt1), s(smt1), s(sW))
    k("s_lshr_b32", s(sG), s(sW), 2)
    k("s_and_b32", s(sWq), s(sW), 3)
    k("s_lshr_b32", s(sNb), s(sR), 2)
    k("s_and_b32", s(sx), s(sR), 3)
    k("s_lshl_b32", s(sx), s(sx), 2)
    k("s_lshl_b32", s(smt2), s(sX), 4)
    k("s_add_u32", s(smt2), s(smt2), s(sx))
    k("s_add_u32", s(smt2), s(smt2), s(sWq))
    k("s_lshl_b32", s(sW1k), s(sW), 10)
    k("s_mov_b32", s(sMode), 0)
    k("s_mov_b32", s(sAb), 0)
    k.raw("s_getreg_b32 s%d, hwreg(HW_REG_XCC_ID)" % sBad)
    k("s_and_b32", s(sBad), s(sBad), 15)
    k("s_cmp_lg_u32", s(sBad), s(sX))
    k("s_cselect_b32", s(sBad), 1, 0)
    if FORCE_FB:
        k("s_cmp_eq_u32", "s2", 77)
        k("s_cselect_b32", s(sBad), 1, s(sBad))
    k("v_lshrrev_b32", v(t0), 2, v(vL))
    k("v_and_b32", v(t1), 3, v(vL))
    k("v_lshrrev_b32", v(t2), 3, v(t0))
    k("v_lshlrev_b32", v(t2), 1, v(t2))
    k("v_xor_b32", v(t1), v(t1), v(t2))
    k("v_mul_u32_u24", v(vBq), "0xc00", v(t0))
    k("v_lshl_add_u32", v(vBq), v(t1), 4, v(vBq))
    k("s_lshl_b32", s(sx), s(sHg), 6)
    k("v_add_u32", v(vBq), s(sx), v(vBq))
    k("v_lshrrev_b32", v(t0), 3, v(vL))
    k("v_and_b32", v(t1), 7, v(vL))
    k("v_bfe_u32", v(t2), v(t0), 1, 2)
    k("v_lshlrev_b32", v(t2), 1, v(t2))
    k("v_xor_b32", v(t1), v(t1), v(t2))
    k("v_lshlrev_b32", v(vB64), 10, v(t0))
    k("v_lshl_add_u32", v(vB64), v(t1), 4, v(vB64))
    k("s_lshl_b32", s(sx), s(sNb), 7)
    k("v_add_u32", v(vB64), s(sx), v(vB64))
    k("s_mul_i32", s(sy), s(sHg), 224)
    k("s_and_b32", s(sx), s(sy), "0xffffffc0")
    k("v_lshrrev_b32", v(t0), 4, v(vL))
    k("s_lshl_b32", s(sO), s(sW), 2)
    k("v_add_u32", v(t0), s(sO), v(t0))
    k("v_and_b32", v(t1), 7, v(t0))
    k("v_lshlrev_b32", v(t1), 1, v(t1))
    k("v_and_b32", v(t2), 15, v(vL))
    k("v_xor_b32", v(t2), v(t2), v(t1))
    k("v_mul_u32_u24", v(vBw1), 3584, v(t0))
    k("v_lshl_add_u32", v(vBw1), v(t2), 4, v(vBw1))
    k("v_add_u32", v(vBw1), s(sx), v(vBw1))
    k("s_lshl_b32", s(sx), s(smt2), 14)
    k("s_lshl_b32", s(sO), s(sNb), 7)
    k("s_add_u32", s(sx), s(sx), s(sO))
    k("s_lshl_b32", s(sO), s(sG), 6)
    k("s_add_u32", s(sx), s(sx), s(sO))
    k("v_lshlrev_b32", v(vXo), 10, v(vM))
    k("v_lshl_add_u32", v(vXo), v(vG), 3, v(vXo))
    k("v_add_u32", v(vXo), s(sx), v(vXo))
    k.wait_smem()
    for r, sl, sz in srds:
        k("s_and_b32", s(r + 1), s(r + 1), "0xffff")

    lab = [0]
    def L(p):
        lab[0] += 1
        return "%s_%s%d" % (N, p, lab[0])
    def wave0_begin():
        l = L("w0")
        k("s_cmp_lg_u32", s(sW), 0)
        k("s_cbranch_scc1", l)
        return l
    def wave0_end(l):
        k.raw("s_mov_b64 exec, -1")
        k.label(l)

    l = wave0_begin()
    k.raw("s_mov_b64 exec, 1")
    k("s_mul_i32", s(sx), s(sHg), 4352)
    k("s_lshl_b32", s(sy), s(sX), 3)
    k("s_lshl_b32", s(sO), s(sB), 2)
    k("s_add_u32", s(sy), s(sy), s(sO))
    k("s_add_u32", s(sx), s(sx), s(sy))
    k("s_add_u32", s(sx), s(sx), hex(WS_FLA))
    k("buffer_store_dword", v(vZero), v(vZero), s(rWS, 4), s(sx), mods="offen sc1", cond=True)
    l2 = L("z")
    k("s_cmp_lg_u32", s(sR), 0)
    k("s_cbranch_scc1", l2)
    k.raw("s_mov_b64 exec, 0xff")
    k("s_mul_i32", s(sx), s(sX), 4352)
    k("s_add_u32", s(sx), s(sx), hex(WS_PROG))
    k("buffer_store_dword", v(vZero), v(vL4), s(rWS, 4), s(sx), mods="offen", cond=True)
    k.raw("s_mov_b64 exec, 1")
    k.label(l2)
    wave0_end(l)
    def register():
        k("s_lshl_b32", s(sy), s(sBad), 16)
        k("s_add_u32", s(sy), s(sy), 1)
        k("v_mov_b32", v(vReg), s(sy))
        k.raw("s_mov_b64 exec, 1")
        k("buffer_atomic_add", v(vReg), v(vZero), s(rDBG, 4), 0, mods="offen offset:128 sc1", cond=True)
    lg = L("good")
    k("s_cmp_eq_u32", s(sBad), 0)
    k("s_cbranch_scc1", lg)
    l = wave0_begin()
    k.raw("s_waitcnt vmcnt(0)")
    register()
    wave0_end(l)
    k("s_branch", N + "_fallback")
    k.label(lg)
    k.label(N + "_start")
    ST("go", "ma")

    def gbar(i):
        k.raw("s_waitcnt vmcnt(0) lgkmcnt(0)")
        k("s_barrier")
        l = wave0_begin()
        k.raw("buffer_wbl2 sc1")
        k.raw("s_waitcnt vmcnt(0)")
        k.raw("s_mov_b64 exec, 1")
        k("v_mov_b32", v(t0), 1)
        k.raw("buffer_atomic_add v%d, v%d, s[%d:%d], 0 offen offset:%d sc1" % (t0, vZero, rDBG, rDBG + 3, 132 + 4 * i))
        k("s_mov_b32", s(sit), 0)
        lp, lx = L("gp"), L("gx")
        k.label(lp)
        k("s_sleep", 8)
        k("s_add_u32", s(sit), s(sit), 1)
        k("s_cmp_gt_u32", s(sit), LIMIT)
        k("s_cbranch_scc1", lx)
        k.raw("buffer_load_dword v%d, v%d, s[%d:%d], 0 offen offset:%d sc1" % (t0, vZero, rDBG, rDBG + 3, 132 + 4 * i))
        k.raw("s_waitcnt vmcnt(0)")
        k("v_cmp_gt_u32", "vcc", 256, v(t0))
        k.raw("s_nop 4")
        k.raw("s_cbranch_vccnz %s" % lp)
        k.label(lx)
        wave0_end(l)
        k("s_barrier")
        k.raw("buffer_inv sc1")
        k.raw("s_waitcnt vmcnt(0)")

    def publish(srd, off_fn, val, mn, bits, cond_fn=None):
        l = wave0_begin()
        k("s_cmp_lg_u32", s(sMode), 0)
        k("s_cbranch_scc1", l)
        if cond_fn: cond_fn(l)
        off_fn()
        k("v_mov_b32", v(t0), val)
        k.raw("s_mov_b64 exec, 1")
        k(mn, v(t0), v(vZero), s(srd, 4), s(sx), mods=("offen " + bits).strip(), cond=True)
        wave0_end(l)

    def poll(srd, off_fn, nl, mask_fn, stage, checkbad):
        k.raw("s_mov_b64 exec, 0x%x" % ((1 << nl) - 1))
        off_fn()
        mask_fn()
        k("s_mov_b32", s(sit), 0)
        lp, lx, lt = L("p"), L("x"), L("t")
        k.label(lp)
        k.raw("buffer_load_dword v%d, v%d, s[%d:%d], s%d offen sc1" % (t0, vL4, srd, srd + 3, sx))
        k.raw("s_waitcnt vmcnt(0)")
        k("v_or_b32", v(t0), "0x80808080", v(t0))
        k("v_subrev_u32", v(t0), hex(stage * 0x01010101), v(t0))
        k("v_and_b32", v(t0), v(t0), v(vMask))
        k("v_cmp_ne_u32", "vcc", v(t0), v(vMask))
        k.raw("s_nop 4")
        k.raw("s_cbranch_vccz %s" % lx)
        k("s_add_u32", s(sit), s(sit), 1)
        k("s_cmp_gt_u32", s(sit), LIMIT)
        k("s_cbranch_scc1", lt)
        if checkbad:
            k("s_and_b32", s(sy), s(sit), 7)
            k("s_cmp_lg_u32", s(sy), 0)
            k("s_cbranch_scc1", lp)
            k.raw("buffer_load_dword v%d, v%d, s[%d:%d], 0 offen offset:128 sc1" % (t1, vZero, rDBG, rDBG + 3))
            k.raw("s_waitcnt vmcnt(0)")
            k("v_readfirstlane_b32", s(sy), v(t1))
            k("s_lshr_b32", s(sy), s(sy), 16)
            k("s_cmp_eq_u32", s(sy), 0)
            k("s_cbranch_scc1", lp)
        else:
            k("s_branch", lp)
        k.label(lt)
        k("s_mov_b32", s(sAb), 1)
        k.label(lx)

    def wait_sync(idx, poll_fn, cond_fn=None):
        lf, le = L("fb"), L("e")
        k("s_cmp_lg_u32", s(sMode), 0)
        k("s_cbranch_scc1", lf)
        l = wave0_begin()
        if cond_fn: cond_fn(l)
        poll_fn()
        wave0_end(l)
        k("s_barrier")
        k("s_branch", le)
        k.label(lf)
        gbar(idx)
        k.label(le)

    def prog_off():
        k("s_mul_i32", s(sx), s(sX), 4352)
        k("s_add_u32", s(sx), s(sx), hex(WS_PROG))
    def prog_own_off():
        prog_off()
        k("s_add_u32", s(sx), s(sx), s(sR))
    def mask_all(sval_fn):
        def f():
            sval_fn()
            k("v_mov_b32", v(vMask), s(sy))
        return f
    def mask_range(slo_fn, n):
        def f():
            slo_fn()
            k("v_subrev_u32", v(t1), s(sy), v(vL))
            k("v_cmp_gt_u32", "vcc", n, v(t1))
            k("v_mov_b32", v(t1), "0x80808080")
            k("v_cndmask_b32", v(vMask), 0, v(t1), "vcc")
        return f

    def ld_wq(seg, i):
        k("s_mul_i32", s(sO), s(sW), 49152)
        k("s_add_u32", s(sO), s(sO), hex(i * 8 * 49152 + seg * 1024))
        k("s_add_u32", "m0", s(sW1k), hex(seg * 32768 + i * 8192))
        k("buffer_load_dwordx4", v(vBq), s(rWQ, 4), s(sO), mods="offen lds", tag="WQ")
    sWr = {}
    def ld_64(srd, NH, n, blk, tag):
        k("s_mul_i32", s(sO), s(sG), NH * 32768)
        k("s_lshl_b32", s(sy), s(sWq), 13)
        k("s_add_u32", s(sO), s(sO), s(sy))
        k("s_add_u32", s(sO), s(sO), hex(n * 32768))
        k("s_add_u32", "m0", s(sW1k), hex(blk * BLK))
        k("buffer_load_dwordx4", v(vB64), s(srd, 4), s(sO), mods="offen lds", tag=tag)
    def ld_w1(j):
        k("s_add_u32", "m0", s(sW1k), hex(W1BLK[j] * BLK))
        k("s_mov_b32", s(sO), hex(j * 32 * 3584))
        k("buffer_load_dwordx4", v(vBw1), s(rW1, 4), s(sO), mods="offen lds", tag="W1")
    def ld_w2(n):
        ld_64(rW2, 28, n, W2BLK[n], "W2_%d" % n)

    D = xa
    lp0 = L("p0a")
    k("s_cmp_ge_u32", s(sR), 16)
    k("s_cbranch_scc1", lp0)
    k("v_lshrrev_b32", v(t0), 5, v(vL))
    k("v_and_b32", v(t1), 31, v(vL))
    k("v_lshlrev_b32", v(t2), 10, v(t0))
    k("v_lshl_add_u32", v(t2), v(t1), 4, v(t2))
    k("s_lshl_b32", s(sx), s(sX), 4)
    k("s_add_u32", s(sx), s(sx), s(sR))
    k("s_lshl_b32", s(sx), s(sx), 14)
    k("s_lshl_b32", s(sy), s(sW), 11)
    k("s_add_u32", s(sx), s(sx), s(sy))
    k("buffer_load_dwordx4", v(D, 4), v(t2), s(rX, 4), s(sx), mods="offen", tag="X0", cond=True)
    k("buffer_load_dwordx4", v(D + 4, 4), v(t2), s(rX, 4), s(sx), mods="offen offset:512", tag="X0", cond=True)
    k.label(lp0)
    for seg in (1, 2, 0):
        for i in range(4): ld_wq(seg, i)
    for t in range(2):
        k("buffer_load_dwordx2", v(xr + 2 * t, 2), v(vXo), s(rX, 4), 0, mods="offen offset:%d" % (32 * t), tag="XR")
    ST("iss", "a")
    l = wave0_begin()
    k("s_cmp_lg_u32", s(sMode), 0)
    k("s_cbranch_scc1", l)
    k.raw("s_waitcnt vmcnt(14)")
    register()
    wave0_end(l)
    lp0 = L("p0b")
    k("s_cmp_ge_u32", s(sR), 16)
    k("s_cbranch_scc1", lp0)
    k("v_lshrrev_b32", v(t2), 2, v(t1))
    k("v_mul_u32_u24", v(t2), 1056, v(t2))
    k("v_and_b32", v(t3), 3, v(t1))
    k("v_lshl_add_u32", v(t2), v(t3), 8, v(t2))
    k("v_lshl_add_u32", v(t2), v(t0), 4, v(t2))
    k("s_lshl_b32", s(sy), s(sW), 5)
    k("s_add_u32", s(sy), s(sy), P0SCR)
    k("v_add_u32", v(t2), s(sy), v(t2))
    k("s_mul_i32", s(sy), s(sW), 2112)
    k("s_add_u32", s(sy), s(sy), P0SCR)
    k("v_add_u32", v(t3), s(sy), v(vL16))
    k.raw("s_waitcnt vmcnt(14)")
    ST("xw", "a")
    rowln(k, D, T, sOne, 1)
    ST("ln", "a")
    k("ds_write_b128", v(t2), v(D, 4))
    k("ds_write_b128", v(t2), v(D + 4, 4), mods="offset:%d" % (8 * 1056))
    k.wait_lg()
    k("s_barrier")
    k("ds_read_b128", v(D, 4), v(t3))
    k("ds_read_b128", v(D + 4, 4), v(t3), mods="offset:1056")
    k.wait_lg()
    k("buffer_store_dwordx4", v(D, 4), v(vL16), s(rWS, 4), s(sx), mods="offen", tag="XS", cond=True)
    k("buffer_store_dwordx4", v(D + 4, 4), v(vL16), s(rWS, 4), s(sx), mods="offen offset:1024", tag="XS", cond=True)
    ST("xs", "a")
    k.label(lp0)
    k("v_bfe_u32", v(t0), v(vL), 2, 2)
    k("v_and_b32", v(t2), 1, v(vG))
    k("v_lshl_add_u32", v(t0), v(t2), 3, v(t0))
    k("v_lshlrev_b32", v(t0), 6, v(t0))
    k("v_and_b32", v(t1), 1, v(vL))
    k("v_lshl_add_u32", v(t0), v(t1), 3, v(t0))
    k("v_bfe_u32", v(t1), v(vL), 1, 1)
    k("v_lshlrev_b32", v(t2), 1, v(t2))
    k("v_xor_b32", v(t1), v(t1), v(t2))
    k("v_lshrrev_b32", v(t3), 1, v(vG))
    for t in range(2):
        if t: k("v_xor_b32", v(t1), 2, v(t1))
        k("v_lshl_add_u32", v(t2), v(t1), 4, v(t0))
        k("v_lshl_add_u32", v(vT[t]), v(t3), 10, v(t2))
        k("v_add_u32", v(vT[2 + t]), "0x10000", v(vT[t]))
    k.wait_vm()
    ST("allw", "a")
    k("s_barrier")
    ST("bar", "a")
    def s0_off():
        k("s_lshl_b32", s(sx), s(sX), 4)
    def s0_own():
        s0_off()
        k("s_add_u32", s(sx), s(sx), s(sR))
    def only_lo(l):
        k("s_cmp_ge_u32", s(sR), 16)
        k("s_cbranch_scc1", l)
    publish(rDBG, s0_own, 1, "buffer_store_byte", "", only_lo)
    wait_sync(0, lambda: poll(rDBG, s0_off, 4, mask_range(lambda: k("s_lshl_b32", s(sy), s(sB), 1), 2), 1, True))
    ST("S0", "ma")

    k("s_lshl_b32", s(sx), s(smt1), 14)
    for j in range(16):
        if j % 4 == 0 and j: k("s_add_u32", s(sx), s(sx), 4096)
        k("buffer_load_dwordx4", v(xa + 4 * j, 4), v(vL16), s(rWS, 4), s(sx), mods="offen offset:%d" % ((j & 3) * 1024) if j & 3 else "offen", tag="A%d" % j)
    for n in range(8): ld_64(rWO, 8, n, WOBLK[n], "WO")
    def mk_p1(tiles):
        def rd(j, i):
            t6 = tiles[i]
            seg, t = t6 >> 1, t6 & 1
            for h in range(2):
                off = seg * 32768 + j * 2048 + 256 * h
                a = vT[t]
                if off >= 65536: a, off = vT[2 + t], off - 65536
                k("ds_read_b64_tr_b16", v(bf + (j & 1) * 16 + i * 4 + 2 * h, 2), v(a), mods="offset:%d" % off, tag="f%d_%d" % (j, i))
        def mf(j, i):
            t6 = tiles[i]
            W = v(bf + (j & 1) * 16 + i * 4, 4); X = v(xa + 4 * j, 4); C = v(acc + 4 * t6, 4)
            if i == 0: k.wait_vm("A%d" % j)
            a, b = (W, X) if t6 < 2 else (X, W)
            k("v_mfma_f32_16x16x32_bf16", C, a, b, (C if j else 0))
        return rd, mf
    rd, mf = mk_p1([2, 3, 4, 5])
    gemm_steps(k, list(range(16)), 4, rd, mf)
    ST("kvG", "ma")
    pk = bf + 32; vv = bf + 36; kv = bf + 40
    for t in range(2):
        phi_pack(k, acc + 8 + 4 * t, pk + 2 * t, T, sC)
        k("v_cvt_pk_bf16_f32", v(vv + 2 * t), v(acc + 16 + 4 * t), v(acc + 17 + 4 * t))
        k("v_cvt_pk_bf16_f32", v(vv + 2 * t + 1), v(acc + 18 + 4 * t), v(acc + 19 + 4 * t))
    for t in range(2):
        k("v_mfma_f32_16x16x16_bf16", v(kv + 4 * t, 4), v(pk + 2 * t, 2), v(vv + 2 * t, 2), 0)
        k("v_mfma_f32_16x16x16_bf16", v(kv + 8 + 4 * t, 4), v(pk + 2 * t, 2), v(ones, 2), 0)
    k("s_lshl_b32", s(sx), s(sW), 12)
    k("v_add_u32", v(t1), s(sx), v(vL16))
    k("s_barrier")
    for a in range(4):
        k("ds_write_b128", v(t1), v(kv + 4 * a, 4), mods="offset:%d" % (KVSCR + a * 1024))
    k.wait_lg()
    k("s_barrier")
    R = T
    for w in range(8):
        k("ds_read_b64", v(R + 2 * w, 2), v(vT8), mods="offset:%d" % (KVSCR + w * 4096))
    k.wait_lg()
    for w in range(1, 8):
        k("v_pk_add_f32", v(R, 2), v(R, 2), v(R + 2 * w, 2))
    k("s_lshl_b32", s(sx), s(sHg), 4)
    k("s_lshl_b32", s(sy), s(sX), 1)
    k("s_add_u32", s(sx), s(sx), s(sy))
    k("s_add_u32", s(sx), s(sx), s(sB))
    k("s_lshl_b32", s(sx), s(sx), 12)
    k("s_add_u32", s(sx), s(sx), hex(WS_PART))
    k("buffer_store_dwordx2", v(R, 2), v(vT8), s(rWS, 4), s(sx), mods="offen sc1", tag="PS")
    l = wave0_begin()
    k.raw("s_mov_b64 exec, 1")
    k("buffer_load_dword", v(vReg), v(vZero), s(rDBG, 4), 0, mods="offen offset:128 sc1", cond=True)
    wave0_end(l)
    for j in range(4): ld_w1(j)
    rd, mf = mk_p1([0, 1])
    gemm_steps(k, list(range(16)), 2, rd, mf)
    k.wait_vm("PS")
    k("s_barrier")
    def fla_off():
        k("s_mul_i32", s(sx), s(sHg), 4352)
        k("s_add_u32", s(sx), s(sx), hex(WS_FLA))
    def fla_own():
        fla_off()
        k("s_lshl_b32", s(sy), s(sX), 3)
        k("s_add_u32", s(sx), s(sx), s(sy))
        k("s_lshl_b32", s(sy), s(sB), 2)
        k("s_add_u32", s(sx), s(sx), s(sy))
    publish(rWS, fla_own, 1, "buffer_store_dword", "sc1")
    ST("pubA", "m")
    for j in range(4, 7): ld_w1(j)
    for t in range(2):
        phi_pack(k, acc + 4 * t, pq + 2 * t, T, sC)
    def sa_poll():
        k.raw("s_mov_b64 exec, 1")
        k("s_mov_b32", s(sit), 0)
        lp, lx, lt = L("rp"), L("rx"), L("rt")
        k.label(lp)
        k.raw("s_waitcnt vmcnt(0)")
        k("v_readfirstlane_b32", s(sy), v(vReg))
        k("s_lshr_b32", s(sx), s(sy), 16)
        k("s_cmp_lg_u32", s(sx), 0)
        k("s_cbranch_scc1", lt)
        k("s_cmp_eq_u32", s(sy), 256)
        k("s_cbranch_scc1", lx)
        k("s_add_u32", s(sit), s(sit), 1)
        k("s_cmp_gt_u32", s(sit), LIMIT)
        k("s_cbranch_scc1", lt)
        k("s_sleep", 4)
        k.raw("buffer_load_dword v%d, v%d, s[%d:%d], 0 offen offset:128 sc1" % (vReg, vZero, rDBG, rDBG + 3))
        k("s_branch", lp)
        k.label(lt)
        k("s_mov_b32", s(sAb), 1)
        k.label(lx)
        ls = L("sk")
        k("s_cmp_lg_u32", s(sAb), 0)
        k("s_cbranch_scc1", ls)
        poll(rWS, fla_off, 16, mask_all(lambda: k("s_mov_b32", s(sy), "0x80")), 1, False)
        k.label(ls)
        k.raw("s_mov_b64 exec, 1")
        k("v_mov_b32", v(t0), s(sAb))
        k("v_mov_b32", v(t1), OSCR + 2048)
        k.raw("ds_write_b32 v%d, v%d" % (t1, t0))
        k.raw("s_waitcnt lgkmcnt(0)")
    l = wave0_begin()
    k.raw("s_mov_b64 exec, 1")
    k("v_mov_b32", v(t1), OSCR + 2048)
    k.raw("ds_write_b32 v%d, v%d" % (t1, vZero))
    k.raw("s_waitcnt lgkmcnt(0)")
    wave0_end(l)
    wait_sync(1, sa_poll)
    ST("SA", "m")

    k("v_mov_b32", v(t1), OSCR + 2048)
    k("ds_read_b32", v(t3), v(t1), tag="AB")
    pr = xa
    k("s_lshl_b32", s(sx), s(sHg), 16)
    k("s_add_u32", s(sx), s(sx), hex(WS_PART))
    for m in range(16):
        k("buffer_load_dwordx2", v(pr + 2 * m, 2), v(vT8), s(rWS, 4), s(sx), mods="offen sc1", tag="P")
        if m < 15: k("s_add_u32", s(sx), s(sx), 4096)
    for j in range(7, 11): ld_w1(j)
    k.wait_lg()
    k("v_readfirstlane_b32", s(sy), v(t3))
    k("s_cmp_lg_u32", s(sy), 0)
    k("s_cbranch_scc1", N + "_fallback")
    k.wait_vm("P")
    for m in range(1, 16):
        k("v_pk_add_f32", v(pr, 2), v(pr, 2), v(pr + 2 * m, 2))
    k("v_cvt_pk_bf16_f32", v(pr + 2), v(pr), v(pr + 1))
    k("v_lshlrev_b32", v(t0), 2, "v0")
    k("ds_write_b32", v(t0), v(pr + 2), mods="offset:%d" % OSCR)
    k.wait_lg()
    k("s_barrier")
    fr = bf; nd = bf + 8; o = bf + 24
    k("v_lshlrev_b32", v(t0), 3, v(vL))
    for a in range(4):
        k("ds_read_b64", v(fr + 2 * a, 2), v(t0), mods="offset:%d" % (OSCR + a * 512))
    k.wait_lg()
    for h in range(2):
        k("v_mfma_f32_16x16x16_bf16", v(nd + 4 * h, 4), v(fr + 2 * h, 2), v(pq + 2 * h, 2), 0)
        k("v_mfma_f32_16x16x16_bf16", v(nd + 8 + 4 * h, 4), v(fr + 4 + 2 * h, 2), v(pq + 2 * h, 2), 0)
    for h in range(2):
        d = T + 8 * h; a = [d + 2 + q for q in range(4)]; u0, u1 = d + 6, d + 7
        bf16r(k, d, nd + 8 + 4 * h)
        k("v_add_f32", v(d), "0x358637bd", v(d))
        bf16r(k, d, d)
        k("v_rcp_f32", v(d), v(d))
        k("v_cvt_pk_bf16_f32", v(u0), v(nd + 4 * h), v(nd + 4 * h + 1))
        k("v_cvt_pk_bf16_f32", v(u1), v(nd + 4 * h + 2), v(nd + 4 * h + 3))
        unpack(k, a[0], a[1], u0); unpack(k, a[2], a[3], u1)
        for q in range(4): k("v_mul_f32", v(a[q]), v(a[q]), v(d))
        k("v_cvt_pk_bf16_f32", v(o + 2 * h), v(a[0]), v(a[1]))
        k("v_cvt_pk_bf16_f32", v(o + 2 * h + 1), v(a[2]), v(a[3]))
    k("s_lshl_b32", s(sx), s(smt1), 4)
    k("s_add_u32", s(sx), s(sx), s(sHg))
    k("s_lshl_b32", s(sx), s(sx), 10)
    k("s_add_u32", s(sx), s(sx), hex(WS_OF))
    k("buffer_store_dwordx4", v(o, 4), v(vL16), s(rWS, 4), s(sx), mods="offen", tag="OS")
    def tr64():
        k("v_bfe_u32", v(t0), v(vL), 2, 2)
        k("v_lshl_add_u32", v(t1), v(vG), 2, v(t0))
        k("v_bfe_u32", v(t2), v(t1), 1, 2)
        k("v_lshlrev_b32", v(t0), 7, v(t1))
        k("v_and_b32", v(t1), 3, v(vL))
        k("v_lshl_add_u32", v(t0), v(t1), 3, v(t0))
        k("s_lshl_b32", s(sy), s(sG), 12)
        k("v_add_u32", v(t0), s(sy), v(t0))
        for t in range(4):
            k("v_xor_b32", v(t1), t, v(t2))
            k("v_lshl_add_u32", v(vT[t]), v(t1), 5, v(t0))
            k("v_add_u32", v(vT[4 + t]), "0x10000", v(vT[t]))
            k("v_add_u32", v(vT[8 + t]), "0x20000", v(vT[t]))
    tr64()
    k.wait_vm("OS")
    k("s_barrier")
    publish(rWS, prog_own_off, 1, "buffer_store_byte", "")
    def m_half():
        k("s_bfe_u32", s(sy), s(sR), "0x10001")
        k("s_lshl_b32", s(sy), s(sy), 3)
        k("s_lshl_b32", s(sy), "0x00800080", s(sy))
    wait_sync(2, lambda: poll(rWS, prog_off, 8, mask_all(m_half), 1, False))
    ST("SB", "m")

    def g64(NH, blks, abase, AJ, areg, pre=None, nfirst=None):
        k("s_mul_i32", s(sx), s(smt2), AJ * 1024)
        k("s_mul_i32", s(sy), s(sG), NH * 1024)
        k("s_add_u32", s(sx), s(sx), s(sy))
        k("s_add_u32", s(sx), s(sx), hex(abase))
        sA = k.salloc()
        k("s_mov_b32", s(sA), s(sx))
        st = {"n": 0}
        def lda():
            n = st["n"]
            if n >= NH: return
            if n % 4 == 0 and n: k("s_add_u32", s(sA), s(sA), 4096)
            k("buffer_load_dwordx4", v(areg + 4 * n, 4), v(vL16), s(rWS, 4), s(sA), mods=("offen offset:%d" % ((n & 3) * 1024)) if n & 3 else "offen", tag="A%d" % n)
            st["n"] += 1
        for n in range(nfirst or NH): lda()
        def rd(j, t):
            base = blks[j] * BLK
            win = base >> 16
            for h in range(2):
                k("ds_read_b64_tr_b16", v(bf + (j & 1) * 16 + t * 4 + 2 * h, 2), v(vT[4 * win + t]),
                  mods="offset:%d" % (base - (win << 16) + h * 2048), tag="f%d_%d" % (j, t))
        def mf(j, t):
            C = v(acc + 4 * t, 4)
            if t == 0: k.wait_vm("A%d" % j)
            k("v_mfma_f32_16x16x32_bf16", C, v(bf + (j & 1) * 16 + t * 4, 4), v(areg + 4 * j, 4), (C if j else 0))
            if t == 3: lda()
        return rd, mf
    def g64_reduce(scr):
        ln = L("ns")
        k("s_cmp_eq_u32", s(sG), 0)
        k("s_cbranch_scc1", ln)
        for i in range(8): k("v_swap_b32", v(acc + i), v(acc + 8 + i))
        k.label(ln)
        k("s_lshl_b32", s(sy), s(sW), 11)
        k("s_add_u32", s(sy), s(sy), scr)
        k("v_add_u32", v(t0), s(sy), v(vL16))
        k("s_xor_b32", s(sy), s(sW), 4)
        k("s_lshl_b32", s(sy), s(sy), 11)
        k("s_add_u32", s(sy), s(sy), scr)
        k("v_add_u32", v(t1), s(sy), v(vL16))
        k("ds_write_b128", v(t0), v(acc + 8, 4))
        k("ds_write_b128", v(t0), v(acc + 12, 4), mods="offset:1024")
        k.wait_lg()
        k("s_barrier")
        k("ds_read_b128", v(acc + 8, 4), v(t1))
        k("ds_read_b128", v(acc + 12, 4), v(t1), mods="offset:1024")
        k.wait_lg()
        for i in range(0, 8, 2): k("v_pk_add_f32", v(acc + i, 2), v(acc + i, 2), v(acc + 8 + i, 2))

    rd, mf = g64(8, WOBLK, WS_OF, 16, xa)
    ld_w1(11)
    gemm_steps(k, list(range(8)), 4, rd, mf)
    ST("P2G", "m")
    k("s_barrier")
    g64_reduce(P2SCR)
    k.wait_vm("XR")
    for t in range(2):
        a = [T + q for q in range(4)]; b = [T + 4 + q for q in range(4)]; u0, u1 = T + 8, T + 9
        k("v_cvt_pk_bf16_f32", v(u0), v(acc + 4 * t), v(acc + 4 * t + 1))
        k("v_cvt_pk_bf16_f32", v(u1), v(acc + 4 * t + 2), v(acc + 4 * t + 3))
        unpack(k, a[0], a[1], u0); unpack(k, a[2], a[3], u1)
        unpack(k, b[0], b[1], xr + 2 * t); unpack(k, b[2], b[3], xr + 2 * t + 1)
        k("v_pk_add_f32", v(a[0], 2), v(a[0], 2), v(b[0], 2))
        k("v_pk_add_f32", v(a[2], 2), v(a[2], 2), v(b[2], 2))
        k("v_cvt_pk_bf16_f32", v(hr + 2 * t), v(a[0]), v(a[1]))
        k("v_cvt_pk_bf16_f32", v(hr + 2 * t + 1), v(a[2]), v(a[3]))
    k("s_lshl_b32", s(sx), s(smt2), 14)
    k("s_lshl_b32", s(sy), s(sNb), 11)
    k("s_add_u32", s(sx), s(sx), s(sy))
    k("s_lshl_b32", s(sy), s(sG), 10)
    k("s_add_u32", s(sx), s(sx), s(sy))
    k("s_add_u32", s(sx), s(sx), hex(WS_HF))
    k("buffer_store_dwordx4", v(hr, 4), v(vL16), s(rWS, 4), s(sx), mods="offen", tag="HS")
    for j in range(12, 16): ld_w1(j)
    vLg, vLr, vLw = vT[12], vT[13], vT[14]
    k("v_lshrrev_b32", v(t0), 5, v(vL))
    k("v_bfe_u32", v(t1), v(vL), 3, 2)
    k("v_and_b32", v(t2), 7, v(vL))
    k("v_lshlrev_b32", v(vLg), 10, v(t0))
    k("v_lshl_add_u32", v(vLg), v(t1), 8, v(vLg))
    k("v_lshl_add_u32", v(vLg), v(t2), 4, v(vLg))
    k("s_lshl_b32", s(sy), s(sB), 7)
    k("v_add_u32", v(vLg), s(sy), v(vLg))
    k("v_bfe_u32", v(t1), v(vL), 3, 2)
    k("v_mul_u32_u24", v(vLr), 1056, v(t1))
    k("v_bfe_u32", v(t1), v(vL), 2, 1)
    k("v_lshl_add_u32", v(vLr), v(t1), 9, v(vLr))
    k("v_and_b32", v(t1), 3, v(vL))
    k("v_lshl_add_u32", v(vLr), v(t1), 7, v(vLr))
    k("v_lshl_add_u32", v(vLr), v(t0), 4, v(vLr))
    k("s_lshl_b32", s(sy), s(sW), 5)
    k("s_add_u32", s(sy), s(sy), LSCR)
    k("v_add_u32", v(vLr), s(sy), v(vLr))
    k("s_mul_i32", s(sy), s(sW), 1056)
    k("s_add_u32", s(sy), s(sy), LSCR)
    k("v_add_u32", v(vLw), s(sy), v(vL16))
    k.wait_vm("HS")
    k("s_barrier")
    publish(rWS, prog_own_off, 2, "buffer_store_byte", "")
    def m_quarter():
        k("s_lshr_b32", s(sy), s(sR), 3)
        k("s_lshl_b32", s(sy), s(sy), 3)
        k("s_lshl_b32", s(sy), "0x80", s(sy))
    wait_sync(3, lambda: poll(rWS, prog_off, 8, mask_all(m_quarter), 2, False))
    ST("SC", "m")

    sLo = k.salloc()
    k("s_lshl_b32", s(sLo), s(sX), 4)
    k("s_add_u32", s(sLo), s(sLo), s(sHg))
    k("s_lshl_b32", s(sLo), s(sLo), 14)
    k("s_lshl_b32", s(sy), s(sW), 11)
    k("s_add_u32", s(sLo), s(sLo), s(sy))
    k("s_add_u32", s(sx), s(sLo), hex(WS_HF))
    k("s_mul_i32", s(sy), s(sW), 1056)
    k("s_add_u32", "m0", s(sy), LSCR)
    k("buffer_load_dwordx4", v(vLg), s(rWS, 4), s(sx), mods="offen lds", tag="HL")
    k.wait_vm("HL")
    k("s_barrier")
    lw = L("ln")
    k("s_cmp_ge_u32", s(sW), 4)
    k("s_cbranch_scc1", lw)
    k("ds_read_b128", v(D, 4), v(vLr))
    k("ds_read_b128", v(D + 4, 4), v(vLr), mods="offset:%d" % (4 * 1056))
    k.wait_lg()
    rowln(k, D, T, sOne, 2)
    k("ds_write_b128", v(vLr), v(D, 4))
    k("ds_write_b128", v(vLr), v(D + 4, 4), mods="offset:%d" % (4 * 1056))
    k.wait_lg()
    k.label(lw)
    k("s_barrier")
    k("ds_read_b128", v(D, 4), v(vLw))
    k("s_add_u32", s(sx), s(sLo), hex(WS_YF))
    k.wait_lg()
    k("buffer_store_dwordx4", v(D, 4), v(vLg), s(rWS, 4), s(sx), mods="offen", tag="YS")
    k("s_mul_i32", s(sy), s(sHg), 224)
    k("s_bfe_u32", s(sx), s(sy), "0x10005")
    k("s_lshl_b32", s(sx), s(sx), 1)
    k("v_bfe_u32", v(t0), v(vL), 2, 2)
    k("v_lshl_add_u32", v(t0), v(vG), 2, v(t0))
    k("v_and_b32", v(t1), 7, v(t0))
    k("v_lshlrev_b32", v(t1), 1, v(t1))
    k("v_lshlrev_b32", v(t0), 8, v(t0))
    k("v_and_b32", v(t2), 1, v(vL))
    k("v_lshl_add_u32", v(t0), v(t2), 3, v(t0))
    k("v_bfe_u32", v(t2), v(vL), 1, 1)
    k("v_add_u32", v(t2), s(sx), v(t2))
    k("v_lshlrev_b32", v(t3), 3, v(vG))
    k("v_add_u32", v(t3), s(sy), v(t3))
    for t in range(7):
        k("buffer_load_dwordx2", v(br + 2 * t, 2), v(t3), s(rB1, 4), 0, mods="offen offset:%d" % (32 * t), tag="BI")
    for t in range(7):
        k("v_add_u32", v(t3), 2 * t, v(t2))
        k("v_xor_b32", v(t3), v(t3), v(t1))
        k("v_lshl_add_u32", v(vT[t]), v(t3), 4, v(t0))
        k("v_add_u32", v(vT[7 + t]), "0x10000", v(vT[t]))
        k("v_add_u32", v(vT[14 + t]), "0x20000", v(vT[t]))
    k.wait_vm("YS")
    k("s_barrier")
    publish(rWS, prog_own_off, 3, "buffer_store_byte", "")
    wait_sync(4, lambda: poll(rWS, prog_off, 8, mask_range(lambda: k("s_lshl_b32", s(sy), s(sB), 2), 4), 3, False))
    ST("SC2", "m")

    k("s_lshl_b32", s(sx), s(smt1), 14)
    k("s_add_u32", s(sx), s(sx), hex(WS_YF))
    for j in range(16):
        if j % 4 == 0 and j: k("s_add_u32", s(sx), s(sx), 4096)
        k("buffer_load_dwordx4", v(xa + 4 * j, 4), v(vL16), s(rWS, 4), s(sx), mods="offen offset:%d" % ((j & 3) * 1024) if j & 3 else "offen", tag="A%d" % j)
    for n in range(4): ld_w2(n)
    def rd(j, t):
        base = W1BLK[j] * BLK
        win = base >> 16
        for h in range(2):
            k("ds_read_b64_tr_b16", v(bf + (j & 1) * 28 + t * 4 + 2 * h, 2), v(vT[7 * win + t]),
              mods="offset:%d" % (base - (win << 16) + h * 4096), tag="f%d_%d" % (j, t))
    def mf(j, t):
        C = v(acc + 4 * t, 4)
        if t == 0: k.wait_vm("A%d" % j)
        k("v_mfma_f32_16x16x32_bf16", C, v(bf + (j & 1) * 28 + t * 4, 4), v(xa + 4 * j, 4), (C if j else 0))
    gemm_steps(k, list(range(16)), 7, rd, mf)
    ST("P3G", "m")
    k("s_barrier")
    for n in range(4, 20): ld_w2(n)
    c1 = 2 * math.sqrt(2 / math.pi) * math.log2(math.e)
    sc1_, sc2_ = k.salloc(), k.salloc()
    k("s_mov_b32", s(sc1_), f2h(-c1))
    k("s_mov_b32", s(sc2_), f2h(-c1 * 0.044715))
    k("s_mul_i32", s(sx), s(smt1), 56 * 1024)
    k("s_add_u32", s(sx), s(sx), hex(WS_GF))
    k("s_mul_i32", s(sy), s(sHg), 7)
    for t in range(7):
        a = [T + q for q in range(4)]; b = [T + 4 + q for q in range(4)]; u0, u1 = T + 8, T + 9; oo = T + 10 + 2 * (t & 1)
        k("v_cvt_pk_bf16_f32", v(u0), v(acc + 4 * t), v(acc + 4 * t + 1))
        k("v_cvt_pk_bf16_f32", v(u1), v(acc + 4 * t + 2), v(acc + 4 * t + 3))
        unpack(k, a[0], a[1], u0); unpack(k, a[2], a[3], u1)
        unpack(k, b[0], b[1], br + 2 * t); unpack(k, b[2], b[3], br + 2 * t + 1)
        k("v_pk_add_f32", v(a[0], 2), v(a[0], 2), v(b[0], 2))
        k("v_pk_add_f32", v(a[2], 2), v(a[2], 2), v(b[2], 2))
        k("v_cvt_pk_bf16_f32", v(u0), v(a[0]), v(a[1]))
        k("v_cvt_pk_bf16_f32", v(u1), v(a[2]), v(a[3]))
        unpack(k, a[0], a[1], u0); unpack(k, a[2], a[3], u1)
        k("v_pk_mul_f32", v(b[0], 2), v(a[0], 2), v(a[0], 2))
        k("v_pk_mul_f32", v(b[2], 2), v(a[2], 2), v(a[2], 2))
        for q in range(4): k("v_mul_f32", v(b[q]), s(sc2_), v(b[q]))
        for q in range(4): k("v_add_f32", v(b[q]), s(sc1_), v(b[q]))
        k("v_pk_mul_f32", v(b[0], 2), v(a[0], 2), v(b[0], 2))
        k("v_pk_mul_f32", v(b[2], 2), v(a[2], 2), v(b[2], 2))
        for q in range(4): k("v_exp_f32", v(b[q]), v(b[q]))
        for q in range(4): k("v_add_f32", v(b[q]), 1.0, v(b[q]))
        for q in range(4): k("v_rcp_f32", v(b[q]), v(b[q]))
        k("v_pk_mul_f32", v(a[0], 2), v(a[0], 2), v(b[0], 2))
        k("v_pk_mul_f32", v(a[2], 2), v(a[2], 2), v(b[2], 2))
        k("v_cvt_pk_bf16_f32", v(oo), v(a[0]), v(a[1]))
        k("v_cvt_pk_bf16_f32", v(oo + 1), v(a[2]), v(a[3]))
        k("s_add_u32", s(sO), s(sy), t)
        k("s_lshr_b32", s(sit), s(sO), 1)
        k("s_lshl_b32", s(sit), s(sit), 10)
        k("s_and_b32", s(sO), s(sO), 1)
        k("s_lshl_b32", s(sO), s(sO), 3)
        k("s_add_u32", s(sO), s(sO), s(sit))
        k("s_add_u32", s(sO), s(sO), s(sx))
        k("buffer_store_dwordx2", v(oo, 2), v(vL16), s(rWS, 4), s(sO), mods="offen", tag="GS")
    k("s_lshl_b32", s(sy), s(sNb), 7)
    k("s_lshl_b32", s(sO), s(sG), 6)
    k("s_add_u32", s(sy), s(sy), s(sO))
    k("v_lshlrev_b32", v(t3), 3, v(vG))
    k("v_add_u32", v(t3), s(sy), v(t3))
    for t in range(2):
        k("buffer_load_dwordx2", v(b2r + 2 * t, 2), v(t3), s(rB2, 4), 0, mods="offen offset:%d" % (32 * t), tag="B2")
    tr64()
    ST("P3E", "m")
    k.wait_vm("GS")
    k("s_barrier")
    publish(rWS, prog_own_off, 4, "buffer_store_byte", "")
    wait_sync(5, lambda: poll(rWS, prog_off, 8, mask_all(m_half), 4, False))
    ST("SD", "m")

    areg = bf + 32
    assert xa == bf + 56
    NA = 22
    k("s_mul_i32", s(sx), s(smt2), 56 * 1024)
    k("s_mul_i32", s(sy), s(sG), 28 * 1024)
    k("s_add_u32", s(sx), s(sx), s(sy))
    sA = k.salloc()
    k("s_add_u32", s(sA), s(sx), hex(WS_GF))
    st = {"n": 0}
    def lda():
        n = st["n"]
        if n >= 28: return
        if n % 4 == 0 and n: k("s_add_u32", s(sA), s(sA), 4096)
        k("buffer_load_dwordx4", v(areg + 4 * (n % NA), 4), v(vL16), s(rWS, 4), s(sA), mods=("offen offset:%d" % ((n & 3) * 1024)) if n & 3 else "offen", tag="A%d" % n)
        st["n"] += 1
    for n in range(NA): lda()
    def rd(j, t):
        base = W2BLK[j] * BLK
        win = base >> 16
        for h in range(2):
            k("ds_read_b64_tr_b16", v(bf + (j & 1) * 16 + t * 4 + 2 * h, 2), v(vT[4 * win + t]),
              mods="offset:%d" % (base - (win << 16) + h * 2048), tag="f%d_%d" % (j, t))
    def mf(j, t):
        C = v(acc + 4 * t, 4)
        if t == 0: k.wait_vm("A%d" % j)
        k("v_mfma_f32_16x16x32_bf16", C, v(bf + (j & 1) * 16 + t * 4, 4), v(areg + 4 * (j % NA), 4), (C if j else 0))
        if t == 3: lda()
    def pre(j):
        if j in (5, 9):
            k("s_barrier")
            for n in range(j + 15, j + 19): ld_w2(n)
        if j in (20, 24):
            k.wait_vm("W2_%d" % (j + 3))
            k("s_barrier")
    gemm_steps(k, list(range(28)), 4, rd, mf, pre)
    ST("P4G", "m")
    g64_reduce(W2BLK[8] * BLK if W2BLK[9] == W2BLK[8] + 1 else None)
    k.wait_vm("B2")
    hp = bf
    for t in range(2):
        a = [T + q for q in range(4)]; b = [T + 4 + q for q in range(4)]; u0, u1 = T + 8, T + 9
        k("v_cvt_pk_bf16_f32", v(u0), v(acc + 4 * t), v(acc + 4 * t + 1))
        k("v_cvt_pk_bf16_f32", v(u1), v(acc + 4 * t + 2), v(acc + 4 * t + 3))
        unpack(k, a[0], a[1], u0); unpack(k, a[2], a[3], u1)
        unpack(k, b[0], b[1], b2r + 2 * t); unpack(k, b[2], b[3], b2r + 2 * t + 1)
        k("v_pk_add_f32", v(a[0], 2), v(a[0], 2), v(b[0], 2))
        k("v_pk_add_f32", v(a[2], 2), v(a[2], 2), v(b[2], 2))
        k("v_cvt_pk_bf16_f32", v(u0), v(a[0]), v(a[1]))
        k("v_cvt_pk_bf16_f32", v(u1), v(a[2]), v(a[3]))
        unpack(k, a[0], a[1], u0); unpack(k, a[2], a[3], u1)
        unpack(k, b[0], b[1], hr + 2 * t); unpack(k, b[2], b[3], hr + 2 * t + 1)
        k("v_pk_add_f32", v(a[0], 2), v(b[0], 2), v(a[0], 2))
        k("v_pk_add_f32", v(a[2], 2), v(b[2], 2), v(a[2], 2))
        k("v_cvt_pk_bf16_f32", v(hp + 2 * t), v(a[0]), v(a[1]))
        k("v_cvt_pk_bf16_f32", v(hp + 2 * t + 1), v(a[2]), v(a[3]))
        k("buffer_store_dwordx2", v(hp + 2 * t, 2), v(vXo), s(rOUT, 4), 0, mods="offen offset:%d" % (32 * t))
    ST("end", "m")
    k.dump_stamps(rWS, 0)
    k("s_endpgm")
    k.label(N + "_fallback")
    k("s_mov_b32", s(sMode), 1)
    k("s_mov_b32", s(sAb), 0)
    gbar(6)
    k("s_branch", N + "_start")
    k.label(N + "_done")
    k("s_endpgm")
    assert k.snext <= 80, k.snext
    if PROF: print("STAMPS", " ".join(k.stnames))
    return k, 512, 163840

if __name__ == "__main__":
    gen.build_list([gen_main()], sys.argv[1] if len(sys.argv) > 1 else "cdna_kernels/%s.s" % NAME)
```

```python
import sys, os, math, struct
sys.path.insert(0, "dev")
from asmlib import *
import gen
from gen import unpack, phi_pack, LOG2E, HI
from gen2 import bf16r, rowln, f2h

NAME = gen.NAME
MB = 1 << 20
WS_XN, WS_PART, WS_OF, WS_HF, WS_GF, WS_YF, WS_FLA, WS_PROG = 0, 2 * MB, 3 * MB, 5 * MB, 7 * MB, 15 * MB, 17 * MB, 18 * MB
PROF = bool(int(os.environ.get("PROF", "0")))
PROFSET = os.environ.get("PROFSET", "m")

rX, rWQ, rWO, rW1, rB1, rW2, rB2, rOUT, rDBG, rWS = 4, 8, 12, 16, 20, 24, 28, 32, 36, 40
BLK = 8192
W1BLK = [8, 9, 10, 11, 4, 5, 6, 0, 1, 2, 3, 7, 16, 17, 18, 19]
W2BLK = [12, 13, 14, 15] + W1BLK
W2BLK = W2BLK + W2BLK[:8]
WOBLK = [12 + n for n in range(8)]
P0SCR = 12 * BLK
KVSCR = 4 * BLK
OSCR = 7 * BLK
ABW = OSCR + 2048
P2SCR = 12 * BLK
LSCR = 14 * BLK
LIMIT = 1 << 15
SP = int(os.environ.get("SP", "20"))
NQ = 4
PFA = int(os.environ.get("PFA", "6")) * 32 * 3584
WQS = int(os.environ.get("WQS", "0"))
P3H = ()

def gemm1(k, steps, T, rd, mfma, pre=None):
    j0 = steps[0]
    if pre: pre(j0)
    for t in range(T): rd(j0, t)
    for n, j in enumerate(steps):
        nxt = steps[n + 1] if n + 1 < len(steps) else None
        if nxt is not None and pre: pre(nxt)
        for t in range(T):
            k.wait_lg("f%d_%d" % (j, t))
            mfma(j, t)
            if nxt is not None: rd(nxt, t)

def gen_main():
    k = Kern("fused_kernel")
    k.prof = PROF
    k.ndump = 16
    slots = {}
    def ST(name, grp="m"):
        if PROF and set(grp) & set(PROFSET):
            if name not in slots: slots[name] = len(slots)
            k.stamp(slots[name])
    k.snext = 44
    k.vnext = 1
    N = k.name
    if PROF:
        for i in range(16): k("s_mov_b32", s(82 + i), 0)
    ST("start", "mabcd")
    k("s_cmp_ge_u32", "s2", 256)
    k("s_cbranch_scc1", N + "_done")
    srds = [(rX, 0, 2 * MB), (rWQ, 1, 512 * 1536 * 2), (rWO, 2, 512 * 512 * 2), (rW1, 4, 512 * 1792 * 2), (rB1, 5, 1792 * 2),
            (rW2, 6, 1792 * 512 * 2), (rB2, 7, 1024), (rOUT, 8, 2 * MB), (rDBG, 9, 256), (rWS, 10, 32 * MB)]
    for r, sl, sz in srds:
        k("s_load_dwordx2", s(r, 2), "s[0:1]", sl * 8)
    for r, sl, sz in srds:
        k("s_mov_b32", s(r + 2), hex(sz))
        k("s_mov_b32", s(r + 3), "0x20000")
    S = lambda: k.salloc()
    sW, sX, sR, sMode, sAb, sBad = S(), S(), S(), S(), S(), S()
    sx, sy, sO, sit, sOne = S(), S(), S(), S(), S()
    sB, sHg, smt1, smt2, sNb, sG, sWq, sA, sLo = S(), S(), S(), S(), S(), S(), S(), S(), S()
    sC = k.salloc(8, 2)
    sH, sHq, sH1k, sH8k = smt1, smt2, sG, sWq
    V = lambda n=1: k.valloc(n)
    vL, vG, vL16, vT8 = V(), V(), V(), V()
    t0, t1, t2, t3 = V(), V(), V(), V()
    vXo = V()
    ones = V(2)
    pq, hr, xr = V(4), V(4), V(4)
    b2r = xr
    vTb = V(21 + 3)
    vT = [vTb + i for i in range(21)]
    acc = V(28)
    bf = V(28)
    xa = V(64)
    assert k.vnext <= 168, k.vnext
    vBq, vB64, vBw1, vPf, vL4, vZero, vMask, vReg, vDum = [acc + i for i in range(9)]

    lab = [0]
    def L(p):
        lab[0] += 1
        return "%s_%s%d" % (N, p, lab[0])
    bars = {"C": [], "H": []}
    role = ["C"]
    def BAR(name):
        bars[role[0]].append(name)
        k("s_barrier")

    k("v_lshrrev_b32", v(t0), 6, "v0")
    k("v_readfirstlane_b32", s(sW), v(t0))
    k("s_and_b32", s(sX), "s2", 7)
    k("s_lshr_b32", s(sR), "s2", 3)
    k("v_and_b32", v(vL), 63, "v0")
    k("v_bfe_u32", v(vG), "v0", 4, 2)
    k("v_lshlrev_b32", v(vL16), 4, v(vL))
    k("s_and_b32", s(sB), s(sR), 1)
    k("s_lshr_b32", s(sHg), s(sR), 1)
    k("s_lshr_b32", s(sNb), s(sR), 2)
    k("s_mov_b32", s(sMode), 0)
    k("s_mov_b32", s(sAb), 0)
    k.raw("s_getreg_b32 s%d, hwreg(HW_REG_XCC_ID)" % sBad)
    k("s_and_b32", s(sBad), s(sBad), 15)
    k("s_cmp_lg_u32", s(sBad), s(sX))
    k("s_cselect_b32", s(sBad), 1, 0)
    k("s_cmp_ge_u32", s(sW), 8)
    k("s_cbranch_scc1", N + "_helper")

    k("v_lshlrev_b32", v(vT8), 3, "v0")
    k("s_mov_b32", s(sOne), "0x3f803f80")
    for i in range(2): k("v_mov_b32", v(ones + i), "0x3f803f80")
    k("s_lshl_b32", s(smt1), s(sX), 4)
    k("s_lshl_b32", s(sx), s(sB), 3)
    k("s_add_u32", s(smt1), s(smt1), s(sx))
    k("s_add_u32", s(smt1), s(smt1), s(sW))
    k("s_lshr_b32", s(sG), s(sW), 2)
    k("s_and_b32", s(sWq), s(sW), 3)
    k("s_and_b32", s(sx), s(sR), 3)
    k("s_lshl_b32", s(sx), s(sx), 2)
    k("s_lshl_b32", s(smt2), s(sX), 4)
    k("s_add_u32", s(smt2), s(smt2), s(sx))
    k("s_add_u32", s(smt2), s(smt2), s(sWq))
    k("s_lshl_b32", s(sx), s(smt2), 14)
    k("s_lshl_b32", s(sO), s(sNb), 7)
    k("s_add_u32", s(sx), s(sx), s(sO))
    k("s_lshl_b32", s(sO), s(sG), 6)
    k("s_add_u32", s(sx), s(sx), s(sO))
    k("v_and_b32", v(t0), 15, "v0")
    k("v_lshlrev_b32", v(vXo), 10, v(t0))
    k("v_lshl_add_u32", v(vXo), v(vG), 3, v(vXo))
    k("v_add_u32", v(vXo), s(sx), v(vXo))
    k.wait_smem()
    for r, sl, sz in srds:
        k("s_and_b32", s(r + 1), s(r + 1), "0xffff")
    k("s_cmp_lg_u32", s(sBad), 0)
    k("s_cbranch_scc1", N + "_cfallback")
    k.label(N + "_cstart")
    ST("go", "ma")

    D = xa; TL = xa + 8
    lp0 = L("p0a")
    k("s_cmp_ge_u32", s(sR), 16)
    k("s_cbranch_scc1", lp0)
    k("v_lshrrev_b32", v(t0), 5, v(vL))
    k("v_and_b32", v(t1), 31, v(vL))
    k("v_lshlrev_b32", v(t2), 10, v(t0))
    k("v_lshl_add_u32", v(t2), v(t1), 4, v(t2))
    k("s_lshl_b32", s(sx), s(sX), 4)
    k("s_add_u32", s(sx), s(sx), s(sR))
    k("s_lshl_b32", s(sx), s(sx), 14)
    k("s_lshl_b32", s(sy), s(sW), 11)
    k("s_add_u32", s(sx), s(sx), s(sy))
    k("buffer_load_dwordx4", v(D, 4), v(t2), s(rX, 4), s(sx), mods="offen", tag="X0", cond=True)
    k("buffer_load_dwordx4", v(D + 4, 4), v(t2), s(rX, 4), s(sx), mods="offen offset:512", tag="X0", cond=True)
    k("v_lshrrev_b32", v(t2), 2, v(t1))
    k("v_mul_u32_u24", v(t2), 1056, v(t2))
    k("v_and_b32", v(t3), 3, v(t1))
    k("v_lshl_add_u32", v(t2), v(t3), 8, v(t2))
    k("v_lshl_add_u32", v(t2), v(t0), 4, v(t2))
    k("s_lshl_b32", s(sy), s(sW), 5)
    k("s_add_u32", s(sy), s(sy), P0SCR)
    k("v_add_u32", v(t2), s(sy), v(t2))
    k("s_mul_i32", s(sy), s(sW), 2112)
    k("s_add_u32", s(sy), s(sy), P0SCR)
    k("v_add_u32", v(t3), s(sy), v(vL16))
    k.raw("s_waitcnt vmcnt(0)")
    ST("xw", "a")
    rowln(k, D, TL, sOne, 1)
    k("ds_write_b128", v(t2), v(D, 4))
    k("ds_write_b128", v(t2), v(D + 4, 4), mods="offset:%d" % (8 * 1056))
    k.wait_lg()
    k.label(lp0)
    BAR("p")
    lp0 = L("p0b")
    k("s_cmp_ge_u32", s(sR), 16)
    k("s_cbranch_scc1", lp0)
    k("ds_read_b128", v(D, 4), v(t3))
    k("ds_read_b128", v(D + 4, 4), v(t3), mods="offset:1056")
    k.wait_lg()
    k("buffer_store_dwordx4", v(D, 4), v(vL16), s(rWS, 4), s(sx), mods="offen", tag="XS", cond=True)
    k("buffer_store_dwordx4", v(D + 4, 4), v(vL16), s(rWS, 4), s(sx), mods="offen offset:1024", tag="XS", cond=True)
    k.label(lp0)
    k("v_bfe_u32", v(t0), v(vL), 2, 2)
    k("v_and_b32", v(t2), 1, v(vG))
    k("v_lshl_add_u32", v(t0), v(t2), 3, v(t0))
    k("v_lshlrev_b32", v(t0), 6, v(t0))
    k("v_and_b32", v(t1), 1, v(vL))
    k("v_lshl_add_u32", v(t0), v(t1), 3, v(t0))
    k("v_bfe_u32", v(t1), v(vL), 1, 1)
    k("v_lshlrev_b32", v(t2), 1, v(t2))
    k("v_xor_b32", v(t1), v(t1), v(t2))
    k("v_lshrrev_b32", v(t3), 1, v(vG))
    for t in range(2):
        if t: k("v_xor_b32", v(t1), 2, v(t1))
        k("v_lshl_add_u32", v(t2), v(t1), 4, v(t0))
        k("v_lshl_add_u32", v(vT[t]), v(t3), 10, v(t2))
        k("v_add_u32", v(vT[2 + t]), "0x10000", v(vT[t]))
    vBqc = vT[6]
    k("v_lshrrev_b32", v(t0), 2, v(vL))
    k("v_and_b32", v(t1), 3, v(vL))
    k("v_lshrrev_b32", v(t2), 3, v(t0))
    k("v_lshlrev_b32", v(t2), 1, v(t2))
    k("v_xor_b32", v(t1), v(t1), v(t2))
    k("v_mul_u32_u24", v(vBqc), "0xc00", v(t0))
    k("v_lshl_add_u32", v(vBqc), v(t1), 4, v(vBqc))
    k("s_lshl_b32", s(sx), s(sHg), 6)
    k("v_add_u32", v(vBqc), s(sx), v(vBqc))
    k("s_mul_i32", s(sx), s(sW), 49152)
    k("s_lshl_b32", s(sy), s(sW), 10)
    k.wait_vm()
    ST("xs", "a")
    BAR("X0")
    BAR("q")
    for seg in (1, 2, 0):
        for i in range(4):
            k("s_add_u32", s(sO), s(sx), hex(i * 8 * 49152 + seg * 1024))
            k("s_add_u32", "m0", s(sy), hex(seg * 32768 + i * 8192))
            k("buffer_load_dwordx4", v(vBqc), s(rWQ, 4), s(sO), mods="offen lds", tag="WQ%d" % seg)
    for t in range(2):
        k("buffer_load_dwordx2", v(xr + 2 * t, 2), v(vXo), s(rX, 4), 0, mods="offen offset:%d" % (32 * t), tag="XR")
    k("s_lshl_b32", s(sx), s(smt1), 14)
    k.wait_vm("WQ2")
    ST("wq", "a")
    BAR("Y0")
    ST("S0", "ma")

    def lda16():
        for j in range(16):
            if j % 4 == 0 and j: k("s_add_u32", s(sx), s(sx), 4096)
            k("buffer_load_dwordx4", v(xa + 4 * j, 4), v(vL16), s(rWS, 4), s(sx), mods=("offen offset:%d" % ((j & 3) * 1024)) if j & 3 else "offen", tag="A%d" % j)
    lda16()
    BAR("a1")
    def mk_p1(tiles):
        def rd(j, i):
            t6 = tiles[i]
            seg, t = t6 >> 1, t6 & 1
            for h in range(2):
                off = seg * 32768 + j * 2048 + 256 * h
                a = vT[t]
                if off >= 65536: a, off = vT[2 + t], off - 65536
                k("ds_read_b64_tr_b16", v(bf + i * 4 + 2 * h, 2), v(a), mods="offset:%d" % off, tag="f%d_%d" % (j, i))
        def mf(j, i):
            t6 = tiles[i]
            W = v(bf + i * 4, 4); X = v(xa + 4 * j, 4); C = v(acc + 4 * t6, 4)
            if i == 0: k.wait_vm("A%d" % j)
            a, b = (W, X) if t6 < 2 else (X, W)
            k("v_mfma_f32_16x16x32_bf16", C, a, b, (C if j else 0))
        return rd, mf
    rd, mf = mk_p1([2, 3, 4, 5])
    gemm1(k, list(range(16)), 4, rd, mf)
    ST("kvG", "ma")
    T = bf; pk = bf + 12; vv = bf + 16
    kvr = [acc, acc + 4, bf + 20, bf + 24]
    for t in range(2):
        phi_pack(k, acc + 8 + 4 * t, pk + 2 * t, T, sC)
        k("v_cvt_pk_bf16_f32", v(vv + 2 * t), v(acc + 16 + 4 * t), v(acc + 17 + 4 * t))
        k("v_cvt_pk_bf16_f32", v(vv + 2 * t + 1), v(acc + 18 + 4 * t), v(acc + 19 + 4 * t))
    for t in range(2):
        k("v_mfma_f32_16x16x16_bf16", v(kvr[t], 4), v(pk + 2 * t, 2), v(vv + 2 * t, 2), 0)
        k("v_mfma_f32_16x16x16_bf16", v(kvr[2 + t], 4), v(pk + 2 * t, 2), v(ones, 2), 0)
    k("s_lshl_b32", s(sx), s(sW), 12)
    k("v_add_u32", v(t1), s(sx), v(vL16))
    BAR("k")
    for a in range(4):
        k("ds_write_b128", v(t1), v(kvr[a], 4), mods="offset:%d" % (KVSCR + a * 1024))
    k.wait_lg()
    BAR("s")
    R = acc + 8
    for w in range(8):
        k("ds_read_b64", v(R + 2 * w, 2), v(vT8), mods="offset:%d" % (KVSCR + w * 4096))
    k.wait_lg()
    for w in range(1, 8):
        k("v_pk_add_f32", v(R, 2), v(R, 2), v(R + 2 * w, 2))
    k("s_lshl_b32", s(sx), s(sHg), 4)
    k("s_lshl_b32", s(sy), s(sX), 1)
    k("s_add_u32", s(sx), s(sx), s(sy))
    k("s_add_u32", s(sx), s(sx), s(sB))
    k("s_lshl_b32", s(sx), s(sx), 12)
    k("s_add_u32", s(sx), s(sx), hex(WS_PART))
    vPo = vT[5]
    k("v_bfe_u32", v(t0), "v0", 7, 1)
    k("v_lshlrev_b32", v(t0), 6, v(t0))
    k("v_bfe_u32", v(t2), "v0", 5, 2)
    k("v_lshl_add_u32", v(t0), v(t2), 4, v(t0))
    k("v_and_b32", v(t2), 1, "v0")
    k("v_lshl_add_u32", v(t0), v(t2), 3, v(t0))
    k("v_add_u32", v(t0), 2048, v(t0))
    k("s_cmp_ge_u32", s(sW), 4)
    k("s_cselect_b64", "vcc", -1, 0)
    k("v_cndmask_b32", v(vPo), v(vT8), v(t0), "vcc")
    k("s_cselect_b32", s(sy), 3, -1)
    k("s_mov_b32", "exec_lo", s(sy))
    k("s_mov_b32", "exec_hi", s(sy))
    k("buffer_store_dwordx2", v(R, 2), v(vPo), s(rWS, 4), s(sx), mods="offen sc1", tag="PS")
    k.raw("s_mov_b64 exec, -1")
    rd, mf = mk_p1([0, 1])
    def pre_q(j):
        if j == 11:
            k.wait_vm("PS")
            BAR("X1")
            ST("pubA", "m")
    gemm1(k, list(range(16)), 2, rd, mf, pre_q)
    for t in range(2):
        phi_pack(k, acc + 4 * t, pq + 2 * t, T, sC)
    k("v_mov_b32", v(t1), ABW)
    k("s_lshl_b32", s(sx), s(sHg), 16)
    k("s_add_u32", s(sx), s(sx), hex(WS_PART))
    BAR("Y1")
    ST("SA", "m")

    pr = xa
    for m in range(16):
        k("buffer_load_dwordx2", v(pr + 2 * m, 2), v(vPo), s(rWS, 4), s(sx), mods="offen sc1", tag="P")
        if m < 15: k("s_add_u32", s(sx), s(sx), 4096)
    k("ds_read_b32", v(t3), v(t1), tag="AB")
    k.wait_lg()
    k("v_readfirstlane_b32", s(sy), v(t3))
    k("s_cmp_lg_u32", s(sy), 0)
    k("s_cbranch_scc1", N + "_cfallback")
    BAR("a2")
    k.wait_vm("P")
    for m in range(1, 16):
        k("v_pk_add_f32", v(pr, 2), v(pr, 2), v(pr + 2 * m, 2))
    k("v_cvt_pk_bf16_f32", v(pr + 2), v(pr), v(pr + 1))
    k("v_lshlrev_b32", v(t0), 2, "v0")
    k("ds_write_b32", v(t0), v(pr + 2), mods="offset:%d" % OSCR)
    k.wait_lg()
    BAR("o")
    fr = xa + 32; nd = xa + 40; o = xa + 56
    k("v_lshlrev_b32", v(t0), 3, v(vL))
    for a in range(4):
        k("ds_read_b64", v(fr + 2 * a, 2), v(t0), mods="offset:%d" % (OSCR + a * 512))
    k.wait_lg()
    for h in range(2):
        k("v_mfma_f32_16x16x16_bf16", v(nd + 4 * h, 4), v(fr + 2 * h, 2), v(pq + 2 * h, 2), 0)
        k("v_mfma_f32_16x16x16_bf16", v(nd + 8 + 4 * h, 4), v(fr + 4 + 2 * h, 2), v(pq + 2 * h, 2), 0)
    for h in range(2):
        d = T + 8 * h; a = [d + 2 + q for q in range(4)]; u0, u1 = d + 6, d + 7
        bf16r(k, d, nd + 8 + 4 * h)
        k("v_add_f32", v(d), "0x358637bd", v(d))
        bf16r(k, d, d)
        k("v_rcp_f32", v(d), v(d))
        k("v_cvt_pk_bf16_f32", v(u0), v(nd + 4 * h), v(nd + 4 * h + 1))
        k("v_cvt_pk_bf16_f32", v(u1), v(nd + 4 * h + 2), v(nd + 4 * h + 3))
        unpack(k, a[0], a[1], u0); unpack(k, a[2], a[3], u1)
        for q in range(4): k("v_mul_f32", v(a[q]), v(a[q]), v(d))
        k("v_cvt_pk_bf16_f32", v(o + 2 * h), v(a[0]), v(a[1]))
        k("v_cvt_pk_bf16_f32", v(o + 2 * h + 1), v(a[2]), v(a[3]))
    k("s_lshl_b32", s(sx), s(smt1), 4)
    k("s_add_u32", s(sx), s(sx), s(sHg))
    k("s_lshl_b32", s(sx), s(sx), 10)
    k("s_add_u32", s(sx), s(sx), hex(WS_OF))
    k("buffer_store_dwordx4", v(o, 4), v(vL16), s(rWS, 4), s(sx), mods="offen", tag="OS")
    def tr64():
        k("v_bfe_u32", v(t0), v(vL), 2, 2)
        k("v_lshl_add_u32", v(t1), v(vG), 2, v(t0))
        k("v_bfe_u32", v(t2), v(t1), 1, 2)
        k("v_lshlrev_b32", v(t0), 7, v(t1))
        k("v_and_b32", v(t1), 3, v(vL))
        k("v_lshl_add_u32", v(t0), v(t1), 3, v(t0))
        k("s_lshl_b32", s(sy), s(sG), 12)
        k("v_add_u32", v(t0), s(sy), v(t0))
        for t in range(4):
            k("v_xor_b32", v(t1), t, v(t2))
            k("v_lshl_add_u32", v(vT[t]), v(t1), 5, v(t0))
            k("v_add_u32", v(vT[4 + t]), "0x10000", v(vT[t]))
            k("v_add_u32", v(vT[8 + t]), "0x20000", v(vT[t]))
    tr64()
    def a_base(NH, abase, AJ):
        k("s_mul_i32", s(sA), s(smt2), AJ * 1024)
        k("s_mul_i32", s(sy), s(sG), NH * 1024)
        k("s_add_u32", s(sA), s(sA), s(sy))
        k("s_add_u32", s(sA), s(sA), hex(abase))
    a_base(8, WS_OF, 16)
    k.wait_vm("OS")
    BAR("X2")
    BAR("Y2")
    ST("SB", "m")

    def g64(NH, blks, NA):
        st = {"n": 0}
        def lda():
            n = st["n"]
            if n >= NH: return
            if n % 4 == 0 and n: k("s_add_u32", s(sA), s(sA), 4096)
            k("buffer_load_dwordx4", v(xa + 4 * (n % NA), 4), v(vL16), s(rWS, 4), s(sA), mods=("offen offset:%d" % ((n & 3) * 1024)) if n & 3 else "offen", tag="A%d" % n)
            st["n"] += 1
        for n in range(min(NH, NA)): lda()
        def rd(j, t):
            base = blks[j] * BLK
            win = base >> 16
            for h in range(2):
                k("ds_read_b64_tr_b16", v(bf + t * 4 + 2 * h, 2), v(vT[4 * win + t]),
                  mods="offset:%d" % (base - (win << 16) + h * 2048), tag="f%d_%d" % (j, t))
        def mf(j, t):
            C = v(acc + 4 * t, 4)
            if t == 0: k.wait_vm("A%d" % j)
            k("v_mfma_f32_16x16x32_bf16", C, v(bf + t * 4, 4), v(xa + 4 * (j % NA), 4), (C if j else 0))
            if t == 3: lda()
        return rd, mf
    def g64_reduce(scr, bname):
        ln = L("ns")
        k("s_cmp_eq_u32", s(sG), 0)
        k("s_cbranch_scc1", ln)
        for i in range(8): k("v_swap_b32", v(acc + i), v(acc + 8 + i))
        k.label(ln)
        k("s_lshl_b32", s(sy), s(sW), 11)
        k("s_add_u32", s(sy), s(sy), scr)
        k("v_add_u32", v(t0), s(sy), v(vL16))
        k("s_xor_b32", s(sy), s(sW), 4)
        k("s_lshl_b32", s(sy), s(sy), 11)
        k("s_add_u32", s(sy), s(sy), scr)
        k("v_add_u32", v(t1), s(sy), v(vL16))
        k("ds_write_b128", v(t0), v(acc + 8, 4))
        k("ds_write_b128", v(t0), v(acc + 12, 4), mods="offset:1024")
        k.wait_lg()
        BAR(bname)
        k("ds_read_b128", v(acc + 8, 4), v(t1))
        k("ds_read_b128", v(acc + 12, 4), v(t1), mods="offset:1024")
        k.wait_lg()
        for i in range(0, 8, 2): k("v_pk_add_f32", v(acc + i, 2), v(acc + i, 2), v(acc + 8 + i, 2))

    rd, mf = g64(8, WOBLK, 16)
    BAR("a3")
    gemm1(k, list(range(8)), 4, rd, mf)
    ST("P2G", "m")
    BAR("w")
    g64_reduce(P2SCR, "r")
    k.wait_vm("XR")
    for t in range(2):
        a = [T + q for q in range(4)]; b = [T + 4 + q for q in range(4)]; u0, u1 = T + 8, T + 9
        k("v_cvt_pk_bf16_f32", v(u0), v(acc + 4 * t), v(acc + 4 * t + 1))
        k("v_cvt_pk_bf16_f32", v(u1), v(acc + 4 * t + 2), v(acc + 4 * t + 3))
        unpack(k, a[0], a[1], u0); unpack(k, a[2], a[3], u1)
        unpack(k, b[0], b[1], xr + 2 * t); unpack(k, b[2], b[3], xr + 2 * t + 1)
        k("v_pk_add_f32", v(a[0], 2), v(a[0], 2), v(b[0], 2))
        k("v_pk_add_f32", v(a[2], 2), v(a[2], 2), v(b[2], 2))
        k("v_cvt_pk_bf16_f32", v(hr + 2 * t), v(a[0]), v(a[1]))
        k("v_cvt_pk_bf16_f32", v(hr + 2 * t + 1), v(a[2]), v(a[3]))
    k("s_lshl_b32", s(sx), s(smt2), 14)
    k("s_lshl_b32", s(sy), s(sNb), 11)
    k("s_add_u32", s(sx), s(sx), s(sy))
    k("s_lshl_b32", s(sy), s(sG), 10)
    k("s_add_u32", s(sx), s(sx), s(sy))
    k("s_add_u32", s(sx), s(sx), hex(WS_HF))
    k("buffer_store_dwordx4", v(hr, 4), v(vL16), s(rWS, 4), s(sx), mods="offen", tag="HS")
    vLg, vLr, vLw = vT[12], vT[13], vT[14]
    k("v_lshrrev_b32", v(t0), 5, v(vL))
    k("v_bfe_u32", v(t1), v(vL), 3, 2)
    k("v_and_b32", v(t2), 7, v(vL))
    k("v_lshlrev_b32", v(vLg), 10, v(t0))
    k("v_lshl_add_u32", v(vLg), v(t1), 8, v(vLg))
    k("v_lshl_add_u32", v(vLg), v(t2), 4, v(vLg))
    k("s_lshl_b32", s(sy), s(sB), 7)
    k("v_add_u32", v(vLg), s(sy), v(vLg))
    k("v_mul_u32_u24", v(vLr), 1056, v(t1))
    k("v_bfe_u32", v(t1), v(vL), 2, 1)
    k("v_lshl_add_u32", v(vLr), v(t1), 9, v(vLr))
    k("v_and_b32", v(t1), 3, v(vL))
    k("v_lshl_add_u32", v(vLr), v(t1), 7, v(vLr))
    k("v_lshl_add_u32", v(vLr), v(t0), 4, v(vLr))
    k("s_lshl_b32", s(sy), s(sW), 5)
    k("s_add_u32", s(sy), s(sy), LSCR)
    k("v_add_u32", v(vLr), s(sy), v(vLr))
    k("s_mul_i32", s(sy), s(sW), 1056)
    k("s_add_u32", s(sy), s(sy), LSCR)
    k("v_add_u32", v(vLw), s(sy), v(vL16))
    k("s_mov_b32", "m0", s(sy))
    k("s_lshl_b32", s(sLo), s(sX), 4)
    k("s_add_u32", s(sLo), s(sLo), s(sHg))
    k("s_lshl_b32", s(sLo), s(sLo), 14)
    k("s_lshl_b32", s(sy), s(sW), 11)
    k("s_add_u32", s(sLo), s(sLo), s(sy))
    k("s_add_u32", s(sx), s(sLo), hex(WS_HF))
    k.wait_vm("HS")
    BAR("X3")
    BAR("Y3")
    ST("SC", "m")

    k("buffer_load_dwordx4", v(vLg), s(rWS, 4), s(sx), mods="offen lds", tag="HL")
    k.wait_vm("HL")
    BAR("h")
    lw = L("ln")
    k("s_cmp_ge_u32", s(sW), 4)
    k("s_cbranch_scc1", lw)
    k("ds_read_b128", v(D, 4), v(vLr))
    k("ds_read_b128", v(D + 4, 4), v(vLr), mods="offset:%d" % (4 * 1056))
    k.wait_lg()
    rowln(k, D, TL, sOne, 2)
    k("ds_write_b128", v(vLr), v(D, 4))
    k("ds_write_b128", v(vLr), v(D + 4, 4), mods="offset:%d" % (4 * 1056))
    k.wait_lg()
    k.label(lw)
    BAR("l")
    k("ds_read_b128", v(D, 4), v(vLw))
    k("s_add_u32", s(sx), s(sLo), hex(WS_YF))
    k.wait_lg()
    k("buffer_store_dwordx4", v(D, 4), v(vLg), s(rWS, 4), s(sx), mods="offen", tag="YS")
    k("s_mul_i32", s(sy), s(sHg), 224)
    k("s_bfe_u32", s(sx), s(sy), "0x10005")
    k("s_lshl_b32", s(sx), s(sx), 1)
    k("v_bfe_u32", v(t0), v(vL), 2, 2)
    k("v_lshl_add_u32", v(t0), v(vG), 2, v(t0))
    k("v_and_b32", v(t1), 7, v(t0))
    k("v_lshlrev_b32", v(t1), 1, v(t1))
    k("v_lshlrev_b32", v(t0), 8, v(t0))
    k("v_and_b32", v(t2), 1, v(vL))
    k("v_lshl_add_u32", v(t0), v(t2), 3, v(t0))
    k("v_bfe_u32", v(t2), v(vL), 1, 1)
    k("v_add_u32", v(t2), s(sx), v(t2))
    for t in range(7):
        k("v_add_u32", v(t3), 2 * t, v(t2))
        k("v_xor_b32", v(t3), v(t3), v(t1))
        k("v_lshl_add_u32", v(vT[t]), v(t3), 4, v(t0))
        k("v_add_u32", v(vT[7 + t]), "0x10000", v(vT[t]))
        k("v_add_u32", v(vT[14 + t]), "0x20000", v(vT[t]))
    k("v_lshlrev_b32", v(t3), 3, v(vG))
    k("v_add_u32", v(t3), s(sy), v(t3))
    k("s_lshl_b32", s(sx), s(smt1), 14)
    k("s_add_u32", s(sx), s(sx), hex(WS_YF))
    k.wait_vm("YS")
    BAR("X4")
    BAR("Y4")
    ST("SC2", "mc")

    lda16()
    brs = [ones, pq, pq + 2, xr, xr + 2, vTb + 22, vT8]
    assert vT8 % 2 == 0 and t0 == vT8 + 1 and (vTb + 22) % 2 == 0 and ones % 2 == 0
    for t in range(7):
        k("buffer_load_dwordx2", v(brs[t], 2), v(t3), s(rB1, 4), 0, mods="offen offset:%d" % (32 * t), tag="BI")
    ST("p3iss", "c")
    BAR("a4")
    ST("p3a4", "c")
    def rd(j, t):
        base = W1BLK[j] * BLK
        win = base >> 16
        for h in range(2):
            k("ds_read_b64_tr_b16", v(bf + t * 4 + 2 * h, 2), v(vT[7 * win + t]),
              mods="offset:%d" % (base - (win << 16) + h * 4096), tag="f%d_%d" % (j, t))
    def mf(j, t):
        C = v(acc + 4 * t, 4)
        if t == 0: k.wait_vm("A%d" % j)
        k("v_mfma_f32_16x16x32_bf16", C, v(bf + t * 4, 4), v(xa + 4 * j, 4), (C if j else 0))
    def pre3(j):
        if j in P3H: BAR("c%d" % j)
        if j in (2, 4, 6, 8, 10, 12, 14): ST("p3j%d" % j, "c")
    gemm1(k, list(range(16)), 7, rd, mf, pre3)
    ST("P3G", "mc")
    BAR("g")
    c1 = 2 * math.sqrt(2 / math.pi) * math.log2(math.e)
    sc1_, sc2_ = sC, sC + 1
    k("s_mov_b32", s(sc1_), f2h(-c1))
    k("s_mov_b32", s(sc2_), f2h(-c1 * 0.044715))
    k("s_mul_i32", s(sx), s(smt1), 56 * 1024)
    k("s_add_u32", s(sx), s(sx), hex(WS_GF))
    k("s_mul_i32", s(sy), s(sHg), 7)
    k.wait_vm("BI")
    for t in range(7):
        a = [T + q for q in range(4)]; b = [T + 4 + q for q in range(4)]; u0, u1 = T + 8, T + 9; oo = T + 10 + 2 * (t & 1)
        k("v_cvt_pk_bf16_f32", v(u0), v(acc + 4 * t), v(acc + 4 * t + 1))
        k("v_cvt_pk_bf16_f32", v(u1), v(acc + 4 * t + 2), v(acc + 4 * t + 3))
        unpack(k, a[0], a[1], u0); unpack(k, a[2], a[3], u1)
        unpack(k, b[0], b[1], brs[t]); unpack(k, b[2], b[3], brs[t] + 1)
        k("v_pk_add_f32", v(a[0], 2), v(a[0], 2), v(b[0], 2))
        k("v_pk_add_f32", v(a[2], 2), v(a[2], 2), v(b[2], 2))
        k("v_cvt_pk_bf16_f32", v(u0), v(a[0]), v(a[1]))
        k("v_cvt_pk_bf16_f32", v(u1), v(a[2]), v(a[3]))
        unpack(k, a[0], a[1], u0); unpack(k, a[2], a[3], u1)
        k("v_pk_mul_f32", v(b[0], 2), v(a[0], 2), v(a[0], 2))
        k("v_pk_mul_f32", v(b[2], 2), v(a[2], 2), v(a[2], 2))
        for q in range(4): k("v_mul_f32", v(b[q]), s(sc2_), v(b[q]))
        for q in range(4): k("v_add_f32", v(b[q]), s(sc1_), v(b[q]))
        k("v_pk_mul_f32", v(b[0], 2), v(a[0], 2), v(b[0], 2))
        k("v_pk_mul_f32", v(b[2], 2), v(a[2], 2), v(b[2], 2))
        for q in range(4): k("v_exp_f32", v(b[q]), v(b[q]))
        for q in range(4): k("v_add_f32", v(b[q]), 1.0, v(b[q]))
        for q in range(4): k("v_rcp_f32", v(b[q]), v(b[q]))
        k("v_pk_mul_f32", v(a[0], 2), v(a[0], 2), v(b[0], 2))
        k("v_pk_mul_f32", v(a[2], 2), v(a[2], 2), v(b[2], 2))
        k("v_cvt_pk_bf16_f32", v(oo), v(a[0]), v(a[1]))
        k("v_cvt_pk_bf16_f32", v(oo + 1), v(a[2]), v(a[3]))
        k("s_add_u32", s(sO), s(sy), t)
        k("s_lshr_b32", s(sit), s(sO), 1)
        k("s_lshl_b32", s(sit), s(sit), 10)
        k("s_and_b32", s(sO), s(sO), 1)
        k("s_lshl_b32", s(sO), s(sO), 3)
        k("s_add_u32", s(sO), s(sO), s(sit))
        k("s_add_u32", s(sO), s(sO), s(sx))
        k("buffer_store_dwordx2", v(oo, 2), v(vL16), s(rWS, 4), s(sO), mods="offen", tag="GS")
    k("s_lshl_b32", s(sy), s(sNb), 7)
    k("s_lshl_b32", s(sO), s(sG), 6)
    k("s_add_u32", s(sy), s(sy), s(sO))
    k("v_lshlrev_b32", v(t3), 3, v(vG))
    k("v_add_u32", v(t3), s(sy), v(t3))
    for t in range(2):
        k("buffer_load_dwordx2", v(b2r + 2 * t, 2), v(t3), s(rB2, 4), 0, mods="offen offset:%d" % (32 * t), tag="B2")
    tr64()
    a_base(28, WS_GF, 56)
    ST("P3E", "mc")
    k.wait_vm("GS")
    BAR("X5")
    BAR("Y5")
    ST("SD", "mc")

    rd, mf = g64(28, W2BLK, 16)
    BAR("a5")
    def pre4(j):
        if j in (5, 9, 20, 24): BAR("b%d" % j)
    gemm1(k, list(range(28)), 4, rd, mf, pre4)
    ST("P4G", "m")
    assert W2BLK[9] == W2BLK[8] + 1
    g64_reduce(W2BLK[8] * BLK, "r2")
    k.wait_vm("B2")
    hp = T + 12
    for t in range(2):
        a = [T + q for q in range(4)]; b = [T + 4 + q for q in range(4)]; u0, u1 = T + 8, T + 9
        k("v_cvt_pk_bf16_f32", v(u0), v(acc + 4 * t), v(acc + 4 * t + 1))
        k("v_cvt_pk_bf16_f32", v(u1), v(acc + 4 * t + 2), v(acc + 4 * t + 3))
        unpack(k, a[0], a[1], u0); unpack(k, a[2], a[3], u1)
        unpack(k, b[0], b[1], b2r + 2 * t); unpack(k, b[2], b[3], b2r + 2 * t + 1)
        k("v_pk_add_f32", v(a[0], 2), v(a[0], 2), v(b[0], 2))
        k("v_pk_add_f32", v(a[2], 2), v(a[2], 2), v(b[2], 2))
        k("v_cvt_pk_bf16_f32", v(u0), v(a[0]), v(a[1]))
        k("v_cvt_pk_bf16_f32", v(u1), v(a[2]), v(a[3]))
        unpack(k, a[0], a[1], u0); unpack(k, a[2], a[3], u1)
        unpack(k, b[0], b[1], hr + 2 * t); unpack(k, b[2], b[3], hr + 2 * t + 1)
        k("v_pk_add_f32", v(a[0], 2), v(b[0], 2), v(a[0], 2))
        k("v_pk_add_f32", v(a[2], 2), v(b[2], 2), v(a[2], 2))
        k("v_cvt_pk_bf16_f32", v(hp + 2 * t), v(a[0]), v(a[1]))
        k("v_cvt_pk_bf16_f32", v(hp + 2 * t + 1), v(a[2]), v(a[3]))
        k("buffer_store_dwordx2", v(hp + 2 * t, 2), v(vXo), s(rOUT, 4), 0, mods="offen offset:%d" % (32 * t))
    ST("end", "m")
    k.dump_stamps(rWS, 0)
    k("s_endpgm")
    k.label(N + "_cfallback")
    k.raw("s_waitcnt vmcnt(0) lgkmcnt(0)")
    k("s_barrier")
    k("s_barrier")
    k("s_branch", N + "_cstart")

    role[0] = "H"
    k.vmq = []; k.lgq = []
    k.label(N + "_helper")
    k("s_sub_u32", s(sH), s(sW), 8)
    k("s_mul_i32", s(sHq), s(sH), 49152)
    k("s_lshl_b32", s(sH1k), s(sH), 10)
    k("s_lshl_b32", s(sH8k), s(sH), 13)
    k("v_lshlrev_b32", v(vL4), 2, v(vL))
    k("v_lshlrev_b32", v(vPf), 7, v(vL))
    k("v_mov_b32", v(vZero), 0)
    k("v_lshrrev_b32", v(t0), 2, v(vL))
    k("v_and_b32", v(t1), 3, v(vL))
    k("v_lshrrev_b32", v(t2), 3, v(t0))
    k("v_lshlrev_b32", v(t2), 1, v(t2))
    k("v_xor_b32", v(t1), v(t1), v(t2))
    k("v_mul_u32_u24", v(vBq), "0xc00", v(t0))
    k("v_lshl_add_u32", v(vBq), v(t1), 4, v(vBq))
    k("s_lshl_b32", s(sx), s(sHg), 6)
    k("v_add_u32", v(vBq), s(sx), v(vBq))
    k("v_lshrrev_b32", v(t0), 3, v(vL))
    k("v_and_b32", v(t1), 7, v(vL))
    k("v_bfe_u32", v(t2), v(t0), 1, 2)
    k("v_lshlrev_b32", v(t2), 1, v(t2))
    k("v_xor_b32", v(t1), v(t1), v(t2))
    k("v_lshlrev_b32", v(vB64), 10, v(t0))
    k("v_lshl_add_u32", v(vB64), v(t1), 4, v(vB64))
    k("s_lshl_b32", s(sx), s(sNb), 7)
    k("v_add_u32", v(vB64), s(sx), v(vB64))
    k("s_mul_i32", s(sy), s(sHg), 224)
    k("s_and_b32", s(sx), s(sy), "0xffffffc0")
    k("v_lshrrev_b32", v(t0), 4, v(vL))
    k("s_lshl_b32", s(sO), s(sH), 2)
    k("v_add_u32", v(t0), s(sO), v(t0))
    k("v_and_b32", v(t1), 7, v(t0))
    k("v_lshlrev_b32", v(t1), 1, v(t1))
    k("v_and_b32", v(t2), 15, v(vL))
    k("v_xor_b32", v(t2), v(t2), v(t1))
    k("v_mul_u32_u24", v(vBw1), 3584, v(t0))
    k("v_lshl_add_u32", v(vBw1), v(t2), 4, v(vBw1))
    k("v_add_u32", v(vBw1), s(sx), v(vBw1))
    k.wait_smem()
    for r, sl, sz in srds:
        k("s_and_b32", s(r + 1), s(r + 1), "0xffff")

    def h0_begin():
        l = L("h0")
        k("s_cmp_lg_u32", s(sH), 0)
        k("s_cbranch_scc1", l)
        return l
    def h0_end(l):
        k.raw("s_mov_b64 exec, -1")
        k.label(l)
    def ld_wq(seg, i):
        for u in range(2):
            k("s_add_u32", s(sO), s(sHq), hex((8 * i + 4 * u) * 49152 + seg * 1024))
            k("s_add_u32", "m0", s(sH1k), hex(seg * 32768 + i * 8192 + u * 4096))
            k("buffer_load_dwordx4", v(vBq), s(rWQ, 4), s(sO), mods="offen lds", tag="WQ")
    def ld_64(srd, NH, n, blk, tag):
        for u in range(2):
            k("s_add_u32", s(sO), s(sH8k), hex((u * NH + n) * 32768))
            k("s_add_u32", "m0", s(sH1k), hex(blk * BLK + u * 4096))
            k("buffer_load_dwordx4", v(vB64), s(srd, 4), s(sO), mods="offen lds", tag=tag)
    def ld_w1(j):
        for u in range(2):
            k("s_add_u32", "m0", s(sH1k), hex(W1BLK[j] * BLK + u * 4096))
            k("s_mov_b32", s(sO), hex((j * 32 + u * 16) * 3584))
            k("buffer_load_dwordx4", v(vBw1), s(rW1, 4), s(sO), mods="offen lds", tag="W1_%d" % j)
    def ld_w2(n):
        ld_64(rW2, 28, n, W2BLK[n], "W2_%d" % n)
    npf = [0]
    def prefetch(srd, base, total):
        q = total // 128
        assert q % 128 == 0
        k("s_lshl_b32", s(sx), s(sR), 2)
        k("s_add_u32", s(sx), s(sx), s(sH))
        k("s_mul_i32", s(sx), s(sx), q)
        if base: k("s_add_u32", s(sx), s(sx), hex(base))
        lines = q // 128
        while lines > 0:
            n = min(lines, 64)
            if n < 64:
                m = (1 << n) - 1
                k.raw("s_mov_b32 exec_lo, 0x%x" % (m & 0xffffffff))
                k.raw("s_mov_b32 exec_hi, 0x%x" % (m >> 32))
            k("buffer_load_dword", v(vDum), v(vPf), s(srd, 4), s(sx), mods="offen", tag="PF")
            npf[0] += 1
            if n < 64: k.raw("s_mov_b64 exec, -1")
            lines -= n
            if lines: k("s_add_u32", s(sx), s(sx), 8192)

    def gbar(i):
        k.raw("buffer_wbl2 sc1")
        k.raw("s_waitcnt vmcnt(0)")
        k.raw("s_mov_b64 exec, 1")
        k("v_mov_b32", v(t0), 1)
        k.raw("buffer_atomic_add v%d, v%d, s[%d:%d], 0 offen offset:%d sc1" % (t0, vZero, rDBG, rDBG + 3, 132 + 4 * i))
        k("s_mov_b32", s(sit), 0)
        lp, lx = L("gp"), L("gx")
        k.label(lp)
        k("s_sleep", 8)
        k("s_add_u32", s(sit), s(sit), 1)
        k("s_cmp_gt_u32", s(sit), LIMIT)
        k("s_cbranch_scc1", lx)
        k.raw("buffer_load_dword v%d, v%d, s[%d:%d], 0 offen offset:%d sc1" % (t0, vZero, rDBG, rDBG + 3, 132 + 4 * i))
        k.raw("s_waitcnt vmcnt(0)")
        k("v_cmp_gt_u32", "vcc", 256, v(t0))
        k.raw("s_nop 4")
        k.raw("s_cbranch_vccnz %s" % lp)
        k.label(lx)
        k.raw("s_mov_b64 exec, -1")
        k.raw("buffer_inv sc1")
        k.raw("s_waitcnt vmcnt(0)")
    def publish(srd, off_fn, val, mn, bits):
        off_fn()
        k("v_mov_b32", v(t0), val)
        k.raw("s_mov_b64 exec, 1")
        k(mn, v(t0), v(vZero), s(srd, 4), s(sx), mods=("offen " + bits).strip(), cond=True)
    def poll(srd, off_fn, nl, mask_fn, stage, checkbad):
        k.raw("s_mov_b64 exec, 0x%x" % ((1 << nl) - 1))
        off_fn()
        mask_fn()
        k("s_mov_b32", s(sit), 0)
        lp, lx, lt = L("p"), L("x"), L("t")
        k.label(lp)
        k.raw("buffer_load_dword v%d, v%d, s[%d:%d], s%d offen sc1" % (t0, vL4, srd, srd + 3, sx))
        k.raw("s_waitcnt vmcnt(0)")
        k("v_or_b32", v(t0), "0x80808080", v(t0))
        k("v_subrev_u32", v(t0), hex(stage * 0x01010101), v(t0))
        k("v_and_b32", v(t0), v(t0), v(vMask))
        k("v_cmp_ne_u32", "vcc", v(t0), v(vMask))
        k.raw("s_nop 4")
        k.raw("s_cbranch_vccz %s" % lx)
        k("s_add_u32", s(sit), s(sit), 1)
        k("s_cmp_gt_u32", s(sit), LIMIT)
        k("s_cbranch_scc1", lt)
        if checkbad:
            k("s_and_b32", s(sy), s(sit), 7)
            k("s_cmp_lg_u32", s(sy), 0)
            k("s_cbranch_scc1", lp)
            k.raw("buffer_load_dword v%d, v%d, s[%d:%d], 0 offen offset:128 sc1" % (t1, vZero, rDBG, rDBG + 3))
            k.raw("s_waitcnt vmcnt(0)")
            k("v_readfirstlane_b32", s(sy), v(t1))
            k("s_lshr_b32", s(sy), s(sy), 16)
            k("s_cmp_eq_u32", s(sy), 0)
            k("s_cbranch_scc1", lp)
        else:
            k("s_branch", lp)
        k.label(lt)
        k("s_mov_b32", s(sAb), 1)
        k.label(lx)
    def sync(idx, fast_fn):
        l = h0_begin()
        lf = L("fb")
        k("s_cmp_lg_u32", s(sMode), 0)
        k("s_cbranch_scc1", lf)
        fast_fn()
        k.raw("s_mov_b64 exec, -1")
        k("s_branch", l)
        k.label(lf)
        gbar(idx)
        h0_end(l)
    def prog_off():
        k("s_mul_i32", s(sx), s(sX), 4352)
        k("s_add_u32", s(sx), s(sx), hex(WS_PROG))
    def prog_own_off():
        prog_off()
        k("s_add_u32", s(sx), s(sx), s(sR))
    def mask_all(sval_fn):
        def f():
            sval_fn()
            k("v_mov_b32", v(vMask), s(sy))
        return f
    def mask_range(slo_fn, n):
        def f():
            slo_fn()
            k("v_subrev_u32", v(t1), s(sy), v(vL))
            k("v_cmp_gt_u32", "vcc", n, v(t1))
            k("v_mov_b32", v(t1), "0x80808080")
            k("v_cndmask_b32", v(vMask), 0, v(t1), "vcc")
        return f
    def fla_off():
        k("s_mul_i32", s(sx), s(sHg), 4352)
        k("s_add_u32", s(sx), s(sx), hex(WS_FLA))
    def fla_own():
        fla_off()
        k("s_lshl_b32", s(sy), s(sX), 3)
        k("s_add_u32", s(sx), s(sx), s(sy))
        k("s_lshl_b32", s(sy), s(sB), 2)
        k("s_add_u32", s(sx), s(sx), s(sy))

    l = h0_begin()
    k.raw("s_mov_b64 exec, 1")
    fla_own()
    k("buffer_store_dword", v(vZero), v(vZero), s(rWS, 4), s(sx), mods="offen sc1", cond=True)
    l2 = L("z")
    k("s_cmp_lg_u32", s(sR), 0)
    k("s_cbranch_scc1", l2)
    k.raw("s_mov_b64 exec, 0xff")
    prog_off()
    k("buffer_store_dword", v(vZero), v(vL4), s(rWS, 4), s(sx), mods="offen", cond=True)
    k.raw("s_mov_b64 exec, 1")
    k.label(l2)
    h0_end(l)
    def register():
        l = h0_begin()
        k("s_lshl_b32", s(sy), s(sBad), 16)
        k("s_add_u32", s(sy), s(sy), 1)
        k("v_mov_b32", v(vReg), s(sy))
        k.raw("s_mov_b64 exec, 1")
        k.raw("s_waitcnt vmcnt(0)")
        k("buffer_atomic_add", v(vReg), v(vZero), s(rDBG, 4), 0, mods="offen offset:128 sc1", cond=True)
        h0_end(l)
    sP = {}
    def spf_setup(name, srd, total):
        p = k.salloc(2)
        q = total // 128
        k("s_lshl_b32", s(sx), s(sR), 2)
        k("s_add_u32", s(sx), s(sx), s(sH))
        k("s_mul_i32", s(sx), s(sx), q // NQ)
        k("s_add_u32", s(p), s(srd), s(sx))
        k("s_addc_u32", s(p + 1), s(srd + 1), 0)
        sP[name] = [p, 0, q // 128, total // NQ, q // NQ // 128]
    spf_list = []
    def spf(n, only=None):
        while n > 0:
            cur = [x for x in (only or ("wo", "w1", "w2")) if sP[x][1] < sP[x][2]]
            if not cur: return
            e = sP[cur[0]]
            off = (e[1] // e[4]) * e[3] + (e[1] % e[4]) * 128
            if off < (1 << 20):
                k.raw("s_load_dword s%d, s[%d:%d], 0x%x" % (sC + (e[1] & 3), e[0], e[0] + 1, off))
            else:
                k.raw("s_mov_b32 s%d, 0x%x" % (sC + 4 + (e[1] & 3), off))
                k.raw("s_load_dword s%d, s[%d:%d], s%d" % (sC + (e[1] & 3), e[0], e[0] + 1, sC + 4 + (e[1] & 3)))
            e[1] += 1; n -= 1
    NVQ = 2 * 32 * 8192 * 4 // 2
    spf_setup("wo", rWO, 512 * 512 * 2)
    spf_setup("w1", rW1, 512 * 1792 * 2)
    spf_setup("w2", rW2, 512 * 1792 * 2)
    spf_setup("wq", rWQ, 512 * 1024)
    k("s_add_u32", s(sP["wq"][0]), s(sP["wq"][0]), hex(MB))
    k("s_addc_u32", s(sP["wq"][0] + 1), s(sP["wq"][0] + 1), 0)
    lg = L("good")
    k("s_cmp_eq_u32", s(sBad), 0)
    k("s_cbranch_scc1", lg)
    register()
    k("s_branch", N + "_hfallback")
    k.label(lg)
    k.label(N + "_hstart")
    k("s_lshl_b32", s(sx), s(sR), 2)
    k("s_add_u32", s(sx), s(sx), s(sH))
    if WQS:
        k("s_lshl_b32", s(sx), s(sx), 13)
        k("buffer_load_dword", v(vDum), v(vPf), s(rWQ, 4), s(sx), mods="offen", tag="PF")
        spf(32, ("wq",))
    else:
        k("s_mul_i32", s(sx), s(sx), 12288)
        k("buffer_load_dword", v(vDum), v(vPf), s(rWQ, 4), s(sx), mods="offen", tag="PF")
        k.raw("s_mov_b32 exec_hi, 0")
        k("s_add_u32", s(sx), s(sx), 8192)
        k("buffer_load_dword", v(vDum), v(vPf), s(rWQ, 4), s(sx), mods="offen", tag="PF")
        k.raw("s_mov_b64 exec, -1")
    BAR("p")
    BAR("X0")
    def s0_off():
        k("s_lshl_b32", s(sx), s(sX), 4)
    l = h0_begin()
    k("s_cmp_lg_u32", s(sMode), 0)
    k("s_cbranch_scc1", l)
    k("s_cmp_ge_u32", s(sR), 16)
    k("s_cbranch_scc1", l)
    def own():
        s0_off()
        k("s_add_u32", s(sx), s(sx), s(sR))
    publish(rDBG, own, 1, "buffer_store_byte", "")
    h0_end(l)
    k.wait_vm("PF")
    ST("hpf", "a")
    BAR("q")
    sync(0, lambda: poll(rDBG, s0_off, 4, mask_range(lambda: k("s_lshl_b32", s(sy), s(sB), 1), 2), 1, True))
    ST("hs0", "a")
    BAR("Y0")
    lm = L("nr")
    k("s_cmp_lg_u32", s(sMode), 0)
    k("s_cbranch_scc1", lm)
    register()
    k.label(lm)
    BAR("a1")
    npf[0] = 0
    prefetch(rWO, 0, 512 * 512 * 2)
    prefetch(rW1, 0, PFA)
    BAR("k")
    BAR("s")
    l = h0_begin()
    k.raw("s_mov_b64 exec, 1")
    k("buffer_load_dword", v(vReg), v(vZero), s(rDBG, 4), 0, mods="offen offset:128 sc1", cond=True)
    h0_end(l)
    BAR("X1")
    l = h0_begin()
    k("s_cmp_lg_u32", s(sMode), 0)
    k("s_cbranch_scc1", l)
    publish(rWS, fla_own, 1, "buffer_store_dword", "sc1")
    h0_end(l)
    for n in range(8): ld_64(rWO, 8, n, WOBLK[n], "WO")
    prefetch(rW1, PFA, 512 * 1792 * 2 - PFA)
    def sa_fast():
        k.raw("s_mov_b64 exec, 1")
        k("s_mov_b32", s(sit), 0)
        lp, lx, lt = L("rp"), L("rx"), L("rt")
        k.label(lp)
        k.raw("s_waitcnt vmcnt(0)")
        k("v_readfirstlane_b32", s(sy), v(vReg))
        k("s_lshr_b32", s(sx), s(sy), 16)
        k("s_cmp_lg_u32", s(sx), 0)
        k("s_cbranch_scc1", lt)
        k("s_cmp_eq_u32", s(sy), 256)
        k("s_cbranch_scc1", lx)
        k("s_add_u32", s(sit), s(sit), 1)
        k("s_cmp_gt_u32", s(sit), LIMIT)
        k("s_cbranch_scc1", lt)
        k("s_sleep", 4)
        k.raw("buffer_load_dword v%d, v%d, s[%d:%d], 0 offen offset:128 sc1" % (vReg, vZero, rDBG, rDBG + 3))
        k("s_branch", lp)
        k.label(lt)
        k("s_mov_b32", s(sAb), 1)
        k.label(lx)
        ls = L("sk")
        k("s_cmp_lg_u32", s(sAb), 0)
        k("s_cbranch_scc1", ls)
        poll(rWS, fla_off, 16, mask_all(lambda: k("s_mov_b32", s(sy), "0x80")), 1, False)
        k.label(ls)
    spf(SP)
    sync(1, sa_fast)
    l = h0_begin()
    k.raw("s_mov_b64 exec, 1")
    k("v_mov_b32", v(t0), s(sAb))
    k("v_mov_b32", v(t1), ABW)
    k.raw("ds_write_b32 v%d, v%d" % (t1, t0))
    k.raw("s_waitcnt lgkmcnt(0)")
    h0_end(l)
    BAR("Y1")
    k("v_mov_b32", v(t1), ABW)
    k("ds_read_b32", v(t3), v(t1))
    k.wait_lg()
    k("v_readfirstlane_b32", s(sy), v(t3))
    k("s_cmp_lg_u32", s(sy), 0)
    k("s_cbranch_scc1", N + "_hfallback")
    BAR("a2")
    for j in range(6): ld_w1(j)
    spf(SP)
    BAR("o")
    k.wait_vm("WO")
    BAR("X2")
    def m_half():
        k("s_bfe_u32", s(sy), s(sR), "0x10001")
        k("s_lshl_b32", s(sy), s(sy), 3)
        k("s_lshl_b32", s(sy), "0x00800080", s(sy))
    def lsync(idx, stage, mask_fn):
        def f():
            publish(rWS, prog_own_off, stage, "buffer_store_byte", "")
            poll(rWS, prog_off, 8, mask_fn, stage, False)
        sync(idx, f)
    spf(SP)
    lsync(2, 1, mask_all(m_half))
    BAR("Y2")
    BAR("a3")
    for j in range(6, 12): ld_w1(j)
    spf(SP)
    BAR("w")
    BAR("r")
    BAR("X3")
    def m_quarter():
        k("s_lshr_b32", s(sy), s(sR), 3)
        k("s_lshl_b32", s(sy), s(sy), 3)
        k("s_lshl_b32", s(sy), "0x80", s(sy))
    spf(SP)
    lsync(3, 2, mask_all(m_quarter))
    BAR("Y3")
    BAR("h")
    for j in range(12, 16): ld_w1(j)
    spf(SP)
    BAR("l")
    k.wait_vm("W1_15")
    BAR("X4")
    spf(SP)
    lsync(4, 3, mask_range(lambda: k("s_lshl_b32", s(sy), s(sB), 2), 4))
    BAR("Y4")
    BAR("a4")
    prefetch(rW2, 0, 512 * 1792 * 2)
    for n in range(4): ld_w2(n)
    BAR("g")
    for n in range(4, 20): ld_w2(n)
    k.wait_vm("W2_19")
    ST("hw2", "m")
    BAR("X5")
    lsync(5, 4, mask_all(m_half))
    BAR("Y5")
    BAR("a5")
    BAR("b5")
    for n in range(20, 24): ld_w2(n)
    BAR("b9")
    for n in range(24, 28): ld_w2(n)
    for j in (20, 24):
        k.wait_vm("W2_%d" % (j + 3))
        BAR("b%d" % j)
    BAR("r2")
    k.dump_stamps(rWS, 0)
    k("s_endpgm")
    k.label(N + "_hfallback")
    k("s_mov_b32", s(sMode), 1)
    k("s_mov_b32", s(sAb), 0)
    k.raw("s_waitcnt vmcnt(0) lgkmcnt(0)")
    k("s_barrier")
    l = h0_begin()
    gbar(6)
    h0_end(l)
    k("s_barrier")
    k("s_branch", N + "_hstart")
    k.label(N + "_done")
    k("s_endpgm")
    assert bars["C"] == bars["H"], (bars["C"], bars["H"])
    assert k.snext <= 80, k.snext
    if PROF: print("STAMPS", " ".join(sorted(slots, key=slots.get)))
    return k, 768, 163840

if __name__ == "__main__":
    gen.build_list([gen_main()], sys.argv[1] if len(sys.argv) > 1 else "cdna_kernels/%s.s" % NAME)
```

```python
import sys, os, math, struct
sys.path.insert(0, "dev")
from asmlib import *
import gen
from gen import unpack, phi_pack, LOG2E, HI
from gen2 import bf16r, rowln, f2h

NAME = gen.NAME
MB = 1 << 20
WS_PART, WS_FLA = 16 * MB, 17 * MB
R2, HALF, PROGO = 256 * 1024, 448 * 1024, 1152 * 1024
PROF = bool(int(os.environ.get("PROF", "0")))
PROFSET = os.environ.get("PROFSET", "m")

rX, rWQ, rWO, rW1, rB1, rW2, rB2, rOUT, rDBG, rWS = 4, 8, 12, 16, 20, 24, 28, 32, 36, 40
BLK = 8192
W1BLK = [8, 9, 10, 11, 4, 5, 6, 0, 1, 2, 3, 7, 16, 17, 18, 19]
W2BLK = [12, 13, 14, 15] + W1BLK
W2BLK = W2BLK + W2BLK[:8]
WOBLK = [12 + n for n in range(8)]
P0SCR = 12 * BLK
KVSCR = 4 * BLK
OSCR = 7 * BLK
ABW = OSCR + 2048
P2SCR = 12 * BLK
LSCR = 14 * BLK
LIMIT = 1 << 15
SP = int(os.environ.get("SP", "20"))
NQ = 4
PFA = int(os.environ.get("PFA", "6")) * 32 * 3584
GFP = os.environ.get("GFP", "a1")
P3H = ()

def gemm1(k, steps, T, rd, mfma, pre=None):
    j0 = steps[0]
    if pre: pre(j0)
    for t in range(T): rd(j0, t)
    for n, j in enumerate(steps):
        nxt = steps[n + 1] if n + 1 < len(steps) else None
        if nxt is not None and pre: pre(nxt)
        for t in range(T):
            k.wait_lg("f%d_%d" % (j, t))
            mfma(j, t)
            if nxt is not None: rd(nxt, t)

def gen_main():
    k = Kern("fused_kernel")
    k.prof = PROF
    k.ndump = 16
    slots = {}
    def ST(name, grp="m"):
        if PROF and set(grp) & set(PROFSET):
            if name not in slots: slots[name] = len(slots)
            k.stamp(slots[name])
    k.snext = 44
    k.vnext = 1
    N = k.name
    if PROF:
        for i in range(16): k("s_mov_b32", s(82 + i), 0)
    ST("start", "mabcd")
    k("s_cmp_ge_u32", "s2", 256)
    k("s_cbranch_scc1", N + "_done")
    srds = [(rX, 0, 2 * MB), (rWQ, 1, 512 * 1536 * 2), (rWO, 2, 512 * 512 * 2), (rW1, 4, 512 * 1792 * 2), (rB1, 5, 1792 * 2),
            (rW2, 6, 1792 * 512 * 2), (rB2, 7, 1024), (rOUT, 8, 2 * MB), (rDBG, 9, 256), (rWS, 10, 32 * MB)]
    for r, sl, sz in srds:
        k("s_load_dwordx2", s(r, 2), "s[0:1]", sl * 8)
    for r, sl, sz in srds:
        k("s_mov_b32", s(r + 2), hex(sz))
        k("s_mov_b32", s(r + 3), "0x20000")
    S = lambda: k.salloc()
    sW, sX, sR, sMode, sAb, sBad = S(), S(), S(), S(), S(), S()
    sx, sy, sO, sit, sOne = S(), S(), S(), S(), S()
    sB, sHg, smt1, smt2, sNb, sG, sWq, sA, sLo = S(), S(), S(), S(), S(), S(), S(), S(), S()
    sC = k.salloc(8, 2)
    sT1, sT2 = S(), S()
    sH, sHq, sH1k, sH8k = smt1, smt2, sG, sWq
    V = lambda n=1: k.valloc(n)
    vL, vG, vL16, vT8 = V(), V(), V(), V()
    t0, t1, t2, t3 = V(), V(), V(), V()
    vXo = V()
    ones = V(2)
    pq, hr, xr = V(4), V(4), V(4)
    b2r = xr
    vTb = V(21 + 3)
    vT = [vTb + i for i in range(21)]
    acc = V(28)
    bf = V(28)
    xa = V(64)
    assert k.vnext <= 168, k.vnext
    vBq, vB64, vBw1, vPf, vL4, vZero, vMask, vReg, vDum = [acc + i for i in range(9)]

    lab = [0]
    def L(p):
        lab[0] += 1
        return "%s_%s%d" % (N, p, lab[0])
    bars = {"C": [], "H": []}
    role = ["C"]
    def BAR(name):
        bars[role[0]].append(name)
        k("s_barrier")

    k("v_lshrrev_b32", v(t0), 6, "v0")
    k("v_readfirstlane_b32", s(sW), v(t0))
    k("s_and_b32", s(sX), "s2", 7)
    k("s_lshr_b32", s(sR), "s2", 3)
    k("v_and_b32", v(vL), 63, "v0")
    k("v_bfe_u32", v(vG), "v0", 4, 2)
    k("v_lshlrev_b32", v(vL16), 4, v(vL))
    k("s_and_b32", s(sB), s(sR), 1)
    k("s_lshr_b32", s(sHg), s(sR), 1)
    k("s_lshr_b32", s(sNb), s(sR), 2)
    k("s_mov_b32", s(sMode), 0)
    k("s_mov_b32", s(sAb), 0)
    k("s_mul_i32", s(sT1), s(sX), hex(2 * MB - 256 * 1024))
    k("s_mul_i32", s(sT2), s(sX), hex(2 * MB - 896 * 1024))
    k("s_add_u32", s(sT2), s(sT2), hex(R2))
    k.raw("s_getreg_b32 s%d, hwreg(HW_REG_XCC_ID)" % sBad)
    k("s_and_b32", s(sBad), s(sBad), 15)
    k("s_cmp_lg_u32", s(sBad), s(sX))
    k("s_cselect_b32", s(sBad), 1, 0)
    k("s_cmp_ge_u32", s(sW), 8)
    k("s_cbranch_scc1", N + "_helper")

    k("v_lshlrev_b32", v(vT8), 3, "v0")
    k("s_mov_b32", s(sOne), "0x3f803f80")
    for i in range(2): k("v_mov_b32", v(ones + i), "0x3f803f80")
    k("s_lshl_b32", s(smt1), s(sX), 4)
    k("s_lshl_b32", s(sx), s(sB), 3)
    k("s_add_u32", s(smt1), s(smt1), s(sx))
    k("s_add_u32", s(smt1), s(smt1), s(sW))
    k("s_lshr_b32", s(sG), s(sW), 2)
    k("s_and_b32", s(sWq), s(sW), 3)
    k("s_and_b32", s(sx), s(sR), 3)
    k("s_lshl_b32", s(sx), s(sx), 2)
    k("s_lshl_b32", s(smt2), s(sX), 4)
    k("s_add_u32", s(smt2), s(smt2), s(sx))
    k("s_add_u32", s(smt2), s(smt2), s(sWq))
    k("s_lshl_b32", s(sx), s(smt2), 14)
    k("s_lshl_b32", s(sO), s(sNb), 7)
    k("s_add_u32", s(sx), s(sx), s(sO))
    k("s_lshl_b32", s(sO), s(sG), 6)
    k("s_add_u32", s(sx), s(sx), s(sO))
    k("v_and_b32", v(t0), 15, "v0")
    k("v_lshlrev_b32", v(vXo), 10, v(t0))
    k("v_lshl_add_u32", v(vXo), v(vG), 3, v(vXo))
    k("v_add_u32", v(vXo), s(sx), v(vXo))
    k.wait_smem()
    for r, sl, sz in srds:
        k("s_and_b32", s(r + 1), s(r + 1), "0xffff")
    k("s_cmp_lg_u32", s(sBad), 0)
    k("s_cbranch_scc1", N + "_cfallback")
    k.label(N + "_cstart")
    ST("go", "ma")

    D = xa; TL = xa + 8
    lp0 = L("p0a")
    k("s_cmp_ge_u32", s(sR), 16)
    k("s_cbranch_scc1", lp0)
    k("v_lshrrev_b32", v(t0), 5, v(vL))
    k("v_and_b32", v(t1), 31, v(vL))
    k("v_lshlrev_b32", v(t2), 10, v(t0))
    k("v_lshl_add_u32", v(t2), v(t1), 4, v(t2))
    k("s_lshl_b32", s(sx), s(sX), 4)
    k("s_add_u32", s(sx), s(sx), s(sR))
    k("s_lshl_b32", s(sx), s(sx), 14)
    k("s_lshl_b32", s(sy), s(sW), 11)
    k("s_add_u32", s(sx), s(sx), s(sy))
    k("buffer_load_dwordx4", v(D, 4), v(t2), s(rX, 4), s(sx), mods="offen", tag="X0", cond=True)
    k("buffer_load_dwordx4", v(D + 4, 4), v(t2), s(rX, 4), s(sx), mods="offen offset:512", tag="X0", cond=True)
    k("v_lshrrev_b32", v(t2), 2, v(t1))
    k("v_mul_u32_u24", v(t2), 1056, v(t2))
    k("v_and_b32", v(t3), 3, v(t1))
    k("v_lshl_add_u32", v(t2), v(t3), 8, v(t2))
    k("v_lshl_add_u32", v(t2), v(t0), 4, v(t2))
    k("s_lshl_b32", s(sy), s(sW), 5)
    k("s_add_u32", s(sy), s(sy), P0SCR)
    k("v_add_u32", v(t2), s(sy), v(t2))
    k("s_mul_i32", s(sy), s(sW), 2112)
    k("s_add_u32", s(sy), s(sy), P0SCR)
    k("v_add_u32", v(t3), s(sy), v(vL16))
    k.raw("s_waitcnt vmcnt(0)")
    ST("xw", "a")
    rowln(k, D, TL, sOne, 1)
    k("ds_write_b128", v(t2), v(D, 4))
    k("ds_write_b128", v(t2), v(D + 4, 4), mods="offset:%d" % (8 * 1056))
    k.wait_lg()
    k.label(lp0)
    BAR("p")
    lp0 = L("p0b")
    k("s_cmp_ge_u32", s(sR), 16)
    k("s_cbranch_scc1", lp0)
    k("ds_read_b128", v(D, 4), v(t3))
    k("ds_read_b128", v(D + 4, 4), v(t3), mods="offset:1056")
    k("s_add_u32", s(sx), s(sx), s(sT1))
    k.wait_lg()
    k("buffer_store_dwordx4", v(D, 4), v(vL16), s(rWS, 4), s(sx), mods="offen", tag="XS", cond=True)
    k("buffer_store_dwordx4", v(D + 4, 4), v(vL16), s(rWS, 4), s(sx), mods="offen offset:1024", tag="XS", cond=True)
    k.label(lp0)
    k("v_bfe_u32", v(t0), v(vL), 2, 2)
    k("v_and_b32", v(t2), 1, v(vG))
    k("v_lshl_add_u32", v(t0), v(t2), 3, v(t0))
    k("v_lshlrev_b32", v(t0), 6, v(t0))
    k("v_and_b32", v(t1), 1, v(vL))
    k("v_lshl_add_u32", v(t0), v(t1), 3, v(t0))
    k("v_bfe_u32", v(t1), v(vL), 1, 1)
    k("v_lshlrev_b32", v(t2), 1, v(t2))
    k("v_xor_b32", v(t1), v(t1), v(t2))
    k("v_lshrrev_b32", v(t3), 1, v(vG))
    for t in range(2):
        if t: k("v_xor_b32", v(t1), 2, v(t1))
        k("v_lshl_add_u32", v(t2), v(t1), 4, v(t0))
        k("v_lshl_add_u32", v(vT[t]), v(t3), 10, v(t2))
        k("v_add_u32", v(vT[2 + t]), "0x10000", v(vT[t]))
    vBqc = vT[6]
    k("v_lshrrev_b32", v(t0), 2, v(vL))
    k("v_and_b32", v(t1), 3, v(vL))
    k("v_lshrrev_b32", v(t2), 3, v(t0))
    k("v_lshlrev_b32", v(t2), 1, v(t2))
    k("v_xor_b32", v(t1), v(t1), v(t2))
    k("v_mul_u32_u24", v(vBqc), "0xc00", v(t0))
    k("v_lshl_add_u32", v(vBqc), v(t1), 4, v(vBqc))
    k("s_lshl_b32", s(sx), s(sHg), 6)
    k("v_add_u32", v(vBqc), s(sx), v(vBqc))
    k("s_mul_i32", s(sx), s(sW), 49152)
    k("s_lshl_b32", s(sy), s(sW), 10)
    k.wait_vm()
    ST("xs", "a")
    BAR("X0")
    BAR("q")
    for seg in (1, 2, 0):
        for i in range(4):
            k("s_add_u32", s(sO), s(sx), hex(i * 8 * 49152 + seg * 1024))
            k("s_add_u32", "m0", s(sy), hex(seg * 32768 + i * 8192))
            k("buffer_load_dwordx4", v(vBqc), s(rWQ, 4), s(sO), mods="offen lds", tag="WQ%d" % seg)
    for t in range(2):
        k("buffer_load_dwordx2", v(xr + 2 * t, 2), v(vXo), s(rX, 4), 0, mods="offen offset:%d" % (32 * t), tag="XR")
    k("s_lshl_b32", s(sx), s(smt1), 14)
    k("s_add_u32", s(sx), s(sx), s(sT1))
    k.wait_vm("WQ2")
    ST("wq", "a")
    BAR("Y0")
    ST("S0", "ma")

    def lda16():
        for j in range(16):
            if j % 4 == 0 and j: k("s_add_u32", s(sx), s(sx), 4096)
            k("buffer_load_dwordx4", v(xa + 4 * j, 4), v(vL16), s(rWS, 4), s(sx), mods=("offen offset:%d sc1" % ((j & 3) * 1024)) if j & 3 else "offen sc1", tag="A%d" % j)
    lda16()
    BAR("a1")
    def mk_p1(tiles):
        def rd(j, i):
            t6 = tiles[i]
            seg, t = t6 >> 1, t6 & 1
            for h in range(2):
                off = seg * 32768 + j * 2048 + 256 * h
                a = vT[t]
                if off >= 65536: a, off = vT[2 + t], off - 65536
                k("ds_read_b64_tr_b16", v(bf + i * 4 + 2 * h, 2), v(a), mods="offset:%d" % off, tag="f%d_%d" % (j, i))
        def mf(j, i):
            t6 = tiles[i]
            W = v(bf + i * 4, 4); X = v(xa + 4 * j, 4); C = v(acc + 4 * t6, 4)
            if i == 0: k.wait_vm("A%d" % j)
            a, b = (W, X) if t6 < 2 else (X, W)
            k("v_mfma_f32_16x16x32_bf16", C, a, b, (C if j else 0))
        return rd, mf
    rd, mf = mk_p1([2, 3, 4, 5])
    gemm1(k, list(range(16)), 4, rd, mf)
    ST("kvG", "ma")
    T = bf; pk = bf + 12; vv = bf + 16
    kvr = [acc, acc + 4, bf + 20, bf + 24]
    for t in range(2):
        phi_pack(k, acc + 8 + 4 * t, pk + 2 * t, T, sC)
        k("v_cvt_pk_bf16_f32", v(vv + 2 * t), v(acc + 16 + 4 * t), v(acc + 17 + 4 * t))
        k("v_cvt_pk_bf16_f32", v(vv + 2 * t + 1), v(acc + 18 + 4 * t), v(acc + 19 + 4 * t))
    for t in range(2):
        k("v_mfma_f32_16x16x16_bf16", v(kvr[t], 4), v(pk + 2 * t, 2), v(vv + 2 * t, 2), 0)
        k("v_mfma_f32_16x16x16_bf16", v(kvr[2 + t], 4), v(pk + 2 * t, 2), v(ones, 2), 0)
    k("s_lshl_b32", s(sx), s(sW), 12)
    k("v_add_u32", v(t1), s(sx), v(vL16))
    BAR("k")
    for a in range(4):
        k("ds_write_b128", v(t1), v(kvr[a], 4), mods="offset:%d" % (KVSCR + a * 1024))
    k.wait_lg()
    BAR("s")
    R = acc + 8
    for w in range(8):
        k("ds_read_b64", v(R + 2 * w, 2), v(vT8), mods="offset:%d" % (KVSCR + w * 4096))
    k.wait_lg()
    for w in range(1, 8):
        k("v_pk_add_f32", v(R, 2), v(R, 2), v(R + 2 * w, 2))
    k("s_lshl_b32", s(sx), s(sHg), 4)
    k("s_lshl_b32", s(sy), s(sX), 1)
    k("s_add_u32", s(sx), s(sx), s(sy))
    k("s_add_u32", s(sx), s(sx), s(sB))
    k("s_lshl_b32", s(sx), s(sx), 12)
    k("s_add_u32", s(sx), s(sx), hex(WS_PART))
    vPo = vT[5]
    k("v_bfe_u32", v(t0), "v0", 7, 1)
    k("v_lshlrev_b32", v(t0), 6, v(t0))
    k("v_bfe_u32", v(t2), "v0", 5, 2)
    k("v_lshl_add_u32", v(t0), v(t2), 4, v(t0))
    k("v_and_b32", v(t2), 1, "v0")
    k("v_lshl_add_u32", v(t0), v(t2), 3, v(t0))
    k("v_add_u32", v(t0), 2048, v(t0))
    k("s_cmp_ge_u32", s(sW), 4)
    k("s_cselect_b64", "vcc", -1, 0)
    k("v_cndmask_b32", v(vPo), v(vT8), v(t0), "vcc")
    k("s_cselect_b32", s(sy), 3, -1)
    k("s_mov_b32", "exec_lo", s(sy))
    k("s_mov_b32", "exec_hi", s(sy))
    k("buffer_store_dwordx2", v(R, 2), v(vPo), s(rWS, 4), s(sx), mods="offen sc1", tag="PS")
    k.raw("s_mov_b64 exec, -1")
    rd, mf = mk_p1([0, 1])
    def pre_q(j):
        if j == 11:
            k.wait_vm("PS")
            BAR("X1")
            ST("pubA", "m")
    gemm1(k, list(range(16)), 2, rd, mf, pre_q)
    for t in range(2):
        phi_pack(k, acc + 4 * t, pq + 2 * t, T, sC)
    k("v_mov_b32", v(t1), ABW)
    k("s_lshl_b32", s(sx), s(sHg), 16)
    k("s_add_u32", s(sx), s(sx), hex(WS_PART))
    BAR("Y1")
    ST("SA", "m")

    pr = xa
    for m in range(16):
        k("buffer_load_dwordx2", v(pr + 2 * m, 2), v(vPo), s(rWS, 4), s(sx), mods="offen sc1", tag="P")
        if m < 15: k("s_add_u32", s(sx), s(sx), 4096)
    k("ds_read_b32", v(t3), v(t1), tag="AB")
    k.wait_lg()
    k("v_readfirstlane_b32", s(sy), v(t3))
    k("s_cmp_lg_u32", s(sy), 0)
    k("s_cbranch_scc1", N + "_cfallback")
    BAR("a2")
    k.wait_vm("P")
    for m in range(1, 16):
        k("v_pk_add_f32", v(pr, 2), v(pr, 2), v(pr + 2 * m, 2))
    k("v_cvt_pk_bf16_f32", v(pr + 2), v(pr), v(pr + 1))
    k("v_lshlrev_b32", v(t0), 2, "v0")
    k("ds_write_b32", v(t0), v(pr + 2), mods="offset:%d" % OSCR)
    k.wait_lg()
    BAR("o")
    fr = xa + 32; nd = xa + 40; o = xa + 56
    k("v_lshlrev_b32", v(t0), 3, v(vL))
    for a in range(4):
        k("ds_read_b64", v(fr + 2 * a, 2), v(t0), mods="offset:%d" % (OSCR + a * 512))
    k.wait_lg()
    for h in range(2):
        k("v_mfma_f32_16x16x16_bf16", v(nd + 4 * h, 4), v(fr + 2 * h, 2), v(pq + 2 * h, 2), 0)
        k("v_mfma_f32_16x16x16_bf16", v(nd + 8 + 4 * h, 4), v(fr + 4 + 2 * h, 2), v(pq + 2 * h, 2), 0)
    for h in range(2):
        d = T + 8 * h; a = [d + 2 + q for q in range(4)]; u0, u1 = d + 6, d + 7
        bf16r(k, d, nd + 8 + 4 * h)
        k("v_add_f32", v(d), "0x358637bd", v(d))
        bf16r(k, d, d)
        k("v_rcp_f32", v(d), v(d))
        k("v_cvt_pk_bf16_f32", v(u0), v(nd + 4 * h), v(nd + 4 * h + 1))
        k("v_cvt_pk_bf16_f32", v(u1), v(nd + 4 * h + 2), v(nd + 4 * h + 3))
        unpack(k, a[0], a[1], u0); unpack(k, a[2], a[3], u1)
        for q in range(4): k("v_mul_f32", v(a[q]), v(a[q]), v(d))
        k("v_cvt_pk_bf16_f32", v(o + 2 * h), v(a[0]), v(a[1]))
        k("v_cvt_pk_bf16_f32", v(o + 2 * h + 1), v(a[2]), v(a[3]))
    k("s_lshl_b32", s(sx), s(smt1), 4)
    k("s_add_u32", s(sx), s(sx), s(sHg))
    k("s_lshl_b32", s(sx), s(sx), 10)
    k("s_add_u32", s(sx), s(sx), s(sT1))
    k("s_mul_i32", s(sy), s(sB), HALF - 128 * 1024)
    k("s_add_u32", s(sx), s(sx), s(sy))
    k("s_add_u32", s(sx), s(sx), hex(R2))
    k("buffer_store_dwordx4", v(o, 4), v(vL16), s(rWS, 4), s(sx), mods="offen", tag="OS")
    def tr64():
        k("v_bfe_u32", v(t0), v(vL), 2, 2)
        k("v_lshl_add_u32", v(t1), v(vG), 2, v(t0))
        k("v_bfe_u32", v(t2), v(t1), 1, 2)
        k("v_lshlrev_b32", v(t0), 7, v(t1))
        k("v_and_b32", v(t1), 3, v(vL))
        k("v_lshl_add_u32", v(t0), v(t1), 3, v(t0))
        k("s_lshl_b32", s(sy), s(sG), 12)
        k("v_add_u32", v(t0), s(sy), v(t0))
        for t in range(4):
            k("v_xor_b32", v(t1), t, v(t2))
            k("v_lshl_add_u32", v(vT[t]), v(t1), 5, v(t0))
            k("v_add_u32", v(vT[4 + t]), "0x10000", v(vT[t]))
            k("v_add_u32", v(vT[8 + t]), "0x20000", v(vT[t]))
    tr64()
    def a_base(NH, abase, AJ):
        k("s_mul_i32", s(sA), s(smt2), AJ * 1024)
        k("s_mul_i32", s(sy), s(sG), NH * 1024)
        k("s_add_u32", s(sA), s(sA), s(sy))
        k("s_add_u32", s(sA), s(sA), s(abase))
    a_base(8, sT1, 16)
    k("s_bfe_u32", s(sy), s(sR), "0x10001")
    k("s_mul_i32", s(sy), s(sy), HALF - 128 * 1024)
    k("s_add_u32", s(sA), s(sA), s(sy))
    k("s_add_u32", s(sA), s(sA), hex(R2))
    k.wait_vm("OS")
    BAR("X2")
    BAR("Y2")
    ST("SB", "m")

    def g64(NH, blks, NA):
        st = {"n": 0}
        def lda():
            n = st["n"]
            if n >= NH: return
            if n % 4 == 0 and n: k("s_add_u32", s(sA), s(sA), 4096)
            k("buffer_load_dwordx4", v(xa + 4 * (n % NA), 4), v(vL16), s(rWS, 4), s(sA), mods=("offen offset:%d sc1" % ((n & 3) * 1024)) if n & 3 else "offen sc1", tag="A%d" % n)
            st["n"] += 1
        for n in range(min(NH, NA)): lda()
        def rd(j, t):
            base = blks[j] * BLK
            win = base >> 16
            for h in range(2):
                k("ds_read_b64_tr_b16", v(bf + t * 4 + 2 * h, 2), v(vT[4 * win + t]),
                  mods="offset:%d" % (base - (win << 16) + h * 2048), tag="f%d_%d" % (j, t))
        def mf(j, t):
            C = v(acc + 4 * t, 4)
            if t == 0: k.wait_vm("A%d" % j)
            k("v_mfma_f32_16x16x32_bf16", C, v(bf + t * 4, 4), v(xa + 4 * (j % NA), 4), (C if j else 0))
            if t == 3: lda()
        return rd, mf
    def g64_reduce(scr, bname):
        ln = L("ns")
        k("s_cmp_eq_u32", s(sG), 0)
        k("s_cbranch_scc1", ln)
        for i in range(8): k("v_swap_b32", v(acc + i), v(acc + 8 + i))
        k.label(ln)
        k("s_lshl_b32", s(sy), s(sW), 11)
        k("s_add_u32", s(sy), s(sy), scr)
        k("v_add_u32", v(t0), s(sy), v(vL16))
        k("s_xor_b32", s(sy), s(sW), 4)
        k("s_lshl_b32", s(sy), s(sy), 11)
        k("s_add_u32", s(sy), s(sy), scr)
        k("v_add_u32", v(t1), s(sy), v(vL16))
        k("ds_write_b128", v(t0), v(acc + 8, 4))
        k("ds_write_b128", v(t0), v(acc + 12, 4), mods="offset:1024")
        k.wait_lg()
        BAR(bname)
        k("ds_read_b128", v(acc + 8, 4), v(t1))
        k("ds_read_b128", v(acc + 12, 4), v(t1), mods="offset:1024")
        k.wait_lg()
        for i in range(0, 8, 2): k("v_pk_add_f32", v(acc + i, 2), v(acc + i, 2), v(acc + 8 + i, 2))

    rd, mf = g64(8, WOBLK, 16)
    BAR("a3")
    gemm1(k, list(range(8)), 4, rd, mf)
    ST("P2G", "m")
    BAR("w")
    g64_reduce(P2SCR, "r")
    k.wait_vm("XR")
    for t in range(2):
        a = [T + q for q in range(4)]; b = [T + 4 + q for q in range(4)]; u0, u1 = T + 8, T + 9
        k("v_cvt_pk_bf16_f32", v(u0), v(acc + 4 * t), v(acc + 4 * t + 1))
        k("v_cvt_pk_bf16_f32", v(u1), v(acc + 4 * t + 2), v(acc + 4 * t + 3))
        unpack(k, a[0], a[1], u0); unpack(k, a[2], a[3], u1)
        unpack(k, b[0], b[1], xr + 2 * t); unpack(k, b[2], b[3], xr + 2 * t + 1)
        k("v_pk_add_f32", v(a[0], 2), v(a[0], 2), v(b[0], 2))
        k("v_pk_add_f32", v(a[2], 2), v(a[2], 2), v(b[2], 2))
        k("v_cvt_pk_bf16_f32", v(hr + 2 * t), v(a[0]), v(a[1]))
        k("v_cvt_pk_bf16_f32", v(hr + 2 * t + 1), v(a[2]), v(a[3]))
    k("s_lshl_b32", s(sx), s(smt2), 14)
    k("s_lshl_b32", s(sy), s(sNb), 11)
    k("s_add_u32", s(sx), s(sx), s(sy))
    k("s_lshl_b32", s(sy), s(sG), 10)
    k("s_add_u32", s(sx), s(sx), s(sy))
    k("s_add_u32", s(sx), s(sx), s(sT1))
    k("buffer_store_dwordx4", v(hr, 4), v(vL16), s(rWS, 4), s(sx), mods="offen", tag="HS")
    vLg, vLr, vLw = vT[12], vT[13], vT[14]
    k("v_lshrrev_b32", v(t0), 5, v(vL))
    k("v_bfe_u32", v(t1), v(vL), 3, 2)
    k("v_and_b32", v(t2), 7, v(vL))
    k("v_lshlrev_b32", v(vLg), 10, v(t0))
    k("v_lshl_add_u32", v(vLg), v(t1), 8, v(vLg))
    k("v_lshl_add_u32", v(vLg), v(t2), 4, v(vLg))
    k("s_lshl_b32", s(sy), s(sB), 7)
    k("v_add_u32", v(vLg), s(sy), v(vLg))
    k("v_mul_u32_u24", v(vLr), 1056, v(t1))
    k("v_bfe_u32", v(t1), v(vL), 2, 1)
    k("v_lshl_add_u32", v(vLr), v(t1), 9, v(vLr))
    k("v_and_b32", v(t1), 3, v(vL))
    k("v_lshl_add_u32", v(vLr), v(t1), 7, v(vLr))
    k("v_lshl_add_u32", v(vLr), v(t0), 4, v(vLr))
    k("s_lshl_b32", s(sy), s(sW), 5)
    k("s_add_u32", s(sy), s(sy), LSCR)
    k("v_add_u32", v(vLr), s(sy), v(vLr))
    k("s_mul_i32", s(sy), s(sW), 1056)
    k("s_add_u32", s(sy), s(sy), LSCR)
    k("v_add_u32", v(vLw), s(sy), v(vL16))
    k("s_mov_b32", "m0", s(sy))
    k("s_lshl_b32", s(sLo), s(sX), 4)
    k("s_add_u32", s(sLo), s(sLo), s(sHg))
    k("s_lshl_b32", s(sLo), s(sLo), 14)
    k("s_lshl_b32", s(sy), s(sW), 11)
    k("s_add_u32", s(sLo), s(sLo), s(sy))
    k("s_add_u32", s(sLo), s(sLo), s(sT1))
    k("s_mov_b32", s(sx), s(sLo))
    k.wait_vm("HS")
    BAR("X3")
    BAR("Y3")
    ST("SC", "m")

    k("buffer_load_dwordx4", v(vLg), s(rWS, 4), s(sx), mods="offen sc1 lds", tag="HL")
    k.wait_vm("HL")
    BAR("h")
    lw = L("ln")
    k("s_cmp_ge_u32", s(sW), 4)
    k("s_cbranch_scc1", lw)
    k("ds_read_b128", v(D, 4), v(vLr))
    k("ds_read_b128", v(D + 4, 4), v(vLr), mods="offset:%d" % (4 * 1056))
    k.wait_lg()
    rowln(k, D, TL, sOne, 2)
    k("ds_write_b128", v(vLr), v(D, 4))
    k("ds_write_b128", v(vLr), v(D + 4, 4), mods="offset:%d" % (4 * 1056))
    k.wait_lg()
    k.label(lw)
    BAR("l")
    k("ds_read_b128", v(D, 4), v(vLw))
    k("s_mov_b32", s(sx), s(sLo))
    k.wait_lg()
    k("buffer_store_dwordx4", v(D, 4), v(vLg), s(rWS, 4), s(sx), mods="offen", tag="YS")
    k("s_mul_i32", s(sy), s(sHg), 224)
    k("s_bfe_u32", s(sx), s(sy), "0x10005")
    k("s_lshl_b32", s(sx), s(sx), 1)
    k("v_bfe_u32", v(t0), v(vL), 2, 2)
    k("v_lshl_add_u32", v(t0), v(vG), 2, v(t0))
    k("v_and_b32", v(t1), 7, v(t0))
    k("v_lshlrev_b32", v(t1), 1, v(t1))
    k("v_lshlrev_b32", v(t0), 8, v(t0))
    k("v_and_b32", v(t2), 1, v(vL))
    k("v_lshl_add_u32", v(t0), v(t2), 3, v(t0))
    k("v_bfe_u32", v(t2), v(vL), 1, 1)
    k("v_add_u32", v(t2), s(sx), v(t2))
    for t in range(7):
        k("v_add_u32", v(t3), 2 * t, v(t2))
        k("v_xor_b32", v(t3), v(t3), v(t1))
        k("v_lshl_add_u32", v(vT[t]), v(t3), 4, v(t0))
        k("v_add_u32", v(vT[7 + t]), "0x10000", v(vT[t]))
        k("v_add_u32", v(vT[14 + t]), "0x20000", v(vT[t]))
    k("v_lshlrev_b32", v(t3), 3, v(vG))
    k("v_add_u32", v(t3), s(sy), v(t3))
    k("s_lshl_b32", s(sx), s(smt1), 14)
    k("s_add_u32", s(sx), s(sx), s(sT1))
    k.wait_vm("YS")
    BAR("X4")
    BAR("Y4")
    ST("SC2", "mc")

    lda16()
    brs = [ones, pq, pq + 2, xr, xr + 2, vTb + 22, vT8]
    assert vT8 % 2 == 0 and t0 == vT8 + 1 and (vTb + 22) % 2 == 0 and ones % 2 == 0
    for t in range(7):
        k("buffer_load_dwordx2", v(brs[t], 2), v(t3), s(rB1, 4), 0, mods="offen offset:%d" % (32 * t), tag="BI")
    ST("p3iss", "c")
    BAR("a4")
    ST("p3a4", "c")
    def rd(j, t):
        base = W1BLK[j] * BLK
        win = base >> 16
        for h in range(2):
            k("ds_read_b64_tr_b16", v(bf + t * 4 + 2 * h, 2), v(vT[7 * win + t]),
              mods="offset:%d" % (base - (win << 16) + h * 4096), tag="f%d_%d" % (j, t))
    def mf(j, t):
        C = v(acc + 4 * t, 4)
        if t == 0: k.wait_vm("A%d" % j)
        k("v_mfma_f32_16x16x32_bf16", C, v(bf + t * 4, 4), v(xa + 4 * j, 4), (C if j else 0))
    def pre3(j):
        if j in P3H: BAR("c%d" % j)
        if j in (2, 4, 6, 8, 10, 12, 14): ST("p3j%d" % j, "c")
    gemm1(k, list(range(16)), 7, rd, mf, pre3)
    ST("P3G", "mc")
    BAR("g")
    c1 = 2 * math.sqrt(2 / math.pi) * math.log2(math.e)
    sc1_, sc2_ = sC, sC + 1
    k("s_mov_b32", s(sc1_), f2h(-c1))
    k("s_mov_b32", s(sc2_), f2h(-c1 * 0.044715))
    k("s_mul_i32", s(sx), s(smt1), 56 * 1024)
    k("s_add_u32", s(sx), s(sx), s(sT2))
    k("s_mul_i32", s(sy), s(sHg), 7)
    k.wait_vm("BI")
    for t in range(7):
        a = [T + q for q in range(4)]; b = [T + 4 + q for q in range(4)]; u0, u1 = T + 8, T + 9; oo = T + 10 + 2 * (t & 1)
        k("v_cvt_pk_bf16_f32", v(u0), v(acc + 4 * t), v(acc + 4 * t + 1))
        k("v_cvt_pk_bf16_f32", v(u1), v(acc + 4 * t + 2), v(acc + 4 * t + 3))
        unpack(k, a[0], a[1], u0); unpack(k, a[2], a[3], u1)
        unpack(k, b[0], b[1], brs[t]); unpack(k, b[2], b[3], brs[t] + 1)
        k("v_pk_add_f32", v(a[0], 2), v(a[0], 2), v(b[0], 2))
        k("v_pk_add_f32", v(a[2], 2), v(a[2], 2), v(b[2], 2))
        k("v_cvt_pk_bf16_f32", v(u0), v(a[0]), v(a[1]))
        k("v_cvt_pk_bf16_f32", v(u1), v(a[2]), v(a[3]))
        unpack(k, a[0], a[1], u0); unpack(k, a[2], a[3], u1)
        k("v_pk_mul_f32", v(b[0], 2), v(a[0], 2), v(a[0], 2))
        k("v_pk_mul_f32", v(b[2], 2), v(a[2], 2), v(a[2], 2))
        for q in range(4): k("v_mul_f32", v(b[q]), s(sc2_), v(b[q]))
        for q in range(4): k("v_add_f32", v(b[q]), s(sc1_), v(b[q]))
        k("v_pk_mul_f32", v(b[0], 2), v(a[0], 2), v(b[0], 2))
        k("v_pk_mul_f32", v(b[2], 2), v(a[2], 2), v(b[2], 2))
        for q in range(4): k("v_exp_f32", v(b[q]), v(b[q]))
        for q in range(4): k("v_add_f32", v(b[q]), 1.0, v(b[q]))
        for q in range(4): k("v_rcp_f32", v(b[q]), v(b[q]))
        k("v_pk_mul_f32", v(a[0], 2), v(a[0], 2), v(b[0], 2))
        k("v_pk_mul_f32", v(a[2], 2), v(a[2], 2), v(b[2], 2))
        k("v_cvt_pk_bf16_f32", v(oo), v(a[0]), v(a[1]))
        k("v_cvt_pk_bf16_f32", v(oo + 1), v(a[2]), v(a[3]))
        k("s_add_u32", s(sO), s(sy), t)
        k("s_lshr_b32", s(sit), s(sO), 1)
        k("s_lshl_b32", s(sit), s(sit), 10)
        k("s_and_b32", s(sO), s(sO), 1)
        k("s_lshl_b32", s(sO), s(sO), 3)
        k("s_add_u32", s(sO), s(sO), s(sit))
        k("s_add_u32", s(sO), s(sO), s(sx))
        k("buffer_store_dwordx2", v(oo, 2), v(vL16), s(rWS, 4), s(sO), mods="offen", tag="GS")
    k("s_lshl_b32", s(sy), s(sNb), 7)
    k("s_lshl_b32", s(sO), s(sG), 6)
    k("s_add_u32", s(sy), s(sy), s(sO))
    k("v_lshlrev_b32", v(t3), 3, v(vG))
    k("v_add_u32", v(t3), s(sy), v(t3))
    for t in range(2):
        k("buffer_load_dwordx2", v(b2r + 2 * t, 2), v(t3), s(rB2, 4), 0, mods="offen offset:%d" % (32 * t), tag="B2")
    tr64()
    a_base(28, sT2, 56)
    ST("P3E", "mc")
    k.wait_vm("GS")
    BAR("X5")
    BAR("Y5")
    ST("SD", "mc")

    rd, mf = g64(28, W2BLK, 16)
    BAR("a5")
    def pre4(j):
        if j in (5, 9, 20, 24): BAR("b%d" % j)
    gemm1(k, list(range(28)), 4, rd, mf, pre4)
    ST("P4G", "m")
    assert W2BLK[9] == W2BLK[8] + 1
    g64_reduce(W2BLK[8] * BLK, "r2")
    k.wait_vm("B2")
    hp = T + 12
    for t in range(2):
        a = [T + q for q in range(4)]; b = [T + 4 + q for q in range(4)]; u0, u1 = T + 8, T + 9
        k("v_cvt_pk_bf16_f32", v(u0), v(acc + 4 * t), v(acc + 4 * t + 1))
        k("v_cvt_pk_bf16_f32", v(u1), v(acc + 4 * t + 2), v(acc + 4 * t + 3))
        unpack(k, a[0], a[1], u0); unpack(k, a[2], a[3], u1)
        unpack(k, b[0], b[1], b2r + 2 * t); unpack(k, b[2], b[3], b2r + 2 * t + 1)
        k("v_pk_add_f32", v(a[0], 2), v(a[0], 2), v(b[0], 2))
        k("v_pk_add_f32", v(a[2], 2), v(a[2], 2), v(b[2], 2))
        k("v_cvt_pk_bf16_f32", v(u0), v(a[0]), v(a[1]))
        k("v_cvt_pk_bf16_f32", v(u1), v(a[2]), v(a[3]))
        unpack(k, a[0], a[1], u0); unpack(k, a[2], a[3], u1)
        unpack(k, b[0], b[1], hr + 2 * t); unpack(k, b[2], b[3], hr + 2 * t + 1)
        k("v_pk_add_f32", v(a[0], 2), v(b[0], 2), v(a[0], 2))
        k("v_pk_add_f32", v(a[2], 2), v(b[2], 2), v(a[2], 2))
        k("v_cvt_pk_bf16_f32", v(hp + 2 * t), v(a[0]), v(a[1]))
        k("v_cvt_pk_bf16_f32", v(hp + 2 * t + 1), v(a[2]), v(a[3]))
        k("buffer_store_dwordx2", v(hp + 2 * t, 2), v(vXo), s(rOUT, 4), 0, mods="offen offset:%d" % (32 * t))
    ST("end", "m")
    k.dump_stamps(rWS, 0)
    k("s_endpgm")
    k.label(N + "_cfallback")
    k.raw("s_waitcnt vmcnt(0) lgkmcnt(0)")
    k("s_barrier")
    k("s_barrier")
    k("s_branch", N + "_cstart")

    role[0] = "H"
    k.vmq = []; k.lgq = []
    k.label(N + "_helper")
    k("s_sub_u32", s(sH), s(sW), 8)
    k("s_mul_i32", s(sHq), s(sH), 49152)
    k("s_lshl_b32", s(sH1k), s(sH), 10)
    k("s_lshl_b32", s(sH8k), s(sH), 13)
    k("v_lshlrev_b32", v(vL4), 2, v(vL))
    k("v_lshlrev_b32", v(vPf), 7, v(vL))
    k("v_mov_b32", v(vZero), 0)
    k("v_lshrrev_b32", v(t0), 2, v(vL))
    k("v_and_b32", v(t1), 3, v(vL))
    k("v_lshrrev_b32", v(t2), 3, v(t0))
    k("v_lshlrev_b32", v(t2), 1, v(t2))
    k("v_xor_b32", v(t1), v(t1), v(t2))
    k("v_mul_u32_u24", v(vBq), "0xc00", v(t0))
    k("v_lshl_add_u32", v(vBq), v(t1), 4, v(vBq))
    k("s_lshl_b32", s(sx), s(sHg), 6)
    k("v_add_u32", v(vBq), s(sx), v(vBq))
    k("v_lshrrev_b32", v(t0), 3, v(vL))
    k("v_and_b32", v(t1), 7, v(vL))
    k("v_bfe_u32", v(t2), v(t0), 1, 2)
    k("v_lshlrev_b32", v(t2), 1, v(t2))
    k("v_xor_b32", v(t1), v(t1), v(t2))
    k("v_lshlrev_b32", v(vB64), 10, v(t0))
    k("v_lshl_add_u32", v(vB64), v(t1), 4, v(vB64))
    k("s_lshl_b32", s(sx), s(sNb), 7)
    k("v_add_u32", v(vB64), s(sx), v(vB64))
    k("s_mul_i32", s(sy), s(sHg), 224)
    k("s_and_b32", s(sx), s(sy), "0xffffffc0")
    k("v_lshrrev_b32", v(t0), 4, v(vL))
    k("s_lshl_b32", s(sO), s(sH), 2)
    k("v_add_u32", v(t0), s(sO), v(t0))
    k("v_and_b32", v(t1), 7, v(t0))
    k("v_lshlrev_b32", v(t1), 1, v(t1))
    k("v_and_b32", v(t2), 15, v(vL))
    k("v_xor_b32", v(t2), v(t2), v(t1))
    k("v_mul_u32_u24", v(vBw1), 3584, v(t0))
    k("v_lshl_add_u32", v(vBw1), v(t2), 4, v(vBw1))
    k("v_add_u32", v(vBw1), s(sx), v(vBw1))
    k.wait_smem()
    for r, sl, sz in srds:
        k("s_and_b32", s(r + 1), s(r + 1), "0xffff")

    def h0_begin():
        l = L("h0")
        k("s_cmp_lg_u32", s(sH), 0)
        k("s_cbranch_scc1", l)
        return l
    def h0_end(l):
        k.raw("s_mov_b64 exec, -1")
        k.label(l)
    def ld_wq(seg, i):
        for u in range(2):
            k("s_add_u32", s(sO), s(sHq), hex((8 * i + 4 * u) * 49152 + seg * 1024))
            k("s_add_u32", "m0", s(sH1k), hex(seg * 32768 + i * 8192 + u * 4096))
            k("buffer_load_dwordx4", v(vBq), s(rWQ, 4), s(sO), mods="offen lds", tag="WQ")
    def ld_64(srd, NH, n, blk, tag):
        for u in range(2):
            k("s_add_u32", s(sO), s(sH8k), hex((u * NH + n) * 32768))
            k("s_add_u32", "m0", s(sH1k), hex(blk * BLK + u * 4096))
            k("buffer_load_dwordx4", v(vB64), s(srd, 4), s(sO), mods="offen lds", tag=tag)
    def ld_w1(j):
        for u in range(2):
            k("s_add_u32", "m0", s(sH1k), hex(W1BLK[j] * BLK + u * 4096))
            k("s_mov_b32", s(sO), hex((j * 32 + u * 16) * 3584))
            k("buffer_load_dwordx4", v(vBw1), s(rW1, 4), s(sO), mods="offen lds", tag="W1_%d" % j)
    def ld_w2(n):
        ld_64(rW2, 28, n, W2BLK[n], "W2_%d" % n)
    npf = [0]
    def prefetch(srd, base, total):
        q = total // 128
        assert q % 128 == 0
        k("s_lshl_b32", s(sx), s(sR), 2)
        k("s_add_u32", s(sx), s(sx), s(sH))
        k("s_mul_i32", s(sx), s(sx), q)
        if base: k("s_add_u32", s(sx), s(sx), hex(base))
        lines = q // 128
        while lines > 0:
            n = min(lines, 64)
            if n < 64:
                m = (1 << n) - 1
                k.raw("s_mov_b32 exec_lo, 0x%x" % (m & 0xffffffff))
                k.raw("s_mov_b32 exec_hi, 0x%x" % (m >> 32))
            k("buffer_load_dword", v(vDum), v(vPf), s(srd, 4), s(sx), mods="offen", tag="PF")
            npf[0] += 1
            if n < 64: k.raw("s_mov_b64 exec, -1")
            lines -= n
            if lines: k("s_add_u32", s(sx), s(sx), 8192)

    def touch_ws(kind):
        k("s_lshl_b32", s(sx), s(sX), 21)
        if kind == "r1":
            n = 16
            k("s_lshl_b32", s(sy), s(sR), 13)
            k("s_add_u32", s(sx), s(sx), s(sy))
            k("s_lshl_b32", s(sy), s(sH), 11)
        else:
            k("s_lshr_b32", s(sy), s(sR), 4)
            k("s_mul_i32", s(sy), s(sy), HALF)
            k("s_add_u32", s(sx), s(sx), s(sy))
            k("s_and_b32", s(sy), s(sR), 15)
            k("s_lshl_b32", s(sy), s(sy), 2)
            k("s_add_u32", s(sy), s(sy), s(sH))
            n = 16 if kind == "o" else 40
            k("s_mul_i32", s(sy), s(sy), n * 128)
            k("s_add_u32", s(sx), s(sx), hex(R2 + (0 if kind == "o" else 128 * 1024)))
        k("s_add_u32", s(sx), s(sx), s(sy))
        m = (1 << n) - 1
        k.raw("s_mov_b32 exec_lo, 0x%x" % (m & 0xffffffff))
        k.raw("s_mov_b32 exec_hi, 0x%x" % (m >> 32))
        k("buffer_load_dword", v(vDum), v(vPf), s(rWS, 4), s(sx), mods="offen sc1", tag="PF")
        k.raw("s_mov_b64 exec, -1")
    def gbar(i):
        k.raw("buffer_wbl2 sc1")
        k.raw("s_waitcnt vmcnt(0)")
        k.raw("s_mov_b64 exec, 1")
        k("v_mov_b32", v(t0), 1)
        k.raw("buffer_atomic_add v%d, v%d, s[%d:%d], 0 offen offset:%d sc1" % (t0, vZero, rDBG, rDBG + 3, 132 + 4 * i))
        k("s_mov_b32", s(sit), 0)
        lp, lx = L("gp"), L("gx")
        k.label(lp)
        k("s_sleep", 8)
        k("s_add_u32", s(sit), s(sit), 1)
        k("s_cmp_gt_u32", s(sit), LIMIT)
        k("s_cbranch_scc1", lx)
        k.raw("buffer_load_dword v%d, v%d, s[%d:%d], 0 offen offset:%d sc1" % (t0, vZero, rDBG, rDBG + 3, 132 + 4 * i))
        k.raw("s_waitcnt vmcnt(0)")
        k("v_cmp_gt_u32", "vcc", 256, v(t0))
        k.raw("s_nop 4")
        k.raw("s_cbranch_vccnz %s" % lp)
        k.label(lx)
        k.raw("s_mov_b64 exec, -1")
        k.raw("buffer_inv sc1")
        k.raw("s_waitcnt vmcnt(0)")
    def publish(srd, off_fn, val, mn, bits):
        off_fn()
        k("v_mov_b32", v(t0), val)
        k.raw("s_mov_b64 exec, 1")
        k(mn, v(t0), v(vZero), s(srd, 4), s(sx), mods=("offen " + bits).strip(), cond=True)
    def poll(srd, off_fn, nl, mask_fn, stage, checkbad):
        k.raw("s_mov_b64 exec, 0x%x" % ((1 << nl) - 1))
        off_fn()
        mask_fn()
        k("s_mov_b32", s(sit), 0)
        lp, lx, lt = L("p"), L("x"), L("t")
        k.label(lp)
        k.raw("buffer_load_dword v%d, v%d, s[%d:%d], s%d offen sc1" % (t0, vL4, srd, srd + 3, sx))
        k.raw("s_waitcnt vmcnt(0)")
        k("v_or_b32", v(t0), "0x80808080", v(t0))
        k("v_subrev_u32", v(t0), hex(stage * 0x01010101), v(t0))
        k("v_and_b32", v(t0), v(t0), v(vMask))
        k("v_cmp_ne_u32", "vcc", v(t0), v(vMask))
        k.raw("s_nop 4")
        k.raw("s_cbranch_vccz %s" % lx)
        k("s_add_u32", s(sit), s(sit), 1)
        k("s_cmp_gt_u32", s(sit), LIMIT)
        k("s_cbranch_scc1", lt)
        if checkbad:
            k("s_and_b32", s(sy), s(sit), 7)
            k("s_cmp_lg_u32", s(sy), 0)
            k("s_cbranch_scc1", lp)
            k.raw("buffer_load_dword v%d, v%d, s[%d:%d], 0 offen offset:128 sc1" % (t1, vZero, rDBG, rDBG + 3))
            k.raw("s_waitcnt vmcnt(0)")
            k("v_readfirstlane_b32", s(sy), v(t1))
            k("s_lshr_b32", s(sy), s(sy), 16)
            k("s_cmp_eq_u32", s(sy), 0)
            k("s_cbranch_scc1", lp)
        else:
            k("s_branch", lp)
        k.label(lt)
        k("s_mov_b32", s(sAb), 1)
        k.label(lx)
    def sync(idx, fast_fn):
        l = h0_begin()
        lf = L("fb")
        k("s_cmp_lg_u32", s(sMode), 0)
        k("s_cbranch_scc1", lf)
        fast_fn()
        k.raw("s_mov_b64 exec, -1")
        k("s_branch", l)
        k.label(lf)
        gbar(idx)
        h0_end(l)
    def prog_off():
        k("s_lshl_b32", s(sx), s(sX), 21)
        k("s_add_u32", s(sx), s(sx), hex(PROGO))
    def prog_own_off():
        prog_off()
        k("s_add_u32", s(sx), s(sx), s(sR))
    def mask_all(sval_fn):
        def f():
            sval_fn()
            k("v_mov_b32", v(vMask), s(sy))
        return f
    def mask_range(slo_fn, n):
        def f():
            slo_fn()
            k("v_subrev_u32", v(t1), s(sy), v(vL))
            k("v_cmp_gt_u32", "vcc", n, v(t1))
            k("v_mov_b32", v(t1), "0x80808080")
            k("v_cndmask_b32", v(vMask), 0, v(t1), "vcc")
        return f
    def fla_off():
        k("s_mul_i32", s(sx), s(sHg), 4352)
        k("s_add_u32", s(sx), s(sx), hex(WS_FLA))
    def fla_own():
        fla_off()
        k("s_lshl_b32", s(sy), s(sX), 3)
        k("s_add_u32", s(sx), s(sx), s(sy))
        k("s_lshl_b32", s(sy), s(sB), 2)
        k("s_add_u32", s(sx), s(sx), s(sy))

    l = h0_begin()
    k.raw("s_mov_b64 exec, 1")
    fla_own()
    k("buffer_store_dword", v(vZero), v(vZero), s(rWS, 4), s(sx), mods="offen sc1", cond=True)
    l2 = L("z")
    k("s_cmp_lg_u32", s(sR), 0)
    k("s_cbranch_scc1", l2)
    k.raw("s_mov_b64 exec, 0xff")
    prog_off()
    k("buffer_store_dword", v(vZero), v(vL4), s(rWS, 4), s(sx), mods="offen", cond=True)
    k.raw("s_mov_b64 exec, 1")
    k.label(l2)
    h0_end(l)
    def register():
        l = h0_begin()
        k("s_lshl_b32", s(sy), s(sBad), 16)
        k("s_add_u32", s(sy), s(sy), 1)
        k("v_mov_b32", v(vReg), s(sy))
        k.raw("s_mov_b64 exec, 1")
        k.raw("s_waitcnt vmcnt(0)")
        k("buffer_atomic_add", v(vReg), v(vZero), s(rDBG, 4), 0, mods="offen offset:128 sc1", cond=True)
        h0_end(l)
    lg = L("good")
    k("s_cmp_eq_u32", s(sBad), 0)
    k("s_cbranch_scc1", lg)
    register()
    k("s_branch", N + "_hfallback")
    k.label(lg)
    k.label(N + "_hstart")
    touch_ws("r1")
    l = h0_begin()
    k.raw("s_mov_b64 exec, 1")
    prog_off()
    k("buffer_load_dword", v(vDum), v(vZero), s(rWS, 4), s(sx), mods="offen sc1", cond=True)
    h0_end(l)
    k("s_lshl_b32", s(sx), s(sR), 2)
    k("s_add_u32", s(sx), s(sx), s(sH))
    if True:
        k("s_mul_i32", s(sx), s(sx), 12288)
        k("buffer_load_dword", v(vDum), v(vPf), s(rWQ, 4), s(sx), mods="offen", tag="PF")
        k.raw("s_mov_b32 exec_hi, 0")
        k("s_add_u32", s(sx), s(sx), 8192)
        k("buffer_load_dword", v(vDum), v(vPf), s(rWQ, 4), s(sx), mods="offen", tag="PF")
        k.raw("s_mov_b64 exec, -1")
    BAR("p")
    BAR("X0")
    def s0_off():
        k("s_lshl_b32", s(sx), s(sX), 4)
    l = h0_begin()
    k("s_cmp_lg_u32", s(sMode), 0)
    k("s_cbranch_scc1", l)
    k("s_cmp_ge_u32", s(sR), 16)
    k("s_cbranch_scc1", l)
    def own():
        s0_off()
        k("s_add_u32", s(sx), s(sx), s(sR))
    publish(rDBG, own, 1, "buffer_store_byte", "")
    h0_end(l)
    k.wait_vm("PF")
    ST("hpf", "a")
    BAR("q")
    sync(0, lambda: poll(rDBG, s0_off, 4, mask_range(lambda: k("s_lshl_b32", s(sy), s(sB), 1), 2), 1, True))
    ST("hs0", "a")
    BAR("Y0")
    lm = L("nr")
    k("s_cmp_lg_u32", s(sMode), 0)
    k("s_cbranch_scc1", lm)
    register()
    k.label(lm)
    BAR("a1")
    npf[0] = 0
    touch_ws("o")
    prefetch(rWO, 0, 512 * 512 * 2)
    if PFA: prefetch(rW1, 0, PFA)
    if GFP == "a1": touch_ws("g")
    BAR("k")
    BAR("s")
    l = h0_begin()
    k.raw("s_mov_b64 exec, 1")
    k("buffer_load_dword", v(vReg), v(vZero), s(rDBG, 4), 0, mods="offen offset:128 sc1", cond=True)
    h0_end(l)
    BAR("X1")
    l = h0_begin()
    k("s_cmp_lg_u32", s(sMode), 0)
    k("s_cbranch_scc1", l)
    publish(rWS, fla_own, 1, "buffer_store_dword", "sc1")
    h0_end(l)
    for n in range(8): ld_64(rWO, 8, n, WOBLK[n], "WO")
    prefetch(rW1, PFA, 512 * 1792 * 2 - PFA)
    if GFP == "x1": touch_ws("g")
    def sa_fast():
        k.raw("s_mov_b64 exec, 1")
        k("s_mov_b32", s(sit), 0)
        lp, lx, lt = L("rp"), L("rx"), L("rt")
        k.label(lp)
        k.raw("s_waitcnt vmcnt(0)")
        k("v_readfirstlane_b32", s(sy), v(vReg))
        k("s_lshr_b32", s(sx), s(sy), 16)
        k("s_cmp_lg_u32", s(sx), 0)
        k("s_cbranch_scc1", lt)
        k("s_cmp_eq_u32", s(sy), 256)
        k("s_cbranch_scc1", lx)
        k("s_add_u32", s(sit), s(sit), 1)
        k("s_cmp_gt_u32", s(sit), LIMIT)
        k("s_cbranch_scc1", lt)
        k("s_sleep", 4)
        k.raw("buffer_load_dword v%d, v%d, s[%d:%d], 0 offen offset:128 sc1" % (vReg, vZero, rDBG, rDBG + 3))
        k("s_branch", lp)
        k.label(lt)
        k("s_mov_b32", s(sAb), 1)
        k.label(lx)
        ls = L("sk")
        k("s_cmp_lg_u32", s(sAb), 0)
        k("s_cbranch_scc1", ls)
        poll(rWS, fla_off, 16, mask_all(lambda: k("s_mov_b32", s(sy), "0x80")), 1, False)
        k.label(ls)
    sync(1, sa_fast)
    l = h0_begin()
    k.raw("s_mov_b64 exec, 1")
    k("v_mov_b32", v(t0), s(sAb))
    k("v_mov_b32", v(t1), ABW)
    k.raw("ds_write_b32 v%d, v%d" % (t1, t0))
    k.raw("s_waitcnt lgkmcnt(0)")
    h0_end(l)
    BAR("Y1")
    k("v_mov_b32", v(t1), ABW)
    k("ds_read_b32", v(t3), v(t1))
    k.wait_lg()
    k("v_readfirstlane_b32", s(sy), v(t3))
    k("s_cmp_lg_u32", s(sy), 0)
    k("s_cbranch_scc1", N + "_hfallback")
    BAR("a2")
    for j in range(6): ld_w1(j)
    BAR("o")
    k.wait_vm("WO")
    BAR("X2")
    def m_half():
        k("s_bfe_u32", s(sy), s(sR), "0x10001")
        k("s_lshl_b32", s(sy), s(sy), 3)
        k("s_lshl_b32", s(sy), "0x00800080", s(sy))
    def lsync(idx, stage, mask_fn):
        def f():
            publish(rWS, prog_own_off, stage, "buffer_store_byte", "")
            poll(rWS, prog_off, 8, mask_fn, stage, False)
        sync(idx, f)
    lsync(2, 1, mask_all(m_half))
    BAR("Y2")
    BAR("a3")
    for j in range(6, 12): ld_w1(j)
    BAR("w")
    BAR("r")
    BAR("X3")
    def m_quarter():
        k("s_lshr_b32", s(sy), s(sR), 3)
        k("s_lshl_b32", s(sy), s(sy), 3)
        k("s_lshl_b32", s(sy), "0x80", s(sy))
    lsync(3, 2, mask_all(m_quarter))
    BAR("Y3")
    BAR("h")
    for j in range(12, 16): ld_w1(j)
    BAR("l")
    k.wait_vm("W1_15")
    BAR("X4")
    lsync(4, 3, mask_range(lambda: k("s_lshl_b32", s(sy), s(sB), 2), 4))
    BAR("Y4")
    BAR("a4")
    if GFP == "a4": touch_ws("g")
    prefetch(rW2, 0, 512 * 1792 * 2)
    for n in range(4): ld_w2(n)
    BAR("g")
    for n in range(4, 20): ld_w2(n)
    k.wait_vm("W2_19")
    ST("hw2", "m")
    BAR("X5")
    lsync(5, 4, mask_all(m_half))
    BAR("Y5")
    BAR("a5")
    BAR("b5")
    for n in range(20, 24): ld_w2(n)
    BAR("b9")
    for n in range(24, 28): ld_w2(n)
    for j in (20, 24):
        k.wait_vm("W2_%d" % (j + 3))
        BAR("b%d" % j)
    BAR("r2")
    k.dump_stamps(rWS, 0)
    k("s_endpgm")
    k.label(N + "_hfallback")
    k("s_mov_b32", s(sMode), 1)
    k("s_mov_b32", s(sAb), 0)
    k.raw("s_waitcnt vmcnt(0) lgkmcnt(0)")
    k("s_barrier")
    l = h0_begin()
    gbar(6)
    h0_end(l)
    k("s_barrier")
    k("s_branch", N + "_hstart")
    k.label(N + "_done")
    k("s_endpgm")
    assert bars["C"] == bars["H"], (bars["C"], bars["H"])
    assert k.snext <= 80, k.snext
    if PROF: print("STAMPS", " ".join(sorted(slots, key=slots.get)))
    return k, 768, 163840

if __name__ == "__main__":
    gen.build_list([gen_main()], sys.argv[1] if len(sys.argv) > 1 else "cdna_kernels/%s.s" % NAME)
```

```python
import sys, os, math, struct
sys.path.insert(0, "dev")
from asmlib import *
import gen
from gen import unpack, phi_pack, LOG2E, HI
from gen2 import bf16r, rowln, f2h

NAME = gen.NAME
MB = 1 << 20
WS_PART, WS_FLA = 16 * MB, 17 * MB
R2, HALF, PROGO = 256 * 1024, 448 * 1024, 1152 * 1024
PROF = bool(int(os.environ.get("PROF", "0")))
PROFSET = os.environ.get("PROFSET", "m")

rX, rWQ, rWO, rW1, rB1, rW2, rB2, rOUT, rDBG, rWS = 4, 8, 12, 16, 20, 24, 28, 32, 36, 40
BLK = 8192
W1BLK = [8, 9, 10, 11, 4, 5, 6, 0, 1, 2, 3, 7, 16, 17, 18, 19]
W2BLK = [12, 13, 14, 15] + W1BLK
W2BLK = W2BLK + W2BLK[:8]
WOBLK = [12 + n for n in range(8)]
P0SCR = 12 * BLK
KVSCR = 4 * BLK
OSCR = 7 * BLK
ABW = 19 * BLK
P2SCR = 12 * BLK
LSCR = 12 * BLK
LIMIT = 1 << 15
SP = int(os.environ.get("SP", "20"))
NQ = 4
PFA = int(os.environ.get("PFA", "6")) * 32 * 3584
GFP = os.environ.get("GFP", "a1")
SCHED = dict(x.split(":") for x in os.environ.get("SCHED", "a1:,ps:o.a.b.w0.w1.w2,y1:w3.w4.w5.w6,a3:,xl:,xf:v0.v3.v4.v1,a4:g.v5.v2.v6").split(","))
SQ = [x for x in os.environ.get("SQ", "r.q").split(".") if x]
SS = {a: int(b) for a, b in (x.split(":") for x in os.environ.get("SS", "p:14,X0:8,q:7,Y0:24,a1:17").split(",") if x)}
A4T = int(os.environ.get("A4T", "1"))
WOT = int(os.environ.get("WOT", "0"))
A1W = int(os.environ.get("A1W", "0"))
FW2 = int(os.environ.get("FW2", "14"))
P3H = ()

def gemm1(k, steps, T, rd, mfma, pre=None):
    j0 = steps[0]
    if pre: pre(j0)
    for t in range(T): rd(j0, t)
    for n, j in enumerate(steps):
        nxt = steps[n + 1] if n + 1 < len(steps) else None
        if nxt is not None and pre: pre(nxt)
        for t in range(T):
            k.wait_lg("f%d_%d" % (j, t))
            mfma(j, t)
            if nxt is not None: rd(nxt, t)

def gemm_ring(k, seq, rd, mf, ring, pre_rd=None, post_mf=None):
    def R(n):
        if pre_rd: pre_rd(seq[n])
        rd(seq[n], n % ring, "f%d" % n)
    for n in range(min(ring, len(seq))): R(n)
    for n, it in enumerate(seq):
        k.wait_lg("f%d" % n)
        mf(it, n % ring)
        if post_mf: post_mf(it)
        if n + ring < len(seq): R(n + ring)

def gen_main():
    k = Kern("fused_kernel")
    k.prof = PROF
    k.ndump = 16
    slots = {}
    def ST(name, grp="m"):
        if PROF and set(grp) & set(PROFSET):
            if name not in slots: slots[name] = len(slots)
            k.stamp(slots[name])
    k.snext = 44
    k.vnext = 1
    N = k.name
    if PROF:
        for i in range(16): k("s_mov_b32", s(82 + i), 0)
    ST("start", "mabcd")
    k("s_cmp_ge_u32", "s2", 256)
    k("s_cbranch_scc1", N + "_done")
    srds = [(rX, 0, 2 * MB), (rWQ, 1, 512 * 1536 * 2), (rWO, 2, 512 * 512 * 2), (rW1, 4, 512 * 1792 * 2), (rB1, 5, 1792 * 2),
            (rW2, 6, 1792 * 512 * 2), (rB2, 7, 1024), (rOUT, 8, 2 * MB), (rDBG, 9, 256), (rWS, 10, 32 * MB)]
    for r, sl, sz in srds:
        k("s_load_dwordx2", s(r, 2), "s[0:1]", sl * 8)
    for r, sl, sz in srds:
        k("s_mov_b32", s(r + 2), hex(sz))
        k("s_mov_b32", s(r + 3), "0x20000")
    S = lambda: k.salloc()
    sW, sX, sR, sMode, sAb, sBad = S(), S(), S(), S(), S(), S()
    sx, sy, sO, sit, sOne = S(), S(), S(), S(), S()
    sB, sHg, smt1, smt2, sNb, sG, sWq, sA, sLo = S(), S(), S(), S(), S(), S(), S(), S(), S()
    sC = k.salloc(8, 4)
    sT1, sT2 = S(), S()
    sH, sHq, sH1k, sH8k = smt1, smt2, sG, sWq
    V = lambda n=1: k.valloc(n)
    vL, vG, vL16, vT8 = V(), V(), V(), V()
    t0, t1, t2, t3 = V(), V(), V(), V()
    vXo = V()
    ones = V(2)
    pq, hr, xr = V(4), V(4), V(4)
    b2r = xr
    vTb = V(21 + 3)
    vT = [vTb + i for i in range(24)]
    vA = [vL16, vT[21], vT[22]]
    vB = [vT[12], vT[13], vT[14]]
    acc = V(28)
    bf = V(28)
    xa = V(64)
    assert k.vnext <= 168, k.vnext
    vBq, vB64, vBw1, vPf, vL4, vZero, vMask, vReg, vDum, vBa = [acc + i for i in range(10)]
    vBb, vBt = acc + 10, acc + 12

    lab = [0]
    def L(p):
        lab[0] += 1
        return "%s_%s%d" % (N, p, lab[0])
    bars = {"C": [], "H": []}
    role = ["C"]
    def BAR(name, cls=None):
        if cls is None:
            for c in cbars: c.append(name)
            bars[role[0]].append(name)
            if role[0] == "H": sp(SS.get(name, 0))
            k("s_barrier")
            return
        cbars[cls].append(name)
        if cls == 0: bars[role[0]].append(name)
        l = L("cb")
        k("s_cmp_eq_u32", s(sG), 1 - cls)
        k("s_cbranch_scc1", l)
        k("s_barrier")
        k.label(l)
    cbars = [[], []]
    sPp = k.salloc(2)
    spq = {"lines": [], "q": list(SQ)}
    def sp(n):
        if not n or not (spq["lines"] or spq["q"]): return
        l = L("sp")
        k("s_cmp_eq_u32", s(sH), 0)
        k("s_cbranch_scc1", l)
        for _ in range(n):
            if not spq["lines"]:
                if not spq["q"]: break
                pc = spq["q"].pop(0)
                if pc == "q":
                    k("s_lshl_b32", s(sC + 6), s(sR), 4)
                    k("s_mul_i32", s(sC + 7), s(sH), 5)
                    k("s_add_u32", s(sC + 6), s(sC + 6), s(sC + 7))
                    k("s_sub_u32", s(sC + 6), s(sC + 6), 5)
                    k("s_mul_i32", s(sC + 6), s(sC + 6), 3072)
                    k("s_add_u32", s(sC + 6), s(sC + 6), 60)
                    k("s_add_u32", s(sPp), s(rWQ), s(sC + 6))
                    k("s_addc_u32", s(sPp + 1), s(rWQ + 1), 0)
                    spq["lines"] = [(i >> 3) * 24 + (i & 7) for i in range(48)]
            if not spq["lines"]:
                nl = 160 if pc == "g" else 64
                per = (nl + 2) // 3
                if pc in "ab": srd, base = rWO, (pc == "b") * 262144
                elif pc[0] == "w": srd, base = rW1, int(pc[1:]) * 262144
                elif pc[0] == "v": srd, base = rW2, int(pc[1:]) * 262144
                else: srd, base = rWS, (0 if pc == "r" else R2 + (0 if pc == "o" else 128 * 1024))
                if pc == "r":
                    k("s_lshl_b32", s(sC + 6), s(sR), 13)
                    k("s_lshl_b32", s(sC + 7), s(sX), 21)
                    k("s_add_u32", s(sC + 6), s(sC + 6), s(sC + 7))
                elif srd == rWS:
                    k("s_and_b32", s(sC + 6), s(sR), 15)
                    k("s_mul_i32", s(sC + 6), s(sC + 6), nl * 128)
                    k("s_lshr_b32", s(sC + 7), s(sR), 4)
                    k("s_mul_i32", s(sC + 7), s(sC + 7), HALF)
                    k("s_add_u32", s(sC + 6), s(sC + 6), s(sC + 7))
                    k("s_lshl_b32", s(sC + 7), s(sX), 21)
                    k("s_add_u32", s(sC + 6), s(sC + 6), s(sC + 7))
                else:
                    k("s_mul_i32", s(sC + 6), s(sR), nl * 128)
                assert 2 * (per - 1) + per == nl
                k("s_mul_i32", s(sC + 7), s(sH), (per - 1) * 128)
                k("s_add_u32", s(sC + 6), s(sC + 6), s(sC + 7))
                k("s_add_u32", s(sC + 6), s(sC + 6), hex(base + 60 - (per - 1) * 128 + (1 << 32)) if base + 60 < (per - 1) * 128 else hex(base + 60 - (per - 1) * 128))
                k("s_add_u32", s(sPp), s(srd), s(sC + 6))
                k("s_addc_u32", s(sPp + 1), s(srd + 1), 0)
                spq["lines"] = list(range(per))
            i = spq["lines"].pop(0)
            k.raw("s_load_dwordx2 s[%d:%d], s[%d:%d], 0x%x" % (sC + 4, sC + 5, sPp, sPp + 1, i * 128))
        k.label(l)

    k("v_lshrrev_b32", v(t0), 6, "v0")
    k("v_readfirstlane_b32", s(sW), v(t0))
    k("s_and_b32", s(sX), "s2", 7)
    k("s_lshr_b32", s(sR), "s2", 3)
    k("v_and_b32", v(vL), 63, "v0")
    k("v_bfe_u32", v(vG), "v0", 4, 2)
    k("v_lshlrev_b32", v(vL16), 4, v(vL))
    k("s_and_b32", s(sB), s(sR), 1)
    k("s_lshr_b32", s(sHg), s(sR), 1)
    k("s_lshr_b32", s(sNb), s(sR), 2)
    k("s_mov_b32", s(sMode), 0)
    k("s_mov_b32", s(sAb), 0)
    k("s_mul_i32", s(sT1), s(sX), hex(2 * MB - 256 * 1024))
    k("s_mul_i32", s(sT2), s(sX), hex(2 * MB - 896 * 1024))
    k("s_add_u32", s(sT2), s(sT2), hex(R2))
    k.raw("s_getreg_b32 s%d, hwreg(HW_REG_XCC_ID)" % sBad)
    k("s_and_b32", s(sBad), s(sBad), 15)
    k("s_cmp_lg_u32", s(sBad), s(sX))
    k("s_cselect_b32", s(sBad), 1, 0)
    k("s_cmp_ge_u32", s(sW), 8)
    k("s_cbranch_scc1", N + "_helper")

    k("v_lshlrev_b32", v(vT8), 3, "v0")
    k("v_add_u32", v(vA[1]), "0x10000", v(vL16))
    k("v_add_u32", v(vA[2]), "0x20000", v(vL16))
    k("s_mov_b32", s(sOne), "0x3f803f80")
    k("s_lshl_b32", s(smt1), s(sX), 4)
    k("s_lshl_b32", s(sx), s(sB), 3)
    k("s_add_u32", s(smt1), s(smt1), s(sx))
    k("s_add_u32", s(smt1), s(smt1), s(sW))
    k("s_lshr_b32", s(sG), s(sW), 2)
    k("s_and_b32", s(sWq), s(sW), 3)
    k("s_and_b32", s(sx), s(sR), 3)
    k("s_lshl_b32", s(sx), s(sx), 2)
    k("s_lshl_b32", s(smt2), s(sX), 4)
    k("s_add_u32", s(smt2), s(smt2), s(sx))
    k("s_add_u32", s(smt2), s(smt2), s(sWq))
    k("s_lshl_b32", s(sx), s(smt2), 14)
    k("s_lshl_b32", s(sO), s(sNb), 7)
    k("s_add_u32", s(sx), s(sx), s(sO))
    k("s_lshl_b32", s(sO), s(sG), 6)
    k("s_add_u32", s(sx), s(sx), s(sO))
    k("v_and_b32", v(t0), 15, "v0")
    k("v_lshlrev_b32", v(vXo), 10, v(t0))
    k("v_lshl_add_u32", v(vXo), v(vG), 3, v(vXo))
    k("v_add_u32", v(vXo), s(sx), v(vXo))
    k.wait_smem()
    for r, sl, sz in srds:
        k("s_and_b32", s(r + 1), s(r + 1), "0xffff")
    k("s_cmp_lg_u32", s(sBad), 0)
    k("s_cbranch_scc1", N + "_cfallback")
    k.label(N + "_cstart")
    for i in range(2): k("v_mov_b32", v(ones + i), "0x3f803f80")
    ST("go", "a")

    D = xa; TL = xa + 8
    lp0 = L("p0a")
    k("s_cmp_ge_u32", s(sR), 16)
    k("s_cbranch_scc1", lp0)
    k("v_lshrrev_b32", v(t0), 5, v(vL))
    k("v_and_b32", v(t1), 31, v(vL))
    k("v_lshlrev_b32", v(t2), 10, v(t0))
    k("v_lshl_add_u32", v(t2), v(t1), 4, v(t2))
    k("s_lshl_b32", s(sx), s(sX), 4)
    k("s_add_u32", s(sx), s(sx), s(sR))
    k("s_lshl_b32", s(sx), s(sx), 14)
    k("s_lshl_b32", s(sy), s(sW), 11)
    k("s_add_u32", s(sx), s(sx), s(sy))
    k("buffer_load_dwordx4", v(D, 4), v(t2), s(rX, 4), s(sx), mods="offen", tag="X0", cond=True)
    k("buffer_load_dwordx4", v(D + 4, 4), v(t2), s(rX, 4), s(sx), mods="offen offset:512", tag="X0", cond=True)
    k("v_lshrrev_b32", v(t2), 2, v(t1))
    k("v_mul_u32_u24", v(t2), 1056, v(t2))
    k("v_and_b32", v(t3), 3, v(t1))
    k("v_lshl_add_u32", v(t2), v(t3), 8, v(t2))
    k("v_lshl_add_u32", v(t2), v(t0), 4, v(t2))
    k("s_lshl_b32", s(sy), s(sW), 5)
    k("s_add_u32", s(sy), s(sy), P0SCR)
    k("v_add_u32", v(t2), s(sy), v(t2))
    k("s_mul_i32", s(sy), s(sW), 2112)
    k("s_add_u32", s(sy), s(sy), P0SCR)
    k("v_add_u32", v(t3), s(sy), v(vL16))
    k.raw("s_waitcnt vmcnt(0)")
    ST("xw", "a")
    rowln(k, D, TL, sOne, 1)
    k("ds_write_b128", v(t2), v(D, 4))
    k("ds_write_b128", v(t2), v(D + 4, 4), mods="offset:%d" % (8 * 1056))
    k.wait_lg()
    k.label(lp0)
    BAR("p")
    lp0 = L("p0b")
    k("s_cmp_ge_u32", s(sR), 16)
    k("s_cbranch_scc1", lp0)
    k("ds_read_b128", v(D, 4), v(t3))
    k("ds_read_b128", v(D + 4, 4), v(t3), mods="offset:1056")
    k("s_add_u32", s(sx), s(sx), s(sT1))
    k.wait_lg()
    k("buffer_store_dwordx4", v(D, 4), v(vL16), s(rWS, 4), s(sx), mods="offen", tag="XS", cond=True)
    k("buffer_store_dwordx4", v(D + 4, 4), v(vL16), s(rWS, 4), s(sx), mods="offen offset:1024", tag="XS", cond=True)
    k.label(lp0)
    k("v_bfe_u32", v(t0), v(vL), 2, 2)
    k("v_and_b32", v(t2), 1, v(vG))
    k("v_lshl_add_u32", v(t0), v(t2), 3, v(t0))
    k("v_lshlrev_b32", v(t0), 6, v(t0))
    k("v_and_b32", v(t1), 1, v(vL))
    k("v_lshl_add_u32", v(t0), v(t1), 3, v(t0))
    k("v_bfe_u32", v(t1), v(vL), 1, 1)
    k("v_lshlrev_b32", v(t2), 1, v(t2))
    k("v_xor_b32", v(t1), v(t1), v(t2))
    k("v_lshrrev_b32", v(t3), 1, v(vG))
    for t in range(2):
        if t: k("v_xor_b32", v(t1), 2, v(t1))
        k("v_lshl_add_u32", v(t2), v(t1), 4, v(t0))
        k("v_lshl_add_u32", v(vT[t]), v(t3), 10, v(t2))
        k("v_add_u32", v(vT[2 + t]), "0x10000", v(vT[t]))
    vBqc = vT[6]
    k("v_lshrrev_b32", v(t0), 2, v(vL))
    k("v_and_b32", v(t1), 3, v(vL))
    k("v_lshrrev_b32", v(t2), 3, v(t0))
    k("v_lshlrev_b32", v(t2), 1, v(t2))
    k("v_xor_b32", v(t1), v(t1), v(t2))
    k("v_mul_u32_u24", v(vBqc), "0xc00", v(t0))
    k("v_lshl_add_u32", v(vBqc), v(t1), 4, v(vBqc))
    k("s_lshl_b32", s(sx), s(sHg), 6)
    k("v_add_u32", v(vBqc), s(sx), v(vBqc))
    k("s_mul_i32", s(sx), s(sW), 98304)
    k("s_lshl_b32", s(sy), s(sW), 11)
    for t in range(2): k("v_mov_b32", v(vT[8 + t]), v(vT[t]))
    for t in range(4): k("v_add_u32", v(vT[t]), s(sy), v(vT[t]))
    k("v_add_u32", v(vT[4]), s(sy), v(vL16))
    k("v_add_u32", v(vT[5]), s(sy), v(vA[1]))
    k.wait_vm()
    ST("xs", "a")
    BAR("X0")
    BAR("q")
    for seg in (1, 2):
        for i in range(2):
            for c in range(2):
                k("s_add_u32", s(sO), s(sx), hex(i * 8 * 98304 + c * 49152 + seg * 1024))
                k("s_add_u32", "m0", s(sy), hex(seg * 32768 + i * 16384 + c * 1024))
                k("buffer_load_dwordx4", v(vBqc), s(rWQ, 4), s(sO), mods="offen lds", tag="WQ%d" % seg)
    for t in range(2):
        k("buffer_load_dwordx2", v(xr + 2 * t, 2), v(vXo), s(rX, 4), 0, mods="offen offset:%d" % (32 * t), tag="XR")
    k("s_mul_i32", s(sO), s(sHg), 224)
    k("v_lshlrev_b32", v(t0), 3, v(vL))
    k("v_add_u32", v(t0), s(sO), v(t0))
    k("buffer_load_dwordx2", v(vT[12], 2), v(t0), s(rB1, 4), 0, mods="offen", tag="BI")
    k("s_lshl_b32", s(sx), s(smt1), 14)
    k("s_add_u32", s(sx), s(sx), s(sT1))
    def tr_wq(segs, R):
        units = [(seg, i, t) for seg in segs for i in range(2) for t in range(2)]
        for n, (seg, i, t) in enumerate(units):
            for h in range(2):
                off = seg * 32768 + i * 16384 + 256 * h
                a = vT[t]
                if off >= 65536: a, off = vT[2 + t], off - 65536
                k("ds_read_b64_tr_b16", v(R + 4 * n + 2 * h, 2), v(a), mods="offset:%d" % off)
        k.wait_lg()
        for n, (seg, i, t) in enumerate(units):
            off = seg * 32768 + i * 16384 + 1024 * t
            k("ds_write_b128", v(vT[4 + (off >> 16)]), v(R + 4 * n, 4), mods="offset:%d" % (off & 65535))
        k.wait_lg()
    k.wait_vm("WQ2")
    ST("wq", "a")
    tr_wq((1, 2), xa)
    BAR("Y0")
    ST("S0", "ma")

    def lda16():
        for j in range(16):
            if j % 4 == 0 and j: k("s_add_u32", s(sx), s(sx), 4096)
            k("buffer_load_dwordx4", v(xa + 4 * j, 4), v(vL16), s(rWS, 4), s(sx), mods=("offen offset:%d sc1" % ((j & 3) * 1024)) if j & 3 else "offen sc1", tag="A%d" % j)
    lda16()
    BAR("a1", 1)
    def rd1(it, slot, tag):
        j, t6 = it
        off = (t6 >> 1) * 32768 + j * 2048 + (t6 & 1) * 1024
        k("ds_read_b128", v(bf + 4 * slot, 4), v(vA[off >> 16]), mods="offset:%d" % (off & 65535), tag=tag)
    def mf1(it, slot):
        j, t6 = it
        W = v(bf + 4 * slot, 4); X = v(xa + 4 * j, 4); C = v(acc + 4 * t6, 4)
        k.wait_vm("A%d" % j)
        a, b = (W, X) if t6 < 2 else (X, W)
        k("v_mfma_f32_16x16x32_bf16", C, a, b, (C if j else 0))
    gemm_ring(k, [(j, t6) for j in range(16) for t6 in (2, 3, 4, 5)], rd1, mf1, 7)
    ST("kvG", "ma")
    T = bf; pk = bf + 12; vv = bf + 16
    kvr = [acc, acc + 4, bf + 20, bf + 24]
    for t in range(2):
        phi_pack(k, acc + 8 + 4 * t, pk + 2 * t, T, sC)
        k("v_cvt_pk_bf16_f32", v(vv + 2 * t), v(acc + 16 + 4 * t), v(acc + 17 + 4 * t))
        k("v_cvt_pk_bf16_f32", v(vv + 2 * t + 1), v(acc + 18 + 4 * t), v(acc + 19 + 4 * t))
    for t in range(2):
        k("v_mfma_f32_16x16x16_bf16", v(kvr[t], 4), v(pk + 2 * t, 2), v(vv + 2 * t, 2), 0)
        k("v_mfma_f32_16x16x16_bf16", v(kvr[2 + t], 4), v(pk + 2 * t, 2), v(ones, 2), 0)
    k("s_lshl_b32", s(sx), s(sW), 12)
    k("v_add_u32", v(t1), s(sx), v(vL16))
    BAR("a1", 0)
    BAR("k")
    for a in range(4):
        k("ds_write_b128", v(t1), v(kvr[a], 4), mods="offset:%d" % (KVSCR + a * 1024))
    k.wait_lg()
    BAR("s")
    R = acc + 8
    k("v_mov_b32", v(t1), ABW)
    k("ds_read_b32", v(t3), v(t1))
    for w in range(8):
        k("ds_read_b64", v(R + 2 * w, 2), v(vT8), mods="offset:%d" % (KVSCR + w * 4096))
    k.wait_lg()
    k("v_readfirstlane_b32", s(sy), v(t3))
    k("s_cmp_lg_u32", s(sy), 0)
    k("s_cbranch_scc1", N + "_cfallback")
    for w in range(1, 8):
        k("v_pk_add_f32", v(R, 2), v(R, 2), v(R + 2 * w, 2))
    k("s_lshl_b32", s(sx), s(sHg), 4)
    k("s_lshl_b32", s(sy), s(sX), 1)
    k("s_add_u32", s(sx), s(sx), s(sy))
    k("s_add_u32", s(sx), s(sx), s(sB))
    k("s_lshl_b32", s(sx), s(sx), 12)
    k("s_add_u32", s(sx), s(sx), hex(WS_PART))
    vPo = vT[15]
    k("v_bfe_u32", v(t0), "v0", 7, 1)
    k("v_lshlrev_b32", v(t0), 6, v(t0))
    k("v_bfe_u32", v(t2), "v0", 5, 2)
    k("v_lshl_add_u32", v(t0), v(t2), 4, v(t0))
    k("v_and_b32", v(t2), 1, "v0")
    k("v_lshl_add_u32", v(t0), v(t2), 3, v(t0))
    k("v_add_u32", v(t0), 2048, v(t0))
    k("s_cmp_ge_u32", s(sW), 4)
    k("s_cselect_b64", "vcc", -1, 0)
    k("v_cndmask_b32", v(vPo), v(vT8), v(t0), "vcc")
    k("s_cselect_b32", s(sy), 3, -1)
    k("s_mov_b32", "exec_lo", s(sy))
    k("s_mov_b32", "exec_hi", s(sy))
    k("buffer_store_dwordx2", v(R, 2), v(vPo), s(rWS, 4), s(sx), mods="offen sc1", tag="PS")
    k.raw("s_mov_b64 exec, -1")
    BAR("ps")
    ST("pubA", "m")
    def rdq(it, slot, tag):
        j, t = it
        for h in range(2):
            k("ds_read_b64_tr_b16", v(bf + 4 * slot + 2 * h, 2), v(vT[8 + t]), mods="offset:%d" % (j * 2048 + 256 * h), tag=tag)
    gemm_ring(k, [(j, t6) for j in range(16) for t6 in (0, 1)], rdq, mf1, 7)
    for t in range(2):
        phi_pack(k, acc + 4 * t, pq + 2 * t, T, sC)
    def tr64():
        k("v_bfe_u32", v(t0), v(vL), 2, 2)
        k("v_lshl_add_u32", v(t1), v(vG), 2, v(t0))
        k("v_bfe_u32", v(t2), v(t1), 1, 2)
        k("v_lshlrev_b32", v(t0), 7, v(t1))
        k("v_and_b32", v(t1), 3, v(vL))
        k("v_lshl_add_u32", v(t0), v(t1), 3, v(t0))
        for t in range(4):
            k("v_xor_b32", v(t1), t, v(t2))
            k("v_lshl_add_u32", v(vT[t]), v(t1), 5, v(t0))
        k("s_lshl_b32", s(sy), s(sG), 12)
    def tr_units(sbase, nu):
        for t in range(4): k("v_add_u32", v(vT[4 + t]), s(sbase), v(vT[t]))
        k("v_add_u32", v(vT[8]), s(sbase), v(vL16))
        for u0 in range(0, nu, 4):
            us = list(range(u0, min(nu, u0 + 4)))
            for u in us:
                for t in range(4):
                    for h in range(2):
                        k("ds_read_b64_tr_b16", v(xa + 16 * (u - u0) + 4 * t + 2 * h, 2), v(vT[4 + t]), mods="offset:%d" % (u * 4096 + h * 2048), tag="u%d" % u)
            for u in us:
                k.wait_lg("u%d" % u)
                for t in range(4):
                    k("ds_write_b128", v(vT[8]), v(xa + 16 * (u - u0) + 4 * t, 4), mods="offset:%d" % (u * 4096 + t * 1024))
            k.wait_lg()
    tr64()
    k("s_lshl_b32", s(sy), s(sG), 12)
    k("s_add_u32", s(sy), s(sy), "0x10000")
    for t in range(4):
        k("v_add_u32", v(vT[7 + t]), s(sy), v(vT[t]))
        k("v_add_u32", v(vT[16 + t]), "0x10000", v(vT[7 + t]))
    k("s_mul_i32", s(sy), s(sHg), 224)
    k("s_bfe_u32", s(sx), s(sy), "0x10005")
    k("s_lshl_b32", s(sx), s(sx), 1)
    k("v_bfe_u32", v(t0), v(vL), 2, 2)
    k("v_lshl_add_u32", v(t0), v(vG), 2, v(t0))
    k("v_and_b32", v(t1), 7, v(t0))
    k("v_lshlrev_b32", v(t1), 1, v(t1))
    k("v_lshlrev_b32", v(t0), 8, v(t0))
    k("v_and_b32", v(t2), 1, v(vL))
    k("v_lshl_add_u32", v(t0), v(t2), 3, v(t0))
    k("v_bfe_u32", v(t2), v(vL), 1, 1)
    k("v_add_u32", v(t2), s(sx), v(t2))
    for t in range(7):
        k("v_add_u32", v(t3), 2 * t, v(t2))
        k("v_xor_b32", v(t3), v(t3), v(t1))
        k("v_lshl_add_u32", v(vT[t]), v(t3), 4, v(t0))
    BIAS = W1BLK[0] * BLK + 7168
    def tr_w1(js):
        l = L("tw")
        k("s_cmp_ge_u32", s(sW), len(js))
        k("s_cbranch_scc1", l)
        k("s_mul_i32", s(sy), s(sW), 5)
        k("s_lshr_b32", s(sy), hex(sum(W1BLK[j] << (5 * i) for i, j in enumerate(js))), s(sy))
        k("s_and_b32", s(sy), s(sy), 31)
        k("s_lshl_b32", s(sy), s(sy), 13)
        for t in range(7): k("v_add_u32", v(bf + t), s(sy), v(vT[t]))
        k("v_add_u32", v(bf + 7), s(sy), v(vL16))
        for t in range(7):
            for h in range(2):
                k("ds_read_b64_tr_b16", v(xa + 4 * t + 2 * h, 2), v(bf + t), mods="offset:%d" % (h * 4096))
        k.wait_lg()
        for t in range(7):
            k("ds_write_b128", v(bf + 7), v(xa + 4 * t, 4), mods="offset:%d" % (t * 1024))
        if js[0] == 0:
            l2 = L("bt")
            k("s_cmp_lg_u32", s(sW), 0)
            k("s_cbranch_scc1", l2)
            for q in range(2): unpack(k, xa + 56 + 2 * q, xa + 57 + 2 * q, vT[12] + q)
            k.raw("s_mov_b64 exec, 0xfffffff")
            k("ds_write_b128", v(bf + 7), v(xa + 56, 4), mods="offset:7168")
            k.raw("s_mov_b64 exec, -1")
            k.label(l2)
        k.wait_lg()
        k.label(l)
    l = L("fm")
    k("s_cmp_eq_u32", s(sMode), 0)
    k("s_cbranch_scc1", l)
    k.raw("s_waitcnt vmcnt(0)")
    k.label(l)
    BAR("X1")
    BAR("Y1")
    ST("SA", "m")

    pr = xa
    lp, lx = L("pp"), L("px")
    k("s_mov_b32", s(sit), 0)
    k.label(lp)
    k("s_lshl_b32", s(sx), s(sHg), 16)
    k("s_add_u32", s(sx), s(sx), hex(WS_PART))
    for m in range(16):
        k("buffer_load_dwordx2", v(pr + 2 * m, 2), v(vPo), s(rWS, 4), s(sx), mods="offen sc1", tag="P")
        if m < 15: k("s_add_u32", s(sx), s(sx), 4096)
    k.wait_vm("P")
    k("v_max3_u32", v(t0), v(pr), v(pr + 1), v(pr + 2))
    k("v_max3_u32", v(t1), v(pr + 3), v(pr + 4), v(pr + 5))
    for m in range(6, 30, 4):
        k("v_max3_u32", v(t0), v(t0), v(pr + m), v(pr + m + 1))
        k("v_max3_u32", v(t1), v(t1), v(pr + m + 2), v(pr + m + 3))
    k("v_max3_u32", v(t0), v(t0), v(pr + 30), v(pr + 31))
    k("v_max_u32", v(t0), v(t0), v(t1))
    k("v_cmp_eq_u32", "vcc", -1, v(t0))
    k("s_add_u32", s(sit), s(sit), 1)
    k.raw("s_nop 4")
    k.raw("s_cbranch_vccz %s" % lx)
    k("s_cmp_lt_u32", s(sit), 4096)
    k("s_cbranch_scc1", lp)
    k.label(lx)
    ST("prt", "m")
    for m in range(1, 16):
        k("v_pk_add_f32", v(pr, 2), v(pr, 2), v(pr + 2 * m, 2))
    k("v_cvt_pk_bf16_f32", v(pr + 2), v(pr), v(pr + 1))
    k("v_lshlrev_b32", v(t0), 2, "v0")
    k("ds_write_b32", v(t0), v(pr + 2), mods="offset:%d" % OSCR)
    k.wait_lg()
    BAR("o")
    fr = xa + 32; nd = xa + 40; o = xa + 56
    k("v_lshlrev_b32", v(t0), 3, v(vL))
    for a in range(4):
        k("ds_read_b64", v(fr + 2 * a, 2), v(t0), mods="offset:%d" % (OSCR + a * 512))
    k.wait_lg()
    for h in range(2):
        k("v_mfma_f32_16x16x16_bf16", v(nd + 4 * h, 4), v(fr + 2 * h, 2), v(pq + 2 * h, 2), 0)
        k("v_mfma_f32_16x16x16_bf16", v(nd + 8 + 4 * h, 4), v(fr + 4 + 2 * h, 2), v(pq + 2 * h, 2), 0)
    for h in range(2):
        d = T + 8 * h; a = [d + 2 + q for q in range(4)]; u0, u1 = d + 6, d + 7
        bf16r(k, d, nd + 8 + 4 * h)
        k("v_add_f32", v(d), "0x358637bd", v(d))
        bf16r(k, d, d)
        k("v_rcp_f32", v(d), v(d))
        k("v_cvt_pk_bf16_f32", v(u0), v(nd + 4 * h), v(nd + 4 * h + 1))
        k("v_cvt_pk_bf16_f32", v(u1), v(nd + 4 * h + 2), v(nd + 4 * h + 3))
        unpack(k, a[0], a[1], u0); unpack(k, a[2], a[3], u1)
        for q in range(4): k("v_mul_f32", v(a[q]), v(a[q]), v(d))
        k("v_cvt_pk_bf16_f32", v(o + 2 * h), v(a[0]), v(a[1]))
        k("v_cvt_pk_bf16_f32", v(o + 2 * h + 1), v(a[2]), v(a[3]))
    k("s_lshl_b32", s(sx), s(smt1), 4)
    k("s_add_u32", s(sx), s(sx), s(sHg))
    k("s_lshl_b32", s(sx), s(sx), 10)
    k("s_add_u32", s(sx), s(sx), s(sT1))
    k("s_mul_i32", s(sy), s(sB), HALF - 128 * 1024)
    k("s_add_u32", s(sx), s(sx), s(sy))
    k("s_add_u32", s(sx), s(sx), hex(R2))
    k("buffer_store_dwordx4", v(o, 4), v(vL16), s(rWS, 4), s(sx), mods="offen", tag="OS")
    def a_base(NH, abase, AJ):
        k("s_mul_i32", s(sA), s(smt2), AJ * 1024)
        k("s_mul_i32", s(sy), s(sG), NH * 1024)
        k("s_add_u32", s(sA), s(sA), s(sy))
        k("s_add_u32", s(sA), s(sA), s(abase))
    a_base(8, sT1, 16)
    k("s_bfe_u32", s(sy), s(sR), "0x10001")
    k("s_mul_i32", s(sy), s(sy), HALF - 128 * 1024)
    k("s_add_u32", s(sA), s(sA), s(sy))
    k("s_add_u32", s(sA), s(sA), hex(R2))
    k.wait_vm("OS")
    BAR("X2")
    tr_w1(list(range(6)))
    BAR("Y2")
    ST("SB", "m")

    def g64(NH, blks, NA):
        st = {"n": 0}
        def lda():
            n = st["n"]
            if n >= NH: return
            if n % 4 == 0 and n: k("s_add_u32", s(sA), s(sA), 4096)
            k("buffer_load_dwordx4", v(xa + 4 * (n % NA), 4), v(vL16), s(rWS, 4), s(sA), mods=("offen offset:%d sc1" % ((n & 3) * 1024)) if n & 3 else "offen sc1", tag="A%d" % n)
            st["n"] += 1
        for n in range(min(NH, NA)): lda()
        def rd(it, slot, tag):
            j, t = it
            base = blks[j] * BLK
            win = base >> 16
            if NH == 8:
                for h in range(2):
                    k("ds_read_b64_tr_b16", v(bf + 4 * slot + 2 * h, 2), v(vT[(7 if win == 1 else 16) + t]),
                      mods="offset:%d" % (base - (win << 16) + h * 2048), tag=tag)
            else:
                for h in range(2):
                    k("ds_read_b64_tr_b16", v(bf + 4 * slot + 2 * h, 2), v(vT[4 * win + t]),
                      mods="offset:%d" % (base - (win << 16) + h * 2048), tag=tag)
        def mf(it, slot):
            j, t = it
            C = v(acc + 4 * t, 4)
            if t == 0: k.wait_vm("A%d" % j)
            k("v_mfma_f32_16x16x32_bf16", C, v(bf + 4 * slot, 4), v(xa + 4 * (j % NA), 4), (C if j else 0))
            if t == 3: lda()
        return rd, mf
    def g64_reduce(scr, bname):
        ln = L("ns")
        k("s_cmp_eq_u32", s(sG), 0)
        k("s_cbranch_scc1", ln)
        for i in range(8): k("v_swap_b32", v(acc + i), v(acc + 8 + i))
        k.label(ln)
        k("s_lshl_b32", s(sy), s(sW), 11)
        k("s_add_u32", s(sy), s(sy), scr)
        k("v_add_u32", v(t0), s(sy), v(vL16))
        k("s_xor_b32", s(sy), s(sW), 4)
        k("s_lshl_b32", s(sy), s(sy), 11)
        k("s_add_u32", s(sy), s(sy), scr)
        k("v_add_u32", v(t1), s(sy), v(vL16))
        k("ds_write_b128", v(t0), v(acc + 8, 4))
        k("ds_write_b128", v(t0), v(acc + 12, 4), mods="offset:1024")
        k.wait_lg()
        BAR(bname)
        k("ds_read_b128", v(acc + 8, 4), v(t1))
        k("ds_read_b128", v(acc + 12, 4), v(t1), mods="offset:1024")
        k.wait_lg()
        for i in range(0, 8, 2): k("v_pk_add_f32", v(acc + i, 2), v(acc + i, 2), v(acc + 8 + i, 2))

    rd, mf = g64(8, WOBLK, 16)
    BAR("a3", 1)
    gemm_ring(k, [(j, t) for j in range(8) for t in range(4)], rd, mf, 7)
    BAR("a3", 0)
    ST("P2G", "m")
    BAR("w")
    g64_reduce(P2SCR, "r")
    k.wait_vm("XR")
    for t in range(2):
        a = [T + q for q in range(4)]; b = [T + 4 + q for q in range(4)]; u0, u1 = T + 8, T + 9
        k("v_cvt_pk_bf16_f32", v(u0), v(acc + 4 * t), v(acc + 4 * t + 1))
        k("v_cvt_pk_bf16_f32", v(u1), v(acc + 4 * t + 2), v(acc + 4 * t + 3))
        unpack(k, a[0], a[1], u0); unpack(k, a[2], a[3], u1)
        unpack(k, b[0], b[1], xr + 2 * t); unpack(k, b[2], b[3], xr + 2 * t + 1)
        k("v_pk_add_f32", v(a[0], 2), v(a[0], 2), v(b[0], 2))
        k("v_pk_add_f32", v(a[2], 2), v(a[2], 2), v(b[2], 2))
        k("v_cvt_pk_bf16_f32", v(hr + 2 * t), v(a[0]), v(a[1]))
        k("v_cvt_pk_bf16_f32", v(hr + 2 * t + 1), v(a[2]), v(a[3]))
    k("s_lshl_b32", s(sx), s(smt2), 14)
    k("s_lshl_b32", s(sy), s(sNb), 11)
    k("s_add_u32", s(sx), s(sx), s(sy))
    k("s_lshl_b32", s(sy), s(sG), 10)
    k("s_add_u32", s(sx), s(sx), s(sy))
    k("s_add_u32", s(sx), s(sx), s(sT1))
    k("buffer_store_dwordx4", v(hr, 4), v(vL16), s(rWS, 4), s(sx), mods="offen", tag="HS")
    vLr, vLw = vT[12], vT[13]
    k("v_lshrrev_b32", v(t0), 5, v(vL))
    k("v_and_b32", v(t1), 31, v(vL))
    k("v_lshrrev_b32", v(vLr), 2, v(t1))
    k("v_mul_u32_u24", v(vLr), 1056, v(vLr))
    k("v_and_b32", v(t3), 3, v(t1))
    k("v_lshl_add_u32", v(vLr), v(t3), 8, v(vLr))
    k("v_lshl_add_u32", v(vLr), v(t0), 4, v(vLr))
    k("s_lshl_b32", s(sy), s(sW), 5)
    k("s_add_u32", s(sy), s(sy), LSCR)
    k("v_add_u32", v(vLr), s(sy), v(vLr))
    k("s_lshl_b32", s(sLo), s(sX), 4)
    k("s_add_u32", s(sLo), s(sLo), s(sR))
    k("s_lshl_b32", s(sLo), s(sLo), 14)
    k("s_lshl_b32", s(sO), s(sW), 11)
    k("s_add_u32", s(sLo), s(sLo), s(sO))
    k("s_add_u32", s(sLo), s(sLo), s(sT1))
    k("s_mul_i32", s(sO), s(sW), 2112)
    k("s_add_u32", s(sO), s(sO), LSCR)
    k("v_add_u32", v(vLw), s(sO), v(vL16))
    k("s_mov_b32", "m0", s(sO))
    k.wait_vm("HS")
    BAR("X3")
    tr_w1(list(range(6, 12)))
    lfree = L("free")
    k("s_cmp_ge_u32", s(sR), 16)
    k("s_cbranch_scc1", lfree)
    BAR("Y3")
    ST("SC", "m")

    k("buffer_load_dwordx4", v(vL16), s(rWS, 4), s(sLo), mods="offen sc1 lds", tag="HL", cond=True)
    k("s_add_u32", "m0", s(sO), 1056 - 1024)
    k("buffer_load_dwordx4", v(vL16), s(rWS, 4), s(sLo), mods="offen offset:1024 sc1 lds", tag="HL", cond=True)
    k.raw("s_waitcnt vmcnt(0)")
    BAR("h")
    k("ds_read_b128", v(D, 4), v(vLr))
    k("ds_read_b128", v(D + 4, 4), v(vLr), mods="offset:%d" % (8 * 1056))
    k.wait_lg()
    rowln(k, D, TL, sOne, 2)
    k("ds_write_b128", v(vLr), v(D, 4))
    k("ds_write_b128", v(vLr), v(D + 4, 4), mods="offset:%d" % (8 * 1056))
    k.wait_lg()
    BAR("l")
    k("ds_read_b128", v(D, 4), v(vLw))
    k("ds_read_b128", v(D + 4, 4), v(vLw), mods="offset:1056")
    k.wait_lg()
    k("buffer_store_dwordx4", v(D, 4), v(vL16), s(rWS, 4), s(sLo), mods="offen", tag="YS", cond=True)
    k("buffer_store_dwordx4", v(D + 4, 4), v(vL16), s(rWS, 4), s(sLo), mods="offen offset:1024", tag="YS", cond=True)
    k.label(lfree)
    vBi = vT[19]
    k("v_lshlrev_b32", v(vBi), 4, v(vG))
    k("v_add_u32", v(vBi), hex(BIAS), v(vBi))
    c1 = 2 * math.sqrt(2 / math.pi) * math.log2(math.e)
    vC2 = vT[18]
    k("v_mov_b32", v(vC2), f2h(-c1 * 0.044715))
    k("s_lshl_b32", s(sx), s(smt1), 14)
    k("s_add_u32", s(sx), s(sx), s(sT1))
    k.raw("s_waitcnt vmcnt(0)")
    k.vmq = []
    BAR("X4")
    tr_w1(list(range(12, 16)))
    BAR("Y4")
    ST("SC2", "mc")

    lda16()
    ST("p3iss", "c")
    BAR("a4", 1)
    RING = 6
    E = vT[8]
    bb = [bf + 24, pq]
    seq = [(t, j) for t in range(7) for j in range(16)]
    def rd3(n):
        t, j = seq[n]
        base = W1BLK[j] * BLK + t * 1024
        k("ds_read_b128", v(bf + (n % RING) * 4, 4), v(vA[base >> 16]), mods="offset:%d" % (base & 65535), tag="f%d" % n)
    def rdb(t):
        k("ds_read_b128", v(bb[t & 1], 4), v(vBi), mods="offset:%d" % (64 * t), tag="bb%d" % t)
    def epi(t):
        a = [E + q for q in range(4)]; b = [E + 4 + q for q in range(4)]; u0, u1 = E + 8, E + 9
        c = acc + 4 * t; B = bb[t & 1]
        o = []
        A = o.append
        A(lambda: k("v_cvt_pk_bf16_f32", v(u0), v(c), v(c + 1)))
        A(lambda: k("v_cvt_pk_bf16_f32", v(u1), v(c + 2), v(c + 3)))
        for q in range(2):
            A(lambda q=q: k("v_lshlrev_b32", v(a[2 * q]), 16, v(u0 + q)))
            A(lambda q=q: k("v_and_b32", v(a[2 * q + 1]), HI, v(u0 + q)))
        A(lambda: k.wait_lg("bb%d" % t))
        for q in range(4): A(lambda q=q: k("v_add_f32", v(a[q]), v(a[q]), v(B + q)))
        A(lambda: k("v_cvt_pk_bf16_f32", v(u0), v(a[0]), v(a[1])))
        A(lambda: k("v_cvt_pk_bf16_f32", v(u1), v(a[2]), v(a[3])))
        for q in range(2):
            A(lambda q=q: k("v_lshlrev_b32", v(a[2 * q]), 16, v(u0 + q)))
            A(lambda q=q: k("v_and_b32", v(a[2 * q + 1]), HI, v(u0 + q)))
        for q in range(4): A(lambda q=q: k("v_mul_f32", v(b[q]), v(a[q]), v(a[q])))
        for q in range(4): A(lambda q=q: k("v_fmaak_f32", v(b[q]), v(vC2), v(b[q]), f2h(-c1)))
        for q in range(4): A(lambda q=q: k("v_mul_f32", v(b[q]), v(a[q]), v(b[q])))
        for q in range(4): A(lambda q=q: k("v_exp_f32", v(b[q]), v(b[q])))
        for q in range(4): A(lambda q=q: k("v_add_f32", v(b[q]), 1.0, v(b[q])))
        for q in range(4): A(lambda q=q: k("v_rcp_f32", v(b[q]), v(b[q])))
        for q in range(4): A(lambda q=q: k("v_mul_f32", v(a[q]), v(a[q]), v(b[q])))
        A(lambda: k("v_cvt_pk_bf16_f32", v(acc + 2 * t), v(a[0]), v(a[1])))
        A(lambda: k("v_cvt_pk_bf16_f32", v(acc + 2 * t + 1), v(a[2]), v(a[3])))
        return o
    for n in range(RING): rd3(n)
    for t in range(8):
        valu = []
        if t >= 1: valu += epi(t - 1)
        if t < 7:
            rdb(t)
            per = -(-len(valu) // 15)
            for j in range(16):
                n = 16 * t + j
                k.wait_lg("f%d" % n)
                if t == 0: k.wait_vm("A%d" % j)
                C = v(acc + 4 * t, 4)
                k("v_mfma_f32_16x16x32_bf16", C, v(bf + (n % RING) * 4, 4), v(xa + 4 * j, 4), (C if j else 0))
                if n + RING < len(seq): rd3(n + RING)
                for f in valu[:per]: f()
                valu = valu[per:]
            if t == A4T: BAR("a4", 0)
            if t in (0, 2, 4): ST("p3t%d" % t, "c")
            if t == 6:
                ST("P3G", "mc")
                BAR("g", 1)
        for f in valu: f()
    k("s_mul_i32", s(sx), s(smt1), 56 * 1024)
    k("s_add_u32", s(sx), s(sx), s(sT2))
    k("s_mul_i32", s(sy), s(sHg), 7)
    k("s_lshr_b32", s(sy), s(sy), 1)
    k("s_lshl_b32", s(sy), s(sy), 10)
    k("s_add_u32", s(sx), s(sx), s(sy))
    lo_, le_ = L("odd"), L("gs")
    k("s_bitcmp1_b32", s(sHg), 0)
    k("s_cbranch_scc1", lo_)
    for i in range(3):
        k("buffer_store_dwordx4", v(acc + 4 * i, 4), v(vL16), s(rWS, 4), s(sx), mods="offen offset:%d" % (1024 * i), tag="GS", cond=True)
    k("buffer_store_dwordx2", v(acc + 12, 2), v(vL16), s(rWS, 4), s(sx), mods="offen offset:3072", tag="GS", cond=True)
    k("s_branch", le_)
    k.label(lo_)
    k("buffer_store_dwordx2", v(acc, 2), v(vL16), s(rWS, 4), s(sx), mods="offen offset:8", tag="GS", cond=True)
    for i in range(3):
        k("buffer_store_dwordx4", v(acc + 2 + 4 * i, 4), v(vL16), s(rWS, 4), s(sx), mods="offen offset:%d" % (1024 * (i + 1)), tag="GS", cond=True)
    k.label(le_)
    k("s_lshl_b32", s(sy), s(sNb), 7)
    k("s_lshl_b32", s(sO), s(sG), 6)
    k("s_add_u32", s(sy), s(sy), s(sO))
    k("v_lshlrev_b32", v(t3), 3, v(vG))
    k("v_add_u32", v(t3), s(sy), v(t3))
    for t in range(2):
        k("buffer_load_dwordx2", v(b2r + 2 * t, 2), v(t3), s(rB2, 4), 0, mods="offen offset:%d" % (32 * t), tag="B2")
    tr64()
    for t in range(4):
        k("v_add_u32", v(vT[t]), s(sy), v(vT[t]))
        k("v_add_u32", v(vT[4 + t]), "0x10000", v(vT[t]))
        k("v_add_u32", v(vT[8 + t]), "0x20000", v(vT[t]))
    a_base(28, sT2, 56)
    ST("P3E", "mc")
    BAR("g", 0)
    k.wait_vm("GS")
    BAR("X5")
    BAR("Y5")
    ST("SD", "mc")

    rd, mf = g64(28, W2BLK, 16)
    def pre4(it):
        if it in ((20, 0), (24, 0)): BAR("b%d" % it[0])
    def post4(it):
        if it == (3, 3): BAR("b5")
        if it == (7, 3): BAR("b9")
    gemm_ring(k, [(j, t) for j in range(28) for t in range(4)], rd, mf, 7, pre4, post4)
    ST("P4G", "m")
    assert W2BLK[9] == W2BLK[8] + 1
    g64_reduce(W2BLK[8] * BLK, "r2")
    k.wait_vm("B2")
    hp = T + 12
    for t in range(2):
        a = [T + q for q in range(4)]; b = [T + 4 + q for q in range(4)]; u0, u1 = T + 8, T + 9
        k("v_cvt_pk_bf16_f32", v(u0), v(acc + 4 * t), v(acc + 4 * t + 1))
        k("v_cvt_pk_bf16_f32", v(u1), v(acc + 4 * t + 2), v(acc + 4 * t + 3))
        unpack(k, a[0], a[1], u0); unpack(k, a[2], a[3], u1)
        unpack(k, b[0], b[1], b2r + 2 * t); unpack(k, b[2], b[3], b2r + 2 * t + 1)
        k("v_pk_add_f32", v(a[0], 2), v(a[0], 2), v(b[0], 2))
        k("v_pk_add_f32", v(a[2], 2), v(a[2], 2), v(b[2], 2))
        k("v_cvt_pk_bf16_f32", v(u0), v(a[0]), v(a[1]))
        k("v_cvt_pk_bf16_f32", v(u1), v(a[2]), v(a[3]))
        unpack(k, a[0], a[1], u0); unpack(k, a[2], a[3], u1)
        unpack(k, b[0], b[1], hr + 2 * t); unpack(k, b[2], b[3], hr + 2 * t + 1)
        k("v_pk_add_f32", v(a[0], 2), v(b[0], 2), v(a[0], 2))
        k("v_pk_add_f32", v(a[2], 2), v(b[2], 2), v(a[2], 2))
        k("v_cvt_pk_bf16_f32", v(hp + 2 * t), v(a[0]), v(a[1]))
        k("v_cvt_pk_bf16_f32", v(hp + 2 * t + 1), v(a[2]), v(a[3]))
        k("buffer_store_dwordx2", v(hp + 2 * t, 2), v(vXo), s(rOUT, 4), 0, mods="offen offset:%d" % (32 * t))
    ST("end", "m")
    k.dump_stamps(rWS, 0)
    k("s_endpgm")
    k.label(N + "_cfallback")
    k("s_mov_b32", s(sMode), 1)
    k.raw("s_waitcnt vmcnt(0) lgkmcnt(0)")
    k("s_barrier")
    k("s_barrier")
    k("s_branch", N + "_cstart")

    role[0] = "H"
    k.vmq = []; k.lgq = []
    k.label(N + "_helper")
    k("s_sub_u32", s(sH), s(sW), 8)
    k("s_mul_i32", s(sHq), s(sH), 49152)
    k("s_lshl_b32", s(sH1k), s(sH), 10)
    k("s_lshl_b32", s(sH8k), s(sH), 13)
    k("v_lshlrev_b32", v(vL4), 2, v(vL))
    k("v_lshlrev_b32", v(vPf), 7, v(vL))
    k("v_mov_b32", v(vZero), 0)
    k("v_lshrrev_b32", v(t0), 2, v(vL))
    k("v_and_b32", v(t1), 3, v(vL))
    k("v_lshrrev_b32", v(t2), 3, v(t0))
    k("v_lshlrev_b32", v(t2), 1, v(t2))
    k("v_xor_b32", v(t1), v(t1), v(t2))
    k("v_mul_u32_u24", v(vBq), "0xc00", v(t0))
    k("v_lshl_add_u32", v(vBq), v(t1), 4, v(vBq))
    k("s_lshl_b32", s(sx), s(sHg), 6)
    k("v_add_u32", v(vBq), s(sx), v(vBq))
    k("v_lshrrev_b32", v(t0), 3, v(vL))
    k("v_and_b32", v(t1), 7, v(vL))
    k("v_bfe_u32", v(t2), v(t0), 1, 2)
    k("v_lshlrev_b32", v(t2), 1, v(t2))
    k("v_xor_b32", v(t1), v(t1), v(t2))
    k("v_lshlrev_b32", v(vB64), 10, v(t0))
    k("v_lshl_add_u32", v(vB64), v(t1), 4, v(vB64))
    k("s_lshl_b32", s(sx), s(sNb), 7)
    k("v_add_u32", v(vB64), s(sx), v(vB64))
    k("s_mul_i32", s(sy), s(sHg), 224)
    k("s_and_b32", s(sx), s(sy), "0xffffffc0")
    k("v_lshrrev_b32", v(t0), 4, v(vL))
    k("s_lshl_b32", s(sO), s(sH), 2)
    k("v_add_u32", v(t0), s(sO), v(t0))
    k("v_and_b32", v(t1), 7, v(t0))
    k("v_lshlrev_b32", v(t1), 1, v(t1))
    k("v_and_b32", v(t2), 15, v(vL))
    k("v_xor_b32", v(t2), v(t2), v(t1))
    k("v_mul_u32_u24", v(vBw1), 3584, v(t0))
    k("v_lshl_add_u32", v(vBw1), v(t2), 4, v(vBw1))
    k("v_add_u32", v(vBw1), s(sx), v(vBw1))
    k.wait_smem()
    for r, sl, sz in srds:
        k("s_and_b32", s(r + 1), s(r + 1), "0xffff")

    k("s_mov_b32", s(sPp), s(rWS))
    k("s_mov_b32", s(sPp + 1), s(rWS + 1))
    def h0_begin():
        l = L("h0")
        k("s_cmp_lg_u32", s(sH), 0)
        k("s_cbranch_scc1", l)
        return l
    def h0_end(l):
        k.raw("s_mov_b64 exec, -1")
        k.label(l)
    def ld_wq(seg, i):
        for u in range(2):
            k("s_add_u32", s(sO), s(sHq), hex((8 * i + 4 * u) * 49152 + seg * 1024))
            k("s_add_u32", "m0", s(sH1k), hex(seg * 32768 + i * 8192 + u * 4096))
            k("buffer_load_dwordx4", v(vBq), s(rWQ, 4), s(sO), mods="offen lds", tag="WQ")
    def ld_64(srd, NH, n, blk, tag):
        for u in range(2):
            k("s_add_u32", s(sO), s(sH8k), hex((u * NH + n) * 32768))
            k("s_add_u32", "m0", s(sH1k), hex(blk * BLK + u * 4096))
            k("buffer_load_dwordx4", v(vB64), s(srd, 4), s(sO), mods="offen lds", tag=tag)
    def ld_w1(j):
        for u in range(2):
            k("s_add_u32", "m0", s(sH1k), hex(W1BLK[j] * BLK + u * 4096))
            k("s_mov_b32", s(sO), hex((j * 32 + u * 16) * 3584))
            k("buffer_load_dwordx4", v(vBw1), s(rW1, 4), s(sO), mods="offen lds", tag="W1_%d" % j)
    def ld_w2(n):
        ld_64(rW2, 28, n, W2BLK[n], "W2_%d" % n)
    npf = [0]
    def prefetch(srd, base, total, nwg=32):
        q = total // (4 * nwg)
        assert q % 128 == 0
        k("s_and_b32", s(sx), s(sR), nwg - 1)
        k("s_lshl_b32", s(sx), s(sx), 2)
        k("s_add_u32", s(sx), s(sx), s(sH))
        k("s_mul_i32", s(sx), s(sx), q)
        if base: k("s_add_u32", s(sx), s(sx), hex(base))
        lines = q // 128
        while lines > 0:
            n = min(lines, 64)
            if n < 64:
                m = (1 << n) - 1
                k.raw("s_mov_b32 exec_lo, 0x%x" % (m & 0xffffffff))
                k.raw("s_mov_b32 exec_hi, 0x%x" % (m >> 32))
            k("buffer_load_dword", v(vDum), v(vPf), s(srd, 4), s(sx), mods="offen", tag="PF")
            npf[0] += 1
            if n < 64: k.raw("s_mov_b64 exec, -1")
            lines -= n
            if lines: k("s_add_u32", s(sx), s(sx), 8192)

    def touch_ws(kind):
        k("s_lshl_b32", s(sx), s(sX), 21)
        if kind == "r1":
            n = 16
            k("s_lshl_b32", s(sy), s(sR), 13)
            k("s_add_u32", s(sx), s(sx), s(sy))
            k("s_lshl_b32", s(sy), s(sH), 11)
        else:
            k("s_lshr_b32", s(sy), s(sR), 4)
            k("s_mul_i32", s(sy), s(sy), HALF)
            k("s_add_u32", s(sx), s(sx), s(sy))
            k("s_and_b32", s(sy), s(sR), 15)
            k("s_lshl_b32", s(sy), s(sy), 2)
            k("s_add_u32", s(sy), s(sy), s(sH))
            n = 16 if kind == "o" else 40
            k("s_mul_i32", s(sy), s(sy), n * 128)
            k("s_add_u32", s(sx), s(sx), hex(R2 + (0 if kind == "o" else 128 * 1024)))
        k("s_add_u32", s(sx), s(sx), s(sy))
        m = (1 << n) - 1
        k.raw("s_mov_b32 exec_lo, 0x%x" % (m & 0xffffffff))
        k.raw("s_mov_b32 exec_hi, 0x%x" % (m >> 32))
        k("buffer_load_dword", v(vDum), v(vPf), s(rWS, 4), s(sx), mods="offen sc1", tag="PF")
        k.raw("s_mov_b64 exec, -1")
    def slot(name, nwg=32):
        for pc in SCHED.get(name, "").split("."):
            if not pc: continue
            if pc in "og": touch_ws(pc)
            elif pc == "q":
                k("v_lshrrev_b32", v(t0), 3, v(vL))
                k("v_mul_u32_u24", v(t0), "0xc00", v(t0))
                k("v_and_b32", v(t1), 7, v(vL))
                k("v_lshl_add_u32", v(t0), v(t1), 7, v(t0))
                k("s_lshl_b32", s(sx), s(sR), 2)
                k("s_add_u32", s(sx), s(sx), s(sH))
                k("s_mul_i32", s(sx), s(sx), 4 * 3072)
                k.raw("s_mov_b32 exec_hi, 0")
                k("buffer_load_dword", v(vDum), v(t0), s(rWQ, 4), s(sx), mods="offen", tag="PF")
                k.raw("s_mov_b64 exec, -1")
            elif pc in "ab": prefetch(rWO, (pc == "b") * 262144, 262144, nwg)
            elif pc[0] == "w": prefetch(rW1, int(pc[1:]) * 262144, 262144, nwg)
            elif pc[0] == "v": prefetch(rW2, int(pc[1:]) * 262144, 262144, nwg)
            else: assert 0, pc
    def gbar(i):
        k.raw("buffer_wbl2 sc1")
        k.raw("s_waitcnt vmcnt(0)")
        k.raw("s_mov_b64 exec, 1")
        k("v_mov_b32", v(t0), 1)
        k.raw("buffer_atomic_add v%d, v%d, s[%d:%d], 0 offen offset:%d sc1" % (t0, vZero, rDBG, rDBG + 3, 132 + 4 * i))
        k("s_mov_b32", s(sit), 0)
        lp, lx = L("gp"), L("gx")
        k.label(lp)
        k("s_sleep", 8)
        k("s_add_u32", s(sit), s(sit), 1)
        k("s_cmp_gt_u32", s(sit), LIMIT)
        k("s_cbranch_scc1", lx)
        k.raw("buffer_load_dword v%d, v%d, s[%d:%d], 0 offen offset:%d sc1" % (t0, vZero, rDBG, rDBG + 3, 132 + 4 * i))
        k.raw("s_waitcnt vmcnt(0)")
        k("v_cmp_gt_u32", "vcc", 256, v(t0))
        k.raw("s_nop 4")
        k.raw("s_cbranch_vccnz %s" % lp)
        k.label(lx)
        k.raw("s_mov_b64 exec, -1")
        k.raw("buffer_inv sc1")
        k.raw("s_waitcnt vmcnt(0)")
    def publish(srd, off_fn, val, mn, bits):
        off_fn()
        k("v_mov_b32", v(t0), val)
        k.raw("s_mov_b64 exec, 1")
        k(mn, v(t0), v(vZero), s(srd, 4), s(sx), mods=("offen " + bits).strip(), cond=True)
    def poll(srd, off_fn, nl, mask_fn, stage, checkbad):
        k.raw("s_mov_b64 exec, 0x%x" % ((1 << nl) - 1))
        off_fn()
        mask_fn()
        k("s_mov_b32", s(sit), 0)
        lp, lx, lt = L("p"), L("x"), L("t")
        k.label(lp)
        k.raw("buffer_load_dword v%d, v%d, s[%d:%d], s%d offen sc1" % (t0, vL4, srd, srd + 3, sx))
        k.raw("s_waitcnt vmcnt(0)")
        k("v_or_b32", v(t0), "0x80808080", v(t0))
        k("v_subrev_u32", v(t0), hex(stage * 0x01010101), v(t0))
        k("v_and_b32", v(t0), v(t0), v(vMask))
        k("v_cmp_ne_u32", "vcc", v(t0), v(vMask))
        k.raw("s_nop 4")
        k.raw("s_cbranch_vccz %s" % lx)
        k("s_add_u32", s(sit), s(sit), 1)
        k("s_cmp_gt_u32", s(sit), LIMIT)
        k("s_cbranch_scc1", lt)
        if checkbad:
            k("s_and_b32", s(sy), s(sit), 7)
            k("s_cmp_lg_u32", s(sy), 0)
            k("s_cbranch_scc1", lp)
            k.raw("buffer_load_dword v%d, v%d, s[%d:%d], 0 offen offset:128 sc1" % (t1, vZero, rDBG, rDBG + 3))
            k.raw("s_waitcnt vmcnt(0)")
            k("v_readfirstlane_b32", s(sy), v(t1))
            k("s_lshr_b32", s(sy), s(sy), 16)
            k("s_cmp_eq_u32", s(sy), 0)
            k("s_cbranch_scc1", lp)
        else:
            k("s_branch", lp)
        k.label(lt)
        k("s_mov_b32", s(sAb), 1)
        k.label(lx)
    def sync(idx, fast_fn):
        l = h0_begin()
        lf = L("fb")
        k("s_cmp_lg_u32", s(sMode), 0)
        k("s_cbranch_scc1", lf)
        fast_fn()
        k.raw("s_mov_b64 exec, -1")
        k("s_branch", l)
        k.label(lf)
        gbar(idx)
        h0_end(l)
    def prog_off():
        k("s_lshl_b32", s(sx), s(sX), 21)
        k("s_add_u32", s(sx), s(sx), hex(PROGO))
    def prog_own_off():
        prog_off()
        k("s_add_u32", s(sx), s(sx), s(sR))
    def mask_all(sval_fn):
        def f():
            sval_fn()
            k("v_mov_b32", v(vMask), s(sy))
        return f
    def mask_range(slo_fn, n):
        def f():
            slo_fn()
            k("v_subrev_u32", v(t1), s(sy), v(vL))
            k("v_cmp_gt_u32", "vcc", n, v(t1))
            k("v_mov_b32", v(t1), "0x80808080")
            k("v_cndmask_b32", v(vMask), 0, v(t1), "vcc")
        return f
    def fla_off():
        k("s_mul_i32", s(sx), s(sHg), 4352)
        k("s_add_u32", s(sx), s(sx), hex(WS_FLA))
    def fla_own():
        fla_off()
        k("s_lshl_b32", s(sy), s(sX), 3)
        k("s_add_u32", s(sx), s(sx), s(sy))
        k("s_lshl_b32", s(sy), s(sB), 2)
        k("s_add_u32", s(sx), s(sx), s(sy))

    l = L("h1")
    k("s_cmp_lg_u32", s(sH), 1)
    k("s_cbranch_scc1", l)
    for i in range(4): k("v_mov_b32", v(vBt + i), -1)
    k("s_lshl_b32", s(sx), s(sHg), 4)
    k("s_lshl_b32", s(sy), s(sX), 1)
    k("s_add_u32", s(sx), s(sx), s(sy))
    k("s_add_u32", s(sx), s(sx), s(sB))
    k("s_lshl_b32", s(sx), s(sx), 12)
    k("s_add_u32", s(sx), s(sx), hex(WS_PART))
    k("buffer_store_dwordx4", v(vBt, 4), v(vL16), s(rWS, 4), s(sx), mods="offen sc1", cond=True)
    k("buffer_store_dwordx4", v(vBt, 4), v(vL16), s(rWS, 4), s(sx), mods="offen offset:1024 sc1", cond=True)
    k.raw("s_mov_b64 exec, 0xff")
    k("buffer_store_dwordx4", v(vBt, 4), v(vL16), s(rWS, 4), s(sx), mods="offen offset:2048 sc1", cond=True)
    l2 = L("z")
    k("s_cmp_lg_u32", s(sR), 0)
    k("s_cbranch_scc1", l2)
    prog_off()
    k("buffer_store_dword", v(vZero), v(vL4), s(rWS, 4), s(sx), mods="offen", cond=True)
    k.label(l2)
    k.raw("s_mov_b64 exec, -1")
    k.label(l)
    def register(younger):
        l = L("h1")
        k("s_cmp_lg_u32", s(sH), 1)
        k("s_cbranch_scc1", l)
        k("s_lshl_b32", s(sy), s(sBad), 16)
        k("s_add_u32", s(sy), s(sy), 1)
        k("v_mov_b32", v(vReg), s(sy))
        k.raw("s_mov_b64 exec, 1")
        k.raw("s_waitcnt vmcnt(%d)" % younger)
        k("buffer_atomic_add", v(vReg), v(vZero), s(rDBG, 4), 0, mods="offen offset:128 sc1", cond=True)
        k.raw("s_mov_b64 exec, -1")
        k.label(l)
    lg = L("good")
    k("s_cmp_eq_u32", s(sBad), 0)
    k("s_cbranch_scc1", lg)
    register(0)
    k("s_branch", N + "_hfallback")
    k.label(lg)
    k.label(N + "_hstart")
    l = L("h2")
    k("s_cmp_lg_u32", s(sH), 2)
    k("s_cbranch_scc1", l)
    k.raw("s_getpc_b64 s[%d:%d]" % (sC, sC + 1))
    k.label(N + "_pc")
    k.raw("s_sub_u32 s%d, s%d, %s_pc-%s" % (sC, sC, N, N))
    k.raw("s_subb_u32 s%d, s%d, 0" % (sC + 1, sC + 1))
    k.raw("s_and_b32 s%d, s%d, 0xffff" % (sC + 1, sC + 1))
    k.raw("s_mov_b32 s%d, %s_done-%s" % (sC + 2, N, N))
    k.raw("s_mov_b32 s%d, 0x20000" % (sC + 3))
    k("s_mul_i32", s(sx), s(sR), 10 * 128)
    k("v_add_u32", v(t0), s(sx), v(vPf))
    k.raw("s_mov_b64 exec, 0x3ff")
    k("buffer_load_dword", v(vDum), v(t0), s(sC, 4), 0, mods="offen", cond=True)
    k.raw("s_mov_b64 exec, -1")
    k.label(l)
    if "r" not in SQ: touch_ws("r1")
    l = L("h3")
    k("s_cmp_lg_u32", s(sH), 3)
    k("s_cbranch_scc1", l)
    k.raw("s_mov_b64 exec, 7")
    k("s_mul_i32", s(sx), s(sHg), 224)
    k("v_mul_u32_u24", v(t0), 110, v(vL))
    k("buffer_load_ubyte", v(vDum), v(t0), s(rB1, 4), s(sx), mods="offen", cond=True)
    k.raw("s_mov_b64 exec, 1")
    k("s_lshl_b32", s(sx), s(sNb), 7)
    k("buffer_load_dword", v(vDum), v(vZero), s(rB2, 4), s(sx), mods="offen", cond=True)
    k.raw("s_mov_b64 exec, -1")
    k.label(l)
    l = h0_begin()
    k.raw("s_mov_b64 exec, 1")
    prog_off()
    k("buffer_load_dword", v(vDum), v(vZero), s(rWS, 4), s(sx), mods="offen sc1", cond=True)
    h0_end(l)
    k("v_lshrrev_b32", v(t0), 4, v(vL))
    k("v_mul_u32_u24", v(t0), "0xc00", v(t0))
    k("v_and_b32", v(t1), 15, v(vL))
    k("v_lshl_add_u32", v(t0), v(t1), 7, v(t0))
    k("s_mul_i32", s(sx), s(sR), 3)
    k("s_mul_i32", s(sy), s(sR), 5)
    k("s_sub_u32", s(sy), s(sy), 32)
    k("s_cmp_lt_u32", s(sR), 16)
    k("s_cselect_b32", s(sx), s(sx), s(sy))
    k("s_cselect_b32", s(sy), 3, 4)
    k("s_add_u32", s(sx), s(sx), s(sH))
    k("s_mul_i32", s(sx), s(sx), 4 * 3072)
    l = L("kv")
    k("s_cmp_ge_u32", s(sH), s(sy))
    k("s_cbranch_scc1", l)
    k("buffer_load_dword", v(vDum), v(t0), s(rWQ, 4), s(sx), mods="offen offset:1024", tag="PF", cond=True)
    k("s_cmp_lg_u32", s(sH), 3)
    k("s_cbranch_scc1", l)
    k("s_add_u32", s(sx), s(sx), 4 * 3072)
    k("buffer_load_dword", v(vDum), v(t0), s(rWQ, 4), s(sx), mods="offen offset:1024", tag="PF", cond=True)
    k.label(l)
    lm = L("nr")
    k("s_cmp_lg_u32", s(sMode), 0)
    k("s_cbranch_scc1", lm)
    register(1 if "r" in SQ else 2)
    k.label(lm)
    BAR("p")
    BAR("X0")
    def s0_off():
        k("s_lshl_b32", s(sx), s(sX), 4)
    l = h0_begin()
    k("s_cmp_lg_u32", s(sMode), 0)
    k("s_cbranch_scc1", l)
    k("s_cmp_ge_u32", s(sR), 16)
    k("s_cbranch_scc1", l)
    def own():
        s0_off()
        k("s_add_u32", s(sx), s(sx), s(sR))
    publish(rDBG, own, 1, "buffer_store_byte", "")
    h0_end(l)
    k.raw("s_waitcnt vmcnt(1)")
    l = L("w1")
    k("s_lshl_b32", s(sy), s(sMode), 1)
    k("s_add_u32", s(sy), s(sy), s(sH))
    k("s_cmp_eq_u32", s(sy), 1)
    k("s_cbranch_scc1", l)
    k.raw("s_waitcnt vmcnt(0)")
    k.label(l)
    k.vmq = [("?", "AT")]
    ST("hpf", "a")
    BAR("q")
    sync(0, lambda: poll(rDBG, s0_off, 4, mask_range(lambda: k("s_lshl_b32", s(sy), s(sB), 1), 2), 1, True))
    ST("hs0", "a")
    BAR("Y0")
    BAR("a1")
    l = h0_begin()
    lx = L("rx")
    k("s_cmp_lg_u32", s(sMode), 0)
    k("s_cbranch_scc1", lx)
    k.raw("s_mov_b64 exec, 1")
    k("s_mov_b32", s(sit), 0)
    lp, lt = L("rp"), L("rt")
    k.label(lp)
    k.raw("buffer_load_dword v%d, v%d, s[%d:%d], 0 offen offset:128 sc1" % (vReg, vZero, rDBG, rDBG + 3))
    k.raw("s_waitcnt vmcnt(0)")
    k("v_readfirstlane_b32", s(sy), v(vReg))
    k("s_lshr_b32", s(sx), s(sy), 16)
    k("s_cmp_lg_u32", s(sx), 0)
    k("s_cbranch_scc1", lt)
    k("s_cmp_eq_u32", s(sy), 256)
    k("s_cbranch_scc1", lx)
    k("s_add_u32", s(sit), s(sit), 1)
    k("s_cmp_gt_u32", s(sit), LIMIT)
    k("s_cbranch_scc1", lt)
    k("s_sleep", 4)
    k("s_branch", lp)
    k.label(lt)
    k("s_mov_b32", s(sAb), 1)
    k.label(lx)
    k.raw("s_mov_b64 exec, 1")
    k("v_mov_b32", v(t0), s(sAb))
    k("v_mov_b32", v(t1), ABW)
    k.raw("ds_write_b32 v%d, v%d" % (t1, t0))
    k.raw("s_waitcnt lgkmcnt(0)")
    h0_end(l)
    slot("a0")
    k.wait_vm("PF")
    for i in range(4): ld_wq(0, i)
    slot("a1")
    BAR("k")
    BAR("s")
    k("v_mov_b32", v(t1), ABW)
    k("ds_read_b32", v(t3), v(t1))
    k.wait_lg()
    k("v_readfirstlane_b32", s(sy), v(t3))
    k("s_cmp_lg_u32", s(sy), 0)
    k("s_cbranch_scc1", N + "_hfallback")
    k.wait_vm("WQ")
    BAR("ps")
    slot("ps")
    BAR("X1")
    sync(1, lambda: None)
    BAR("Y1")
    k.wait_vm("PF")
    for n in range(8): ld_64(rWO, 8, n, WOBLK[n], "WO")
    for j in range(6): ld_w1(j)
    slot("y1")
    BAR("o")
    k.wait_vm("W1_5")
    BAR("X2")
    def m_half():
        k("s_bfe_u32", s(sy), s(sR), "0x10001")
        k("s_lshl_b32", s(sy), s(sy), 3)
        k("s_lshl_b32", s(sy), "0x00800080", s(sy))
    def lsync(idx, stage, mask_fn):
        def f():
            publish(rWS, prog_own_off, stage, "buffer_store_byte", "")
            poll(rWS, prog_off, 8, mask_fn, stage, False)
        sync(idx, f)
    lsync(2, 1, mask_all(m_half))
    BAR("Y2")
    BAR("a3")
    for j in range(6, 12): ld_w1(j)
    slot("a3")
    BAR("w")
    BAR("r")
    k.wait_vm("W1_11")
    BAR("X3")
    def m_quarter():
        k("s_lshr_b32", s(sy), s(sR), 2)
        k("s_lshl_b32", s(sy), s(sy), 3)
        k("s_lshl_b32", s(sy), "0x80", s(sy))
    lfree, ljoin = L("hfree"), L("hjoin")
    k("s_cmp_ge_u32", s(sR), 16)
    k("s_cbranch_scc1", lfree)
    sp0 = {"lines": list(spq["lines"]), "q": list(spq["q"])}
    lsync(3, 2, mask_all(m_quarter))
    BAR("Y3")
    BAR("h")
    q0 = list(k.vmq)
    for j in range(12, 16): ld_w1(j)
    slot("xl", 16)
    BAR("l")
    k.wait_vm("W1_15")
    k("s_branch", ljoin)
    k.label(lfree)
    k.vmq = q0
    sync(3, lambda: publish(rWS, prog_own_off, 2, "buffer_store_byte", ""))
    for j in range(12, 16): ld_w1(j)
    slot("xf", 16)
    spq.update(sp0)
    sp(sum(SS.get(x, 0) for x in ("Y3", "h", "l")))
    k.wait_vm("W1_15")
    k.label(ljoin)
    k.vmq = [("?", "PF")]
    BAR("X4")
    lsync(4, 3, mask_range(lambda: k("s_lshl_b32", s(sy), s(sB), 1), 2))
    BAR("Y4")
    BAR("a4")
    slot("a4")
    for n in range(4): ld_w2(n)
    BAR("g")
    for n in range(4, 20): ld_w2(n)
    k.wait_vm("W2_19")
    ST("hw2", "m")
    BAR("X5")
    lsync(5, 4, mask_all(m_half))
    BAR("Y5")
    BAR("b5")
    for n in range(20, 24): ld_w2(n)
    BAR("b9")
    for n in range(24, 28): ld_w2(n)
    for j in (20, 24):
        k.wait_vm("W2_%d" % (j + 3))
        BAR("b%d" % j)
    BAR("r2")
    k.dump_stamps(rWS, 0)
    k("s_endpgm")
    k.label(N + "_hfallback")
    k("s_mov_b32", s(sMode), 1)
    k("s_mov_b32", s(sAb), 0)
    k.raw("s_waitcnt vmcnt(0) lgkmcnt(0)")
    k("s_barrier")
    l = h0_begin()
    gbar(6)
    h0_end(l)
    k("s_barrier")
    k("s_branch", N + "_hstart")
    k.label(N + "_done")
    k("s_endpgm")
    assert bars["C"] == bars["H"], (bars["C"], bars["H"])
    n = len(bars["C"])
    assert cbars[0][:n] == bars["C"] and cbars[1][:n] == bars["C"], (cbars, bars["C"])
    assert k.snext <= 80, k.snext
    if spq["lines"] or spq["q"]: print("WARNING scalar stream left:", len(spq["lines"]), spq["q"])
    if PROF: print("STAMPS", " ".join(sorted(slots, key=slots.get)))
    return k, 768, 163840

if __name__ == "__main__":
    gen.build_list([gen_main()], sys.argv[1] if len(sys.argv) > 1 else "cdna_kernels/%s.s" % NAME)
```

```python
import sys, os, math, struct
sys.path.insert(0, "dev")
from asmlib import *
import gen
from gen import unpack, phi_pack, LOG2E, HI
from gen2 import bf16r, rowln, f2h

NAME = gen.NAME
MB = 1 << 20
WS_PART, WS_FLA = 16 * MB, 17 * MB
R2, HALF, PROGO = 256 * 1024, 448 * 1024, 1152 * 1024
PROF = bool(int(os.environ.get("PROF", "0")))
PROFSET = os.environ.get("PROFSET", "m")

rX, rWQ, rWO, rW1, rB1, rW2, rB2, rOUT, rDBG, rWS = 4, 8, 12, 16, 20, 24, 28, 32, 36, 40
BLK = 8192
W1BLK = [8, 9, 10, 11, 4, 5, 6, 0, 1, 2, 3, 7, 16, 17, 18, 19]
W2BLK = [12, 13, 14, 15] + W1BLK
W2BLK = W2BLK + W2BLK[:8]
WOBLK = [12 + n for n in range(8)]
P0SCR = 12 * BLK
KVSCR = 4 * BLK
OSCR = 7 * BLK
ABW = 19 * BLK
P2SCR = 12 * BLK
LSCR = 12 * BLK
LIMIT = 1 << 15
SP = int(os.environ.get("SP", "20"))
NQ = 4
PFA = int(os.environ.get("PFA", "6")) * 32 * 3584
GFP = os.environ.get("GFP", "a1")
SCHED = dict(x.split(":") for x in os.environ.get("SCHED", "a0:q,ps:o.a.b.w0.w1.w2,y1:w3.w4.w5.w6,xf:v0.v3.v4.v1,a4:g.v5.v2.v6").split(","))
SQ = [x for x in os.environ.get("SQ", "").split(".") if x]
SS = {a: int(b) for a, b in (x.split(":") for x in os.environ.get("SS", "").split(",") if x)}
A4T = int(os.environ.get("A4T", "1"))
WOT = int(os.environ.get("WOT", "0"))
A1W = int(os.environ.get("A1W", "0"))
FW2 = int(os.environ.get("FW2", "14"))
P3H = ()

def gemm1(k, steps, T, rd, mfma, pre=None):
    j0 = steps[0]
    if pre: pre(j0)
    for t in range(T): rd(j0, t)
    for n, j in enumerate(steps):
        nxt = steps[n + 1] if n + 1 < len(steps) else None
        if nxt is not None and pre: pre(nxt)
        for t in range(T):
            k.wait_lg("f%d_%d" % (j, t))
            mfma(j, t)
            if nxt is not None: rd(nxt, t)

def gemm_ring(k, seq, rd, mf, ring, pre_rd=None, post_mf=None):
    def R(n):
        if pre_rd: pre_rd(seq[n])
        rd(seq[n], n % ring, "f%d" % n)
    for n in range(min(ring, len(seq))): R(n)
    for n, it in enumerate(seq):
        k.wait_lg("f%d" % n)
        mf(it, n % ring)
        if post_mf: post_mf(it)
        if n + ring < len(seq): R(n + ring)

def gen_main():
    k = Kern("fused_kernel")
    k.prof = PROF
    k.ndump = 16
    slots = {}
    def ST(name, grp="m"):
        if PROF and set(grp) & set(PROFSET):
            if name not in slots: slots[name] = len(slots)
            k.stamp(slots[name])
    k.snext = 44
    k.vnext = 1
    N = k.name
    if PROF:
        for i in range(16): k("s_mov_b32", s(82 + i), 0)
    ST("start", "mabcd")
    ENDSPIN = os.environ.get("ENDSPIN", "")
    if ENDSPIN:
        mi = "s_memrealtime" if ENDSPIN[0] == "r" else "s_memtime"
        k.raw("%s s[84:85]" % mi)
        k.maxs = 90
    k("s_cmp_ge_u32", "s2", 256)
    k("s_cbranch_scc1", N + "_done")
    srds = [(rX, 0, 2 * MB), (rWQ, 1, 512 * 1536 * 2), (rWO, 2, 512 * 512 * 2), (rW1, 4, 512 * 1792 * 2), (rB1, 5, 1792 * 2),
            (rW2, 6, 1792 * 512 * 2), (rB2, 7, 1024), (rOUT, 8, 2 * MB), (rDBG, 9, 256), (rWS, 10, 32 * MB)]
    for r, sl, sz in srds:
        k("s_load_dwordx2", s(r, 2), "s[0:1]", sl * 8)
    for r, sl, sz in srds:
        k("s_mov_b32", s(r + 2), hex(sz))
        k("s_mov_b32", s(r + 3), "0x20000")
    S = lambda: k.salloc()
    sW, sX, sR, sMode, sAb, sBad = S(), S(), S(), S(), S(), S()
    sx, sy, sO, sit, sOne = S(), S(), S(), S(), S()
    sB, sHg, smt1, smt2, sNb, sG, sWq, sA, sLo = S(), S(), S(), S(), S(), S(), S(), S(), S()
    sC = k.salloc(8, 4)
    sT1, sT2 = S(), S()
    sH, sHq, sH1k, sH8k = smt1, smt2, sG, sWq
    V = lambda n=1: k.valloc(n)
    vL, vG, vL16, vT8 = V(), V(), V(), V()
    t0, t1, t2, t3 = V(), V(), V(), V()
    vXo = V()
    ones = V(2)
    pq, hr, xr = V(4), V(4), V(4)
    b2r = xr
    vTb = V(21 + 3)
    vT = [vTb + i for i in range(24)]
    vA = [vL16, vT[21], vT[22]]
    vB = [vT[12], vT[13], vT[14]]
    acc = V(28)
    bf = V(28)
    xa = V(64)
    assert k.vnext <= 168, k.vnext
    vBq, vB64, vBw1, vPf, vL4, vZero, vMask, vReg, vDum, vBa = [acc + i for i in range(10)]
    vBb, vBt = acc + 10, acc + 12

    lab = [0]
    def L(p):
        lab[0] += 1
        return "%s_%s%d" % (N, p, lab[0])
    bars = {"C": [], "H": []}
    role = ["C"]
    def BAR(name, cls=None):
        if cls is None:
            for c in cbars: c.append(name)
            bars[role[0]].append(name)
            if role[0] == "H": sp(SS.get(name, 0))
            k("s_barrier")
            return
        cbars[cls].append(name)
        if cls == 0: bars[role[0]].append(name)
        l = L("cb")
        k("s_cmp_eq_u32", s(sG), 1 - cls)
        k("s_cbranch_scc1", l)
        k("s_barrier")
        k.label(l)
    cbars = [[], []]
    sPp = k.salloc(2)
    spq = {"lines": [], "q": list(SQ)}
    def sp(n):
        if not n or not (spq["lines"] or spq["q"]): return
        l = L("sp")
        k("s_cmp_eq_u32", s(sH), 0)
        k("s_cbranch_scc1", l)
        for _ in range(n):
            if not spq["lines"]:
                if not spq["q"]: break
                pc = spq["q"].pop(0)
                if pc == "q":
                    k("s_lshl_b32", s(sC + 6), s(sR), 4)
                    k("s_mul_i32", s(sC + 7), s(sH), 5)
                    k("s_add_u32", s(sC + 6), s(sC + 6), s(sC + 7))
                    k("s_sub_u32", s(sC + 6), s(sC + 6), 5)
                    k("s_mul_i32", s(sC + 6), s(sC + 6), 3072)
                    k("s_add_u32", s(sC + 6), s(sC + 6), 60)
                    k("s_add_u32", s(sPp), s(rWQ), s(sC + 6))
                    k("s_addc_u32", s(sPp + 1), s(rWQ + 1), 0)
                    spq["lines"] = [(i >> 3) * 24 + (i & 7) for i in range(48)]
            if not spq["lines"]:
                nl = 160 if pc == "g" else 64
                per = (nl + 2) // 3
                if pc in "ab": srd, base = rWO, (pc == "b") * 262144
                elif pc[0] == "w": srd, base = rW1, int(pc[1:]) * 262144
                elif pc[0] == "v": srd, base = rW2, int(pc[1:]) * 262144
                else: srd, base = rWS, (0 if pc == "r" else R2 + (0 if pc == "o" else 128 * 1024))
                if pc == "r":
                    k("s_lshl_b32", s(sC + 6), s(sR), 13)
                    k("s_lshl_b32", s(sC + 7), s(sX), 21)
                    k("s_add_u32", s(sC + 6), s(sC + 6), s(sC + 7))
                elif srd == rWS:
                    k("s_and_b32", s(sC + 6), s(sR), 15)
                    k("s_mul_i32", s(sC + 6), s(sC + 6), nl * 128)
                    k("s_lshr_b32", s(sC + 7), s(sR), 4)
                    k("s_mul_i32", s(sC + 7), s(sC + 7), HALF)
                    k("s_add_u32", s(sC + 6), s(sC + 6), s(sC + 7))
                    k("s_lshl_b32", s(sC + 7), s(sX), 21)
                    k("s_add_u32", s(sC + 6), s(sC + 6), s(sC + 7))
                else:
                    k("s_mul_i32", s(sC + 6), s(sR), nl * 128)
                assert 2 * (per - 1) + per == nl
                k("s_mul_i32", s(sC + 7), s(sH), (per - 1) * 128)
                k("s_add_u32", s(sC + 6), s(sC + 6), s(sC + 7))
                k("s_add_u32", s(sC + 6), s(sC + 6), hex(base + 60 - (per - 1) * 128 + (1 << 32)) if base + 60 < (per - 1) * 128 else hex(base + 60 - (per - 1) * 128))
                k("s_add_u32", s(sPp), s(srd), s(sC + 6))
                k("s_addc_u32", s(sPp + 1), s(srd + 1), 0)
                spq["lines"] = list(range(per))
            i = spq["lines"].pop(0)
            k.raw("s_load_dwordx2 s[%d:%d], s[%d:%d], 0x%x" % (sC + 4, sC + 5, sPp, sPp + 1, i * 128))
        k.label(l)

    k("v_lshrrev_b32", v(t0), 6, "v0")
    k("v_readfirstlane_b32", s(sW), v(t0))
    k("s_and_b32", s(sX), "s2", 7)
    k("s_lshr_b32", s(sR), "s2", 3)
    k("v_and_b32", v(vL), 63, "v0")
    k("v_bfe_u32", v(vG), "v0", 4, 2)
    k("v_lshlrev_b32", v(vL16), 4, v(vL))
    k("s_and_b32", s(sB), s(sR), 1)
    k("s_lshr_b32", s(sHg), s(sR), 1)
    k("s_lshr_b32", s(sNb), s(sR), 2)
    k("s_mov_b32", s(sMode), 0)
    k("s_mov_b32", s(sAb), 0)
    k("s_mul_i32", s(sT1), s(sX), hex(2 * MB - 256 * 1024))
    k("s_mul_i32", s(sT2), s(sX), hex(2 * MB - 896 * 1024))
    k("s_add_u32", s(sT2), s(sT2), hex(R2))
    k.raw("s_getreg_b32 s%d, hwreg(HW_REG_XCC_ID)" % sBad)
    k("s_and_b32", s(sBad), s(sBad), 15)
    k("s_cmp_lg_u32", s(sBad), s(sX))
    k("s_cselect_b32", s(sBad), 1, 0)
    k("s_cmp_ge_u32", s(sW), 8)
    k("s_cbranch_scc1", N + "_helper")

    k("v_lshlrev_b32", v(vT8), 3, "v0")
    k("v_add_u32", v(vA[1]), "0x10000", v(vL16))
    k("v_add_u32", v(vA[2]), "0x20000", v(vL16))
    k("s_mov_b32", s(sOne), "0x3f803f80")
    k("s_lshl_b32", s(smt1), s(sX), 4)
    k("s_lshl_b32", s(sx), s(sB), 3)
    k("s_add_u32", s(smt1), s(smt1), s(sx))
    k("s_add_u32", s(smt1), s(smt1), s(sW))
    k("s_lshr_b32", s(sG), s(sW), 2)
    k("s_and_b32", s(sWq), s(sW), 3)
    k("s_and_b32", s(sx), s(sR), 3)
    k("s_lshl_b32", s(sx), s(sx), 2)
    k("s_lshl_b32", s(smt2), s(sX), 4)
    k("s_add_u32", s(smt2), s(smt2), s(sx))
    k("s_add_u32", s(smt2), s(smt2), s(sWq))
    k("s_lshl_b32", s(sx), s(smt2), 14)
    k("s_lshl_b32", s(sO), s(sNb), 7)
    k("s_add_u32", s(sx), s(sx), s(sO))
    k("s_lshl_b32", s(sO), s(sG), 6)
    k("s_add_u32", s(sx), s(sx), s(sO))
    k("v_and_b32", v(t0), 15, "v0")
    k("v_lshlrev_b32", v(vXo), 10, v(t0))
    k("v_lshl_add_u32", v(vXo), v(vG), 3, v(vXo))
    k("v_add_u32", v(vXo), s(sx), v(vXo))
    k.wait_smem()
    for r, sl, sz in srds:
        k("s_and_b32", s(r + 1), s(r + 1), "0xffff")
    k("s_cmp_lg_u32", s(sBad), 0)
    k("s_cbranch_scc1", N + "_cfallback")
    k.label(N + "_cstart")
    for i in range(2): k("v_mov_b32", v(ones + i), "0x3f803f80")
    ST("go", "a")

    D = xa; TL = xa + 8
    lp0 = L("p0a")
    k("s_cmp_ge_u32", s(sR), 16)
    k("s_cbranch_scc1", lp0)
    k("v_lshrrev_b32", v(t0), 5, v(vL))
    k("v_and_b32", v(t1), 31, v(vL))
    k("v_lshlrev_b32", v(t2), 10, v(t0))
    k("v_lshl_add_u32", v(t2), v(t1), 4, v(t2))
    k("s_lshl_b32", s(sx), s(sX), 4)
    k("s_add_u32", s(sx), s(sx), s(sR))
    k("s_lshl_b32", s(sx), s(sx), 14)
    k("s_lshl_b32", s(sy), s(sW), 11)
    k("s_add_u32", s(sx), s(sx), s(sy))
    k("buffer_load_dwordx4", v(D, 4), v(t2), s(rX, 4), s(sx), mods="offen", tag="X0", cond=True)
    k("buffer_load_dwordx4", v(D + 4, 4), v(t2), s(rX, 4), s(sx), mods="offen offset:512", tag="X0", cond=True)
    k("v_lshrrev_b32", v(t2), 2, v(t1))
    k("v_mul_u32_u24", v(t2), 1056, v(t2))
    k("v_and_b32", v(t3), 3, v(t1))
    k("v_lshl_add_u32", v(t2), v(t3), 8, v(t2))
    k("v_lshl_add_u32", v(t2), v(t0), 4, v(t2))
    k("s_lshl_b32", s(sy), s(sW), 5)
    k("s_add_u32", s(sy), s(sy), P0SCR)
    k("v_add_u32", v(t2), s(sy), v(t2))
    k("s_mul_i32", s(sy), s(sW), 2112)
    k("s_add_u32", s(sy), s(sy), P0SCR)
    k("v_add_u32", v(t3), s(sy), v(vL16))
    k.raw("s_waitcnt vmcnt(0)")
    ST("xw", "a")
    rowln(k, D, TL, sOne, 1)
    k("ds_write_b128", v(t2), v(D, 4))
    k("ds_write_b128", v(t2), v(D + 4, 4), mods="offset:%d" % (8 * 1056))
    k.wait_lg()
    k.label(lp0)
    BAR("p")
    lp0 = L("p0b")
    k("s_cmp_ge_u32", s(sR), 16)
    k("s_cbranch_scc1", lp0)
    k("ds_read_b128", v(D, 4), v(t3))
    k("ds_read_b128", v(D + 4, 4), v(t3), mods="offset:1056")
    k("s_add_u32", s(sx), s(sx), s(sT1))
    k.wait_lg()
    k("buffer_store_dwordx4", v(D, 4), v(vL16), s(rWS, 4), s(sx), mods="offen", tag="XS", cond=True)
    k("buffer_store_dwordx4", v(D + 4, 4), v(vL16), s(rWS, 4), s(sx), mods="offen offset:1024", tag="XS", cond=True)
    k.label(lp0)
    k("v_bfe_u32", v(t0), v(vL), 2, 2)
    k("v_and_b32", v(t2), 1, v(vG))
    k("v_lshl_add_u32", v(t0), v(t2), 3, v(t0))
    k("v_lshlrev_b32", v(t0), 6, v(t0))
    k("v_and_b32", v(t1), 1, v(vL))
    k("v_lshl_add_u32", v(t0), v(t1), 3, v(t0))
    k("v_bfe_u32", v(t1), v(vL), 1, 1)
    k("v_lshlrev_b32", v(t2), 1, v(t2))
    k("v_xor_b32", v(t1), v(t1), v(t2))
    k("v_lshrrev_b32", v(t3), 1, v(vG))
    for t in range(2):
        if t: k("v_xor_b32", v(t1), 2, v(t1))
        k("v_lshl_add_u32", v(t2), v(t1), 4, v(t0))
        k("v_lshl_add_u32", v(vT[t]), v(t3), 10, v(t2))
        k("v_add_u32", v(vT[2 + t]), "0x10000", v(vT[t]))
    vBqc = vT[6]
    k("v_lshrrev_b32", v(t0), 2, v(vL))
    k("v_and_b32", v(t1), 3, v(vL))
    k("v_lshrrev_b32", v(t2), 3, v(t0))
    k("v_lshlrev_b32", v(t2), 1, v(t2))
    k("v_xor_b32", v(t1), v(t1), v(t2))
    k("v_mul_u32_u24", v(vBqc), "0xc00", v(t0))
    k("v_lshl_add_u32", v(vBqc), v(t1), 4, v(vBqc))
    k("s_lshl_b32", s(sx), s(sHg), 6)
    k("v_add_u32", v(vBqc), s(sx), v(vBqc))
    k("s_mul_i32", s(sx), s(sW), 98304)
    k("s_lshl_b32", s(sy), s(sW), 11)
    for t in range(2): k("v_mov_b32", v(vT[8 + t]), v(vT[t]))
    for t in range(4): k("v_add_u32", v(vT[t]), s(sy), v(vT[t]))
    k("v_add_u32", v(vT[4]), s(sy), v(vL16))
    k("v_add_u32", v(vT[5]), s(sy), v(vA[1]))
    k.wait_vm()
    ST("xs", "a")
    BAR("X0")
    BAR("q")
    for seg in (1, 2):
        for i in range(2):
            for c in range(2):
                k("s_add_u32", s(sO), s(sx), hex(i * 8 * 98304 + c * 49152 + seg * 1024))
                k("s_add_u32", "m0", s(sy), hex(seg * 32768 + i * 16384 + c * 1024))
                k("buffer_load_dwordx4", v(vBqc), s(rWQ, 4), s(sO), mods="offen lds", tag="WQ%d" % seg)
    for t in range(2):
        k("buffer_load_dwordx2", v(xr + 2 * t, 2), v(vXo), s(rX, 4), 0, mods="offen offset:%d" % (32 * t), tag="XR")
    k("s_mul_i32", s(sO), s(sHg), 224)
    k("v_lshlrev_b32", v(t0), 3, v(vL))
    k("v_add_u32", v(t0), s(sO), v(t0))
    k("buffer_load_dwordx2", v(vT[12], 2), v(t0), s(rB1, 4), 0, mods="offen", tag="BI")
    k("s_lshl_b32", s(sx), s(smt1), 14)
    k("s_add_u32", s(sx), s(sx), s(sT1))
    def tr_wq(segs, R):
        units = [(seg, i, t) for seg in segs for i in range(2) for t in range(2)]
        for n, (seg, i, t) in enumerate(units):
            for h in range(2):
                off = seg * 32768 + i * 16384 + 256 * h
                a = vT[t]
                if off >= 65536: a, off = vT[2 + t], off - 65536
                k("ds_read_b64_tr_b16", v(R + 4 * n + 2 * h, 2), v(a), mods="offset:%d" % off)
        k.wait_lg()
        for n, (seg, i, t) in enumerate(units):
            off = seg * 32768 + i * 16384 + 1024 * t
            k("ds_write_b128", v(vT[4 + (off >> 16)]), v(R + 4 * n, 4), mods="offset:%d" % (off & 65535))
        k.wait_lg()
    k.wait_vm("WQ2")
    ST("wq", "a")
    tr_wq((1, 2), xa)
    BAR("Y0")
    ST("S0", "ma")

    def lda16():
        for j in range(16):
            if j % 4 == 0 and j: k("s_add_u32", s(sx), s(sx), 4096)
            k("buffer_load_dwordx4", v(xa + 4 * j, 4), v(vL16), s(rWS, 4), s(sx), mods=("offen offset:%d sc1" % ((j & 3) * 1024)) if j & 3 else "offen sc1", tag="A%d" % j)
    lda16()
    BAR("a1", 1)
    def rd1(it, slot, tag):
        j, t6 = it
        off = (t6 >> 1) * 32768 + j * 2048 + (t6 & 1) * 1024
        k("ds_read_b128", v(bf + 4 * slot, 4), v(vA[off >> 16]), mods="offset:%d" % (off & 65535), tag=tag)
    def mf1(it, slot):
        j, t6 = it
        W = v(bf + 4 * slot, 4); X = v(xa + 4 * j, 4); C = v(acc + 4 * t6, 4)
        k.wait_vm("A%d" % j)
        a, b = (W, X) if t6 < 2 else (X, W)
        k("v_mfma_f32_16x16x32_bf16", C, a, b, (C if j else 0))
    gemm_ring(k, [(j, t6) for j in range(16) for t6 in (2, 3, 4, 5)], rd1, mf1, 7)
    ST("kvG", "ma")
    T = bf; pk = bf + 12; vv = bf + 16
    kvr = [acc, acc + 4, bf + 20, bf + 24]
    for t in range(2):
        phi_pack(k, acc + 8 + 4 * t, pk + 2 * t, T, sC)
        k("v_cvt_pk_bf16_f32", v(vv + 2 * t), v(acc + 16 + 4 * t), v(acc + 17 + 4 * t))
        k("v_cvt_pk_bf16_f32", v(vv + 2 * t + 1), v(acc + 18 + 4 * t), v(acc + 19 + 4 * t))
    for t in range(2):
        k("v_mfma_f32_16x16x16_bf16", v(kvr[t], 4), v(pk + 2 * t, 2), v(vv + 2 * t, 2), 0)
        k("v_mfma_f32_16x16x16_bf16", v(kvr[2 + t], 4), v(pk + 2 * t, 2), v(ones, 2), 0)
    k("s_lshl_b32", s(sx), s(sW), 12)
    k("v_add_u32", v(t1), s(sx), v(vL16))
    BAR("a1", 0)
    BAR("k")
    for a in range(4):
        k("ds_write_b128", v(t1), v(kvr[a], 4), mods="offset:%d" % (KVSCR + a * 1024))
    k.wait_lg()
    BAR("s")
    R = acc + 8
    k("v_mov_b32", v(t1), ABW)
    k("ds_read_b32", v(t3), v(t1))
    for w in range(8):
        k("ds_read_b64", v(R + 2 * w, 2), v(vT8), mods="offset:%d" % (KVSCR + w * 4096))
    k.wait_lg()
    k("v_readfirstlane_b32", s(sy), v(t3))
    k("s_cmp_lg_u32", s(sy), 0)
    k("s_cbranch_scc1", N + "_cfallback")
    for w in range(1, 8):
        k("v_pk_add_f32", v(R, 2), v(R, 2), v(R + 2 * w, 2))
    k("s_lshl_b32", s(sx), s(sHg), 4)
    k("s_lshl_b32", s(sy), s(sX), 1)
    k("s_add_u32", s(sx), s(sx), s(sy))
    k("s_add_u32", s(sx), s(sx), s(sB))
    k("s_lshl_b32", s(sx), s(sx), 12)
    k("s_add_u32", s(sx), s(sx), hex(WS_PART))
    vPo = vT[15]
    k("v_bfe_u32", v(t0), "v0", 7, 1)
    k("v_lshlrev_b32", v(t0), 6, v(t0))
    k("v_bfe_u32", v(t2), "v0", 5, 2)
    k("v_lshl_add_u32", v(t0), v(t2), 4, v(t0))
    k("v_and_b32", v(t2), 1, "v0")
    k("v_lshl_add_u32", v(t0), v(t2), 3, v(t0))
    k("v_add_u32", v(t0), 2048, v(t0))
    k("s_cmp_ge_u32", s(sW), 4)
    k("s_cselect_b64", "vcc", -1, 0)
    k("v_cndmask_b32", v(vPo), v(vT8), v(t0), "vcc")
    k("s_cselect_b32", s(sy), 3, -1)
    k("s_mov_b32", "exec_lo", s(sy))
    k("s_mov_b32", "exec_hi", s(sy))
    k("buffer_store_dwordx2", v(R, 2), v(vPo), s(rWS, 4), s(sx), mods="offen sc1", tag="PS")
    k.raw("s_mov_b64 exec, -1")
    BAR("ps")
    ST("pubA", "m")
    def rdq(it, slot, tag):
        j, t = it
        for h in range(2):
            k("ds_read_b64_tr_b16", v(bf + 4 * slot + 2 * h, 2), v(vT[8 + t]), mods="offset:%d" % (j * 2048 + 256 * h), tag=tag)
    gemm_ring(k, [(j, t6) for j in range(16) for t6 in (0, 1)], rdq, mf1, 7)
    for t in range(2):
        phi_pack(k, acc + 4 * t, pq + 2 * t, T, sC)
    def tr64():
        k("v_bfe_u32", v(t0), v(vL), 2, 2)
        k("v_lshl_add_u32", v(t1), v(vG), 2, v(t0))
        k("v_bfe_u32", v(t2), v(t1), 1, 2)
        k("v_lshlrev_b32", v(t0), 7, v(t1))
        k("v_and_b32", v(t1), 3, v(vL))
        k("v_lshl_add_u32", v(t0), v(t1), 3, v(t0))
        for t in range(4):
            k("v_xor_b32", v(t1), t, v(t2))
            k("v_lshl_add_u32", v(vT[t]), v(t1), 5, v(t0))
        k("s_lshl_b32", s(sy), s(sG), 12)
    def tr_units(sbase, nu):
        for t in range(4): k("v_add_u32", v(vT[4 + t]), s(sbase), v(vT[t]))
        k("v_add_u32", v(vT[8]), s(sbase), v(vL16))
        for u0 in range(0, nu, 4):
            us = list(range(u0, min(nu, u0 + 4)))
            for u in us:
                for t in range(4):
                    for h in range(2):
                        k("ds_read_b64_tr_b16", v(xa + 16 * (u - u0) + 4 * t + 2 * h, 2), v(vT[4 + t]), mods="offset:%d" % (u * 4096 + h * 2048), tag="u%d" % u)
            for u in us:
                k.wait_lg("u%d" % u)
                for t in range(4):
                    k("ds_write_b128", v(vT[8]), v(xa + 16 * (u - u0) + 4 * t, 4), mods="offset:%d" % (u * 4096 + t * 1024))
            k.wait_lg()
    tr64()
    k("s_lshl_b32", s(sy), s(sG), 12)
    k("s_add_u32", s(sy), s(sy), "0x10000")
    for t in range(4):
        k("v_add_u32", v(vT[7 + t]), s(sy), v(vT[t]))
        k("v_add_u32", v(vT[16 + t]), "0x10000", v(vT[7 + t]))
    k("s_mul_i32", s(sy), s(sHg), 224)
    k("s_bfe_u32", s(sx), s(sy), "0x10005")
    k("s_lshl_b32", s(sx), s(sx), 1)
    k("v_bfe_u32", v(t0), v(vL), 2, 2)
    k("v_lshl_add_u32", v(t0), v(vG), 2, v(t0))
    k("v_and_b32", v(t1), 7, v(t0))
    k("v_lshlrev_b32", v(t1), 1, v(t1))
    k("v_lshlrev_b32", v(t0), 8, v(t0))
    k("v_and_b32", v(t2), 1, v(vL))
    k("v_lshl_add_u32", v(t0), v(t2), 3, v(t0))
    k("v_bfe_u32", v(t2), v(vL), 1, 1)
    k("v_add_u32", v(t2), s(sx), v(t2))
    for t in range(7):
        k("v_add_u32", v(t3), 2 * t, v(t2))
        k("v_xor_b32", v(t3), v(t3), v(t1))
        k("v_lshl_add_u32", v(vT[t]), v(t3), 4, v(t0))
    BIAS = W1BLK[0] * BLK + 7168
    def tr_w1(js):
        l = L("tw")
        k("s_cmp_ge_u32", s(sW), len(js))
        k("s_cbranch_scc1", l)
        k("s_mul_i32", s(sy), s(sW), 5)
        k("s_lshr_b32", s(sy), hex(sum(W1BLK[j] << (5 * i) for i, j in enumerate(js))), s(sy))
        k("s_and_b32", s(sy), s(sy), 31)
        k("s_lshl_b32", s(sy), s(sy), 13)
        for t in range(7): k("v_add_u32", v(bf + t), s(sy), v(vT[t]))
        k("v_add_u32", v(bf + 7), s(sy), v(vL16))
        for t in range(7):
            for h in range(2):
                k("ds_read_b64_tr_b16", v(xa + 4 * t + 2 * h, 2), v(bf + t), mods="offset:%d" % (h * 4096))
        k.wait_lg()
        for t in range(7):
            k("ds_write_b128", v(bf + 7), v(xa + 4 * t, 4), mods="offset:%d" % (t * 1024))
        if js[0] == 0:
            l2 = L("bt")
            k("s_cmp_lg_u32", s(sW), 0)
            k("s_cbranch_scc1", l2)
            for q in range(2): unpack(k, xa + 56 + 2 * q, xa + 57 + 2 * q, vT[12] + q)
            k.raw("s_mov_b64 exec, 0xfffffff")
            k("ds_write_b128", v(bf + 7), v(xa + 56, 4), mods="offset:7168")
            k.raw("s_mov_b64 exec, -1")
            k.label(l2)
        k.wait_lg()
        k.label(l)
    l = L("fm")
    k("s_cmp_eq_u32", s(sMode), 0)
    k("s_cbranch_scc1", l)
    k.raw("s_waitcnt vmcnt(0)")
    k.label(l)
    BAR("X1")
    BAR("Y1")
    ST("SA", "m")

    pr = xa
    lp, lx = L("pp"), L("px")
    k("s_mov_b32", s(sit), 0)
    k.label(lp)
    k("s_lshl_b32", s(sx), s(sHg), 16)
    k("s_add_u32", s(sx), s(sx), hex(WS_PART))
    for m in range(16):
        k("buffer_load_dwordx2", v(pr + 2 * m, 2), v(vPo), s(rWS, 4), s(sx), mods="offen sc1", tag="P")
        if m < 15: k("s_add_u32", s(sx), s(sx), 4096)
    k.wait_vm("P")
    k("v_max3_u32", v(t0), v(pr), v(pr + 1), v(pr + 2))
    k("v_max3_u32", v(t1), v(pr + 3), v(pr + 4), v(pr + 5))
    for m in range(6, 30, 4):
        k("v_max3_u32", v(t0), v(t0), v(pr + m), v(pr + m + 1))
        k("v_max3_u32", v(t1), v(t1), v(pr + m + 2), v(pr + m + 3))
    k("v_max3_u32", v(t0), v(t0), v(pr + 30), v(pr + 31))
    k("v_max_u32", v(t0), v(t0), v(t1))
    k("v_cmp_eq_u32", "vcc", -1, v(t0))
    k("s_add_u32", s(sit), s(sit), 1)
    k.raw("s_nop 4")
    k.raw("s_cbranch_vccz %s" % lx)
    k("s_cmp_lt_u32", s(sit), 4096)
    k("s_cbranch_scc1", lp)
    k.label(lx)
    ST("prt", "m")
    for m in range(1, 16):
        k("v_pk_add_f32", v(pr, 2), v(pr, 2), v(pr + 2 * m, 2))
    k("v_cvt_pk_bf16_f32", v(pr + 2), v(pr), v(pr + 1))
    k("v_lshlrev_b32", v(t0), 2, "v0")
    k("ds_write_b32", v(t0), v(pr + 2), mods="offset:%d" % OSCR)
    k.wait_lg()
    BAR("o")
    fr = xa + 32; nd = xa + 40; o = xa + 56
    k("v_lshlrev_b32", v(t0), 3, v(vL))
    for a in range(4):
        k("ds_read_b64", v(fr + 2 * a, 2), v(t0), mods="offset:%d" % (OSCR + a * 512))
    k.wait_lg()
    for h in range(2):
        k("v_mfma_f32_16x16x16_bf16", v(nd + 4 * h, 4), v(fr + 2 * h, 2), v(pq + 2 * h, 2), 0)
        k("v_mfma_f32_16x16x16_bf16", v(nd + 8 + 4 * h, 4), v(fr + 4 + 2 * h, 2), v(pq + 2 * h, 2), 0)
    for h in range(2):
        d = T + 8 * h; a = [d + 2 + q for q in range(4)]; u0, u1 = d + 6, d + 7
        bf16r(k, d, nd + 8 + 4 * h)
        k("v_add_f32", v(d), "0x358637bd", v(d))
        bf16r(k, d, d)
        k("v_rcp_f32", v(d), v(d))
        k("v_cvt_pk_bf16_f32", v(u0), v(nd + 4 * h), v(nd + 4 * h + 1))
        k("v_cvt_pk_bf16_f32", v(u1), v(nd + 4 * h + 2), v(nd + 4 * h + 3))
        unpack(k, a[0], a[1], u0); unpack(k, a[2], a[3], u1)
        for q in range(4): k("v_mul_f32", v(a[q]), v(a[q]), v(d))
        k("v_cvt_pk_bf16_f32", v(o + 2 * h), v(a[0]), v(a[1]))
        k("v_cvt_pk_bf16_f32", v(o + 2 * h + 1), v(a[2]), v(a[3]))
    k("s_lshl_b32", s(sx), s(smt1), 4)
    k("s_add_u32", s(sx), s(sx), s(sHg))
    k("s_lshl_b32", s(sx), s(sx), 10)
    k("s_add_u32", s(sx), s(sx), s(sT1))
    k("s_mul_i32", s(sy), s(sB), HALF - 128 * 1024)
    k("s_add_u32", s(sx), s(sx), s(sy))
    k("s_add_u32", s(sx), s(sx), hex(R2))
    k("buffer_store_dwordx4", v(o, 4), v(vL16), s(rWS, 4), s(sx), mods="offen", tag="OS")
    def a_base(NH, abase, AJ):
        k("s_mul_i32", s(sA), s(smt2), AJ * 1024)
        k("s_mul_i32", s(sy), s(sG), NH * 1024)
        k("s_add_u32", s(sA), s(sA), s(sy))
        k("s_add_u32", s(sA), s(sA), s(abase))
    a_base(8, sT1, 16)
    k("s_bfe_u32", s(sy), s(sR), "0x10001")
    k("s_mul_i32", s(sy), s(sy), HALF - 128 * 1024)
    k("s_add_u32", s(sA), s(sA), s(sy))
    k("s_add_u32", s(sA), s(sA), hex(R2))
    k.wait_vm("OS")
    BAR("X2")
    tr_w1(list(range(6)))
    BAR("Y2")
    ST("SB", "m")

    def g64(NH, blks, NA):
        st = {"n": 0}
        def lda():
            n = st["n"]
            if n >= NH: return
            if n % 4 == 0 and n: k("s_add_u32", s(sA), s(sA), 4096)
            k("buffer_load_dwordx4", v(xa + 4 * (n % NA), 4), v(vL16), s(rWS, 4), s(sA), mods=("offen offset:%d sc1" % ((n & 3) * 1024)) if n & 3 else "offen sc1", tag="A%d" % n)
            st["n"] += 1
        for n in range(min(NH, NA)): lda()
        def rd(it, slot, tag):
            j, t = it
            base = blks[j] * BLK
            win = base >> 16
            if NH == 8:
                for h in range(2):
                    k("ds_read_b64_tr_b16", v(bf + 4 * slot + 2 * h, 2), v(vT[(7 if win == 1 else 16) + t]),
                      mods="offset:%d" % (base - (win << 16) + h * 2048), tag=tag)
            else:
                for h in range(2):
                    k("ds_read_b64_tr_b16", v(bf + 4 * slot + 2 * h, 2), v(vT[4 * win + t]),
                      mods="offset:%d" % (base - (win << 16) + h * 2048), tag=tag)
        def mf(it, slot):
            j, t = it
            C = v(acc + 4 * t, 4)
            if t == 0: k.wait_vm("A%d" % j)
            k("v_mfma_f32_16x16x32_bf16", C, v(bf + 4 * slot, 4), v(xa + 4 * (j % NA), 4), (C if j else 0))
            if t == 3: lda()
        return rd, mf
    def g64_reduce(scr, bname):
        ln = L("ns")
        k("s_cmp_eq_u32", s(sG), 0)
        k("s_cbranch_scc1", ln)
        for i in range(8): k("v_swap_b32", v(acc + i), v(acc + 8 + i))
        k.label(ln)
        k("s_lshl_b32", s(sy), s(sW), 11)
        k("s_add_u32", s(sy), s(sy), scr)
        k("v_add_u32", v(t0), s(sy), v(vL16))
        k("s_xor_b32", s(sy), s(sW), 4)
        k("s_lshl_b32", s(sy), s(sy), 11)
        k("s_add_u32", s(sy), s(sy), scr)
        k("v_add_u32", v(t1), s(sy), v(vL16))
        k("ds_write_b128", v(t0), v(acc + 8, 4))
        k("ds_write_b128", v(t0), v(acc + 12, 4), mods="offset:1024")
        k.wait_lg()
        BAR(bname)
        k("ds_read_b128", v(acc + 8, 4), v(t1))
        k("ds_read_b128", v(acc + 12, 4), v(t1), mods="offset:1024")
        k.wait_lg()
        for i in range(0, 8, 2): k("v_pk_add_f32", v(acc + i, 2), v(acc + i, 2), v(acc + 8 + i, 2))

    rd, mf = g64(8, WOBLK, 16)
    BAR("a3", 1)
    gemm_ring(k, [(j, t) for j in range(8) for t in range(4)], rd, mf, 7)
    BAR("a3", 0)
    ST("P2G", "m")
    BAR("w")
    g64_reduce(P2SCR, "r")
    k.wait_vm("XR")
    for t in range(2):
        a = [T + q for q in range(4)]; b = [T + 4 + q for q in range(4)]; u0, u1 = T + 8, T + 9
        k("v_cvt_pk_bf16_f32", v(u0), v(acc + 4 * t), v(acc + 4 * t + 1))
        k("v_cvt_pk_bf16_f32", v(u1), v(acc + 4 * t + 2), v(acc + 4 * t + 3))
        unpack(k, a[0], a[1], u0); unpack(k, a[2], a[3], u1)
        unpack(k, b[0], b[1], xr + 2 * t); unpack(k, b[2], b[3], xr + 2 * t + 1)
        k("v_pk_add_f32", v(a[0], 2), v(a[0], 2), v(b[0], 2))
        k("v_pk_add_f32", v(a[2], 2), v(a[2], 2), v(b[2], 2))
        k("v_cvt_pk_bf16_f32", v(hr + 2 * t), v(a[0]), v(a[1]))
        k("v_cvt_pk_bf16_f32", v(hr + 2 * t + 1), v(a[2]), v(a[3]))
    k("s_lshl_b32", s(sx), s(smt2), 14)
    k("s_lshl_b32", s(sy), s(sNb), 11)
    k("s_add_u32", s(sx), s(sx), s(sy))
    k("s_lshl_b32", s(sy), s(sG), 10)
    k("s_add_u32", s(sx), s(sx), s(sy))
    k("s_add_u32", s(sx), s(sx), s(sT1))
    k("buffer_store_dwordx4", v(hr, 4), v(vL16), s(rWS, 4), s(sx), mods="offen", tag="HS")
    vLr, vLw = vT[12], vT[13]
    k("v_lshrrev_b32", v(t0), 5, v(vL))
    k("v_and_b32", v(t1), 31, v(vL))
    k("v_lshrrev_b32", v(vLr), 2, v(t1))
    k("v_mul_u32_u24", v(vLr), 1056, v(vLr))
    k("v_and_b32", v(t3), 3, v(t1))
    k("v_lshl_add_u32", v(vLr), v(t3), 8, v(vLr))
    k("v_lshl_add_u32", v(vLr), v(t0), 4, v(vLr))
    k("s_lshl_b32", s(sy), s(sW), 5)
    k("s_add_u32", s(sy), s(sy), LSCR)
    k("v_add_u32", v(vLr), s(sy), v(vLr))
    k("s_lshl_b32", s(sLo), s(sX), 4)
    k("s_add_u32", s(sLo), s(sLo), s(sR))
    k("s_lshl_b32", s(sLo), s(sLo), 14)
    k("s_lshl_b32", s(sO), s(sW), 11)
    k("s_add_u32", s(sLo), s(sLo), s(sO))
    k("s_add_u32", s(sLo), s(sLo), s(sT1))
    k("s_mul_i32", s(sO), s(sW), 2112)
    k("s_add_u32", s(sO), s(sO), LSCR)
    k("v_add_u32", v(vLw), s(sO), v(vL16))
    k("s_mov_b32", "m0", s(sO))
    k.wait_vm("HS")
    BAR("X3")
    tr_w1(list(range(6, 12)))
    lfree = L("free")
    k("s_cmp_ge_u32", s(sR), 16)
    k("s_cbranch_scc1", lfree)
    BAR("Y3")
    ST("SC", "m")

    k("buffer_load_dwordx4", v(vL16), s(rWS, 4), s(sLo), mods="offen sc1 lds", tag="HL", cond=True)
    k("s_add_u32", "m0", s(sO), 1056 - 1024)
    k("buffer_load_dwordx4", v(vL16), s(rWS, 4), s(sLo), mods="offen offset:1024 sc1 lds", tag="HL", cond=True)
    k.raw("s_waitcnt vmcnt(0)")
    BAR("h")
    k("ds_read_b128", v(D, 4), v(vLr))
    k("ds_read_b128", v(D + 4, 4), v(vLr), mods="offset:%d" % (8 * 1056))
    k.wait_lg()
    rowln(k, D, TL, sOne, 2)
    k("ds_write_b128", v(vLr), v(D, 4))
    k("ds_write_b128", v(vLr), v(D + 4, 4), mods="offset:%d" % (8 * 1056))
    k.wait_lg()
    BAR("l")
    k("ds_read_b128", v(D, 4), v(vLw))
    k("ds_read_b128", v(D + 4, 4), v(vLw), mods="offset:1056")
    k.wait_lg()
    k("buffer_store_dwordx4", v(D, 4), v(vL16), s(rWS, 4), s(sLo), mods="offen", tag="YS", cond=True)
    k("buffer_store_dwordx4", v(D + 4, 4), v(vL16), s(rWS, 4), s(sLo), mods="offen offset:1024", tag="YS", cond=True)
    k.label(lfree)
    vBi = vT[19]
    k("v_lshlrev_b32", v(vBi), 4, v(vG))
    k("v_add_u32", v(vBi), hex(BIAS), v(vBi))
    c1 = 2 * math.sqrt(2 / math.pi) * math.log2(math.e)
    vC2 = vT[18]
    k("v_mov_b32", v(vC2), f2h(-c1 * 0.044715))
    k("s_lshl_b32", s(sx), s(smt1), 14)
    k("s_add_u32", s(sx), s(sx), s(sT1))
    k.raw("s_waitcnt vmcnt(0)")
    k.vmq = []
    BAR("X4")
    tr_w1(list(range(12, 16)))
    BAR("Y4")
    ST("SC2", "mc")

    lda16()
    ST("p3iss", "c")
    BAR("a4", 1)
    RING = 6
    E = vT[8]
    bb = [bf + 24, pq]
    seq = [(t, j) for t in range(7) for j in range(16)]
    def rd3(n):
        t, j = seq[n]
        base = W1BLK[j] * BLK + t * 1024
        k("ds_read_b128", v(bf + (n % RING) * 4, 4), v(vA[base >> 16]), mods="offset:%d" % (base & 65535), tag="f%d" % n)
    def rdb(t):
        k("ds_read_b128", v(bb[t & 1], 4), v(vBi), mods="offset:%d" % (64 * t), tag="bb%d" % t)
    def epi(t):
        a = [E + q for q in range(4)]; b = [E + 4 + q for q in range(4)]; u0, u1 = E + 8, E + 9
        c = acc + 4 * t; B = bb[t & 1]
        o = []
        A = o.append
        A(lambda: k("v_cvt_pk_bf16_f32", v(u0), v(c), v(c + 1)))
        A(lambda: k("v_cvt_pk_bf16_f32", v(u1), v(c + 2), v(c + 3)))
        for q in range(2):
            A(lambda q=q: k("v_lshlrev_b32", v(a[2 * q]), 16, v(u0 + q)))
            A(lambda q=q: k("v_and_b32", v(a[2 * q + 1]), HI, v(u0 + q)))
        A(lambda: k.wait_lg("bb%d" % t))
        for q in range(4): A(lambda q=q: k("v_add_f32", v(a[q]), v(a[q]), v(B + q)))
        A(lambda: k("v_cvt_pk_bf16_f32", v(u0), v(a[0]), v(a[1])))
        A(lambda: k("v_cvt_pk_bf16_f32", v(u1), v(a[2]), v(a[3])))
        for q in range(2):
            A(lambda q=q: k("v_lshlrev_b32", v(a[2 * q]), 16, v(u0 + q)))
            A(lambda q=q: k("v_and_b32", v(a[2 * q + 1]), HI, v(u0 + q)))
        for q in range(4): A(lambda q=q: k("v_mul_f32", v(b[q]), v(a[q]), v(a[q])))
        for q in range(4): A(lambda q=q: k("v_fmaak_f32", v(b[q]), v(vC2), v(b[q]), f2h(-c1)))
        for q in range(4): A(lambda q=q: k("v_mul_f32", v(b[q]), v(a[q]), v(b[q])))
        for q in range(4): A(lambda q=q: k("v_exp_f32", v(b[q]), v(b[q])))
        for q in range(4): A(lambda q=q: k("v_add_f32", v(b[q]), 1.0, v(b[q])))
        for q in range(4): A(lambda q=q: k("v_rcp_f32", v(b[q]), v(b[q])))
        for q in range(4): A(lambda q=q: k("v_mul_f32", v(a[q]), v(a[q]), v(b[q])))
        A(lambda: k("v_cvt_pk_bf16_f32", v(acc + 2 * t), v(a[0]), v(a[1])))
        A(lambda: k("v_cvt_pk_bf16_f32", v(acc + 2 * t + 1), v(a[2]), v(a[3])))
        return o
    for n in range(RING): rd3(n)
    for t in range(8):
        valu = []
        if t >= 1: valu += epi(t - 1)
        if t < 7:
            rdb(t)
            per = -(-len(valu) // 15)
            for j in range(16):
                n = 16 * t + j
                k.wait_lg("f%d" % n)
                if t == 0: k.wait_vm("A%d" % j)
                C = v(acc + 4 * t, 4)
                k("v_mfma_f32_16x16x32_bf16", C, v(bf + (n % RING) * 4, 4), v(xa + 4 * j, 4), (C if j else 0))
                if n + RING < len(seq): rd3(n + RING)
                for f in valu[:per]: f()
                valu = valu[per:]
            if t == A4T: BAR("a4", 0)
            if t in (0, 2, 4): ST("p3t%d" % t, "c")
            if t == 6:
                ST("P3G", "mc")
                BAR("g", 1)
        for f in valu: f()
    k("s_mul_i32", s(sx), s(smt1), 56 * 1024)
    k("s_add_u32", s(sx), s(sx), s(sT2))
    k("s_mul_i32", s(sy), s(sHg), 7)
    k("s_lshr_b32", s(sy), s(sy), 1)
    k("s_lshl_b32", s(sy), s(sy), 10)
    k("s_add_u32", s(sx), s(sx), s(sy))
    lo_, le_ = L("odd"), L("gs")
    k("s_bitcmp1_b32", s(sHg), 0)
    k("s_cbranch_scc1", lo_)
    for i in range(3):
        k("buffer_store_dwordx4", v(acc + 4 * i, 4), v(vL16), s(rWS, 4), s(sx), mods="offen offset:%d" % (1024 * i), tag="GS", cond=True)
    k("buffer_store_dwordx2", v(acc + 12, 2), v(vL16), s(rWS, 4), s(sx), mods="offen offset:3072", tag="GS", cond=True)
    k("s_branch", le_)
    k.label(lo_)
    k("buffer_store_dwordx2", v(acc, 2), v(vL16), s(rWS, 4), s(sx), mods="offen offset:8", tag="GS", cond=True)
    for i in range(3):
        k("buffer_store_dwordx4", v(acc + 2 + 4 * i, 4), v(vL16), s(rWS, 4), s(sx), mods="offen offset:%d" % (1024 * (i + 1)), tag="GS", cond=True)
    k.label(le_)
    k("s_lshl_b32", s(sy), s(sNb), 7)
    k("s_lshl_b32", s(sO), s(sG), 6)
    k("s_add_u32", s(sy), s(sy), s(sO))
    k("v_lshlrev_b32", v(t3), 3, v(vG))
    k("v_add_u32", v(t3), s(sy), v(t3))
    for t in range(2):
        k("buffer_load_dwordx2", v(b2r + 2 * t, 2), v(t3), s(rB2, 4), 0, mods="offen offset:%d" % (32 * t), tag="B2")
    tr64()
    for t in range(4):
        k("v_add_u32", v(vT[t]), s(sy), v(vT[t]))
        k("v_add_u32", v(vT[4 + t]), "0x10000", v(vT[t]))
        k("v_add_u32", v(vT[8 + t]), "0x20000", v(vT[t]))
    a_base(28, sT2, 56)
    ST("P3E", "mc")
    BAR("g", 0)
    k.wait_vm("GS")
    BAR("X5")
    BAR("Y5")
    ST("SD", "mc")

    rd, mf = g64(28, W2BLK, 16)
    def pre4(it):
        if it in ((20, 0), (24, 0)): BAR("b%d" % it[0])
    def post4(it):
        if it == (3, 3): BAR("b5")
        if it == (7, 3): BAR("b9")
    gemm_ring(k, [(j, t) for j in range(28) for t in range(4)], rd, mf, 7, pre4, post4)
    ST("P4G", "m")
    assert W2BLK[9] == W2BLK[8] + 1
    g64_reduce(W2BLK[8] * BLK, "r2")
    k.wait_vm("B2")
    hp = T + 12
    for t in range(2):
        a = [T + q for q in range(4)]; b = [T + 4 + q for q in range(4)]; u0, u1 = T + 8, T + 9
        k("v_cvt_pk_bf16_f32", v(u0), v(acc + 4 * t), v(acc + 4 * t + 1))
        k("v_cvt_pk_bf16_f32", v(u1), v(acc + 4 * t + 2), v(acc + 4 * t + 3))
        unpack(k, a[0], a[1], u0); unpack(k, a[2], a[3], u1)
        unpack(k, b[0], b[1], b2r + 2 * t); unpack(k, b[2], b[3], b2r + 2 * t + 1)
        k("v_pk_add_f32", v(a[0], 2), v(a[0], 2), v(b[0], 2))
        k("v_pk_add_f32", v(a[2], 2), v(a[2], 2), v(b[2], 2))
        k("v_cvt_pk_bf16_f32", v(u0), v(a[0]), v(a[1]))
        k("v_cvt_pk_bf16_f32", v(u1), v(a[2]), v(a[3]))
        unpack(k, a[0], a[1], u0); unpack(k, a[2], a[3], u1)
        unpack(k, b[0], b[1], hr + 2 * t); unpack(k, b[2], b[3], hr + 2 * t + 1)
        k("v_pk_add_f32", v(a[0], 2), v(b[0], 2), v(a[0], 2))
        k("v_pk_add_f32", v(a[2], 2), v(b[2], 2), v(a[2], 2))
        k("v_cvt_pk_bf16_f32", v(hp + 2 * t), v(a[0]), v(a[1]))
        k("v_cvt_pk_bf16_f32", v(hp + 2 * t + 1), v(a[2]), v(a[3]))
        k("buffer_store_dwordx2", v(hp + 2 * t, 2), v(vXo), s(rOUT, 4), 0, mods="offen offset:%d" % (32 * t))
    ST("end", "m")
    if ENDSPIN:
        k.raw("s_waitcnt vmcnt(0) lgkmcnt(0)")
        k.label(N + "_spin")
        k.raw("s_sleep 2")
        k.raw("%s s[86:87]" % mi)
        k.raw("s_waitcnt lgkmcnt(0)")
        k.raw("s_sub_u32 s88, s86, s84")
        k.raw("s_cmp_lt_u32 s88, %d" % int(ENDSPIN[1:]))
        k.raw("s_cbranch_scc1 %s_spin" % N)
    k.dump_stamps(rWS, 0)
    k("s_endpgm")
    k.label(N + "_cfallback")
    k("s_mov_b32", s(sMode), 1)
    k.raw("s_waitcnt vmcnt(0) lgkmcnt(0)")
    k("s_barrier")
    k("s_barrier")
    k("s_branch", N + "_cstart")

    role[0] = "H"
    k.vmq = []; k.lgq = []
    k.label(N + "_helper")
    k("s_sub_u32", s(sH), s(sW), 8)
    k("s_mul_i32", s(sHq), s(sH), 49152)
    k("s_lshl_b32", s(sH1k), s(sH), 10)
    k("s_lshl_b32", s(sH8k), s(sH), 13)
    k("v_lshlrev_b32", v(vL4), 2, v(vL))
    k("v_lshlrev_b32", v(vPf), 7, v(vL))
    k("v_mov_b32", v(vZero), 0)
    k("v_lshrrev_b32", v(t0), 2, v(vL))
    k("v_and_b32", v(t1), 3, v(vL))
    k("v_lshrrev_b32", v(t2), 3, v(t0))
    k("v_lshlrev_b32", v(t2), 1, v(t2))
    k("v_xor_b32", v(t1), v(t1), v(t2))
    k("v_mul_u32_u24", v(vBq), "0xc00", v(t0))
    k("v_lshl_add_u32", v(vBq), v(t1), 4, v(vBq))
    k("s_lshl_b32", s(sx), s(sHg), 6)
    k("v_add_u32", v(vBq), s(sx), v(vBq))
    k("v_lshrrev_b32", v(t0), 3, v(vL))
    k("v_and_b32", v(t1), 7, v(vL))
    k("v_bfe_u32", v(t2), v(t0), 1, 2)
    k("v_lshlrev_b32", v(t2), 1, v(t2))
    k("v_xor_b32", v(t1), v(t1), v(t2))
    k("v_lshlrev_b32", v(vB64), 10, v(t0))
    k("v_lshl_add_u32", v(vB64), v(t1), 4, v(vB64))
    k("s_lshl_b32", s(sx), s(sNb), 7)
    k("v_add_u32", v(vB64), s(sx), v(vB64))
    k("s_mul_i32", s(sy), s(sHg), 224)
    k("s_and_b32", s(sx), s(sy), "0xffffffc0")
    k("v_lshrrev_b32", v(t0), 4, v(vL))
    k("s_lshl_b32", s(sO), s(sH), 2)
    k("v_add_u32", v(t0), s(sO), v(t0))
    k("v_and_b32", v(t1), 7, v(t0))
    k("v_lshlrev_b32", v(t1), 1, v(t1))
    k("v_and_b32", v(t2), 15, v(vL))
    k("v_xor_b32", v(t2), v(t2), v(t1))
    k("v_mul_u32_u24", v(vBw1), 3584, v(t0))
    k("v_lshl_add_u32", v(vBw1), v(t2), 4, v(vBw1))
    k("v_add_u32", v(vBw1), s(sx), v(vBw1))
    k.wait_smem()
    for r, sl, sz in srds:
        k("s_and_b32", s(r + 1), s(r + 1), "0xffff")

    k("s_mov_b32", s(sPp), s(rWS))
    k("s_mov_b32", s(sPp + 1), s(rWS + 1))
    def h0_begin():
        l = L("h0")
        k("s_cmp_lg_u32", s(sH), 0)
        k("s_cbranch_scc1", l)
        return l
    def h0_end(l):
        k.raw("s_mov_b64 exec, -1")
        k.label(l)
    def ld_wq(seg, i):
        for u in range(2):
            k("s_add_u32", s(sO), s(sHq), hex((8 * i + 4 * u) * 49152 + seg * 1024))
            k("s_add_u32", "m0", s(sH1k), hex(seg * 32768 + i * 8192 + u * 4096))
            k("buffer_load_dwordx4", v(vBq), s(rWQ, 4), s(sO), mods="offen lds", tag="WQ")
    def ld_64(srd, NH, n, blk, tag):
        for u in range(2):
            k("s_add_u32", s(sO), s(sH8k), hex((u * NH + n) * 32768))
            k("s_add_u32", "m0", s(sH1k), hex(blk * BLK + u * 4096))
            k("buffer_load_dwordx4", v(vB64), s(srd, 4), s(sO), mods="offen lds", tag=tag)
    def ld_w1(j):
        for u in range(2):
            k("s_add_u32", "m0", s(sH1k), hex(W1BLK[j] * BLK + u * 4096))
            k("s_mov_b32", s(sO), hex((j * 32 + u * 16) * 3584))
            k("buffer_load_dwordx4", v(vBw1), s(rW1, 4), s(sO), mods="offen lds", tag="W1_%d" % j)
    def ld_w2(n):
        ld_64(rW2, 28, n, W2BLK[n], "W2_%d" % n)
    npf = [0]
    def prefetch(srd, base, total, nwg=32):
        q = total // (4 * nwg)
        assert q % 128 == 0
        k("s_and_b32", s(sx), s(sR), nwg - 1)
        k("s_lshl_b32", s(sx), s(sx), 2)
        k("s_add_u32", s(sx), s(sx), s(sH))
        k("s_mul_i32", s(sx), s(sx), q)
        if base: k("s_add_u32", s(sx), s(sx), hex(base))
        lines = q // 128
        while lines > 0:
            n = min(lines, 64)
            if n < 64:
                m = (1 << n) - 1
                k.raw("s_mov_b32 exec_lo, 0x%x" % (m & 0xffffffff))
                k.raw("s_mov_b32 exec_hi, 0x%x" % (m >> 32))
            k("buffer_load_dword", v(vDum), v(vPf), s(srd, 4), s(sx), mods="offen", tag="PF")
            npf[0] += 1
            if n < 64: k.raw("s_mov_b64 exec, -1")
            lines -= n
            if lines: k("s_add_u32", s(sx), s(sx), 8192)

    def touch_ws(kind):
        k("s_lshl_b32", s(sx), s(sX), 21)
        if kind == "r1":
            n = 16
            k("s_lshl_b32", s(sy), s(sR), 13)
            k("s_add_u32", s(sx), s(sx), s(sy))
            k("s_lshl_b32", s(sy), s(sH), 11)
        else:
            k("s_lshr_b32", s(sy), s(sR), 4)
            k("s_mul_i32", s(sy), s(sy), HALF)
            k("s_add_u32", s(sx), s(sx), s(sy))
            k("s_and_b32", s(sy), s(sR), 15)
            k("s_lshl_b32", s(sy), s(sy), 2)
            k("s_add_u32", s(sy), s(sy), s(sH))
            n = 16 if kind == "o" else 40
            k("s_mul_i32", s(sy), s(sy), n * 128)
            k("s_add_u32", s(sx), s(sx), hex(R2 + (0 if kind == "o" else 128 * 1024)))
        k("s_add_u32", s(sx), s(sx), s(sy))
        m = (1 << n) - 1
        k.raw("s_mov_b32 exec_lo, 0x%x" % (m & 0xffffffff))
        k.raw("s_mov_b32 exec_hi, 0x%x" % (m >> 32))
        k("buffer_load_dword", v(vDum), v(vPf), s(rWS, 4), s(sx), mods="offen sc1", tag="PF")
        k.raw("s_mov_b64 exec, -1")
    def slot(name, nwg=32):
        for pc in SCHED.get(name, "").split("."):
            if not pc: continue
            if pc in "og": touch_ws(pc)
            elif pc == "q":
                k("v_lshrrev_b32", v(t0), 3, v(vL))
                k("v_mul_u32_u24", v(t0), "0xc00", v(t0))
                k("v_and_b32", v(t1), 7, v(vL))
                k("v_lshl_add_u32", v(t0), v(t1), 7, v(t0))
                k("s_lshl_b32", s(sx), s(sR), 2)
                k("s_add_u32", s(sx), s(sx), s(sH))
                k("s_mul_i32", s(sx), s(sx), 4 * 3072)
                k.raw("s_mov_b32 exec_hi, 0")
                k("buffer_load_dword", v(vDum), v(t0), s(rWQ, 4), s(sx), mods="offen", tag="PF")
                k.raw("s_mov_b64 exec, -1")
            elif pc in "ab": prefetch(rWO, (pc == "b") * 262144, 262144, nwg)
            elif pc[0] == "w": prefetch(rW1, int(pc[1:]) * 262144, 262144, nwg)
            elif pc[0] == "v": prefetch(rW2, int(pc[1:]) * 262144, 262144, nwg)
            else: assert 0, pc
    def gbar(i):
        k.raw("buffer_wbl2 sc1")
        k.raw("s_waitcnt vmcnt(0)")
        k.raw("s_mov_b64 exec, 1")
        k("v_mov_b32", v(t0), 1)
        k.raw("buffer_atomic_add v%d, v%d, s[%d:%d], 0 offen offset:%d sc1" % (t0, vZero, rDBG, rDBG + 3, 132 + 4 * i))
        k("s_mov_b32", s(sit), 0)
        lp, lx = L("gp"), L("gx")
        k.label(lp)
        k("s_sleep", 8)
        k("s_add_u32", s(sit), s(sit), 1)
        k("s_cmp_gt_u32", s(sit), LIMIT)
        k("s_cbranch_scc1", lx)
        k.raw("buffer_load_dword v%d, v%d, s[%d:%d], 0 offen offset:%d sc1" % (t0, vZero, rDBG, rDBG + 3, 132 + 4 * i))
        k.raw("s_waitcnt vmcnt(0)")
        k("v_cmp_gt_u32", "vcc", 256, v(t0))
        k.raw("s_nop 4")
        k.raw("s_cbranch_vccnz %s" % lp)
        k.label(lx)
        k.raw("s_mov_b64 exec, -1")
        k.raw("buffer_inv sc1")
        k.raw("s_waitcnt vmcnt(0)")
    def publish(srd, off_fn, val, mn, bits):
        off_fn()
        k("v_mov_b32", v(t0), val)
        k.raw("s_mov_b64 exec, 1")
        k(mn, v(t0), v(vZero), s(srd, 4), s(sx), mods=("offen " + bits).strip(), cond=True)
    def poll(srd, off_fn, nl, mask_fn, stage, checkbad):
        k.raw("s_mov_b64 exec, 0x%x" % ((1 << nl) - 1))
        off_fn()
        mask_fn()
        k("s_mov_b32", s(sit), 0)
        lp, lx, lt = L("p"), L("x"), L("t")
        k.label(lp)
        k.raw("buffer_load_dword v%d, v%d, s[%d:%d], s%d offen sc1" % (t0, vL4, srd, srd + 3, sx))
        k.raw("s_waitcnt vmcnt(0)")
        k("v_or_b32", v(t0), "0x80808080", v(t0))
        k("v_subrev_u32", v(t0), hex(stage * 0x01010101), v(t0))
        k("v_and_b32", v(t0), v(t0), v(vMask))
        k("v_cmp_ne_u32", "vcc", v(t0), v(vMask))
        k.raw("s_nop 4")
        k.raw("s_cbranch_vccz %s" % lx)
        k("s_add_u32", s(sit), s(sit), 1)
        k("s_cmp_gt_u32", s(sit), LIMIT)
        k("s_cbranch_scc1", lt)
        if checkbad:
            k("s_and_b32", s(sy), s(sit), 7)
            k("s_cmp_lg_u32", s(sy), 0)
            k("s_cbranch_scc1", lp)
            k.raw("buffer_load_dword v%d, v%d, s[%d:%d], 0 offen offset:128 sc1" % (t1, vZero, rDBG, rDBG + 3))
            k.raw("s_waitcnt vmcnt(0)")
            k("v_readfirstlane_b32", s(sy), v(t1))
            k("s_lshr_b32", s(sy), s(sy), 16)
            k("s_cmp_eq_u32", s(sy), 0)
            k("s_cbranch_scc1", lp)
        else:
            k("s_branch", lp)
        k.label(lt)
        k("s_mov_b32", s(sAb), 1)
        k.label(lx)
    def sync(idx, fast_fn):
        l = h0_begin()
        lf = L("fb")
        k("s_cmp_lg_u32", s(sMode), 0)
        k("s_cbranch_scc1", lf)
        fast_fn()
        k.raw("s_mov_b64 exec, -1")
        k("s_branch", l)
        k.label(lf)
        gbar(idx)
        h0_end(l)
    def prog_off():
        k("s_lshl_b32", s(sx), s(sX), 21)
        k("s_add_u32", s(sx), s(sx), hex(PROGO))
    def prog_own_off():
        prog_off()
        k("s_add_u32", s(sx), s(sx), s(sR))
    def mask_all(sval_fn):
        def f():
            sval_fn()
            k("v_mov_b32", v(vMask), s(sy))
        return f
    def mask_range(slo_fn, n):
        def f():
            slo_fn()
            k("v_subrev_u32", v(t1), s(sy), v(vL))
            k("v_cmp_gt_u32", "vcc", n, v(t1))
            k("v_mov_b32", v(t1), "0x80808080")
            k("v_cndmask_b32", v(vMask), 0, v(t1), "vcc")
        return f
    def fla_off():
        k("s_mul_i32", s(sx), s(sHg), 4352)
        k("s_add_u32", s(sx), s(sx), hex(WS_FLA))
    def fla_own():
        fla_off()
        k("s_lshl_b32", s(sy), s(sX), 3)
        k("s_add_u32", s(sx), s(sx), s(sy))
        k("s_lshl_b32", s(sy), s(sB), 2)
        k("s_add_u32", s(sx), s(sx), s(sy))

    l = L("h1")
    k("s_cmp_lg_u32", s(sH), 1)
    k("s_cbranch_scc1", l)
    for i in range(4): k("v_mov_b32", v(vBt + i), -1)
    k("s_lshl_b32", s(sx), s(sHg), 4)
    k("s_lshl_b32", s(sy), s(sX), 1)
    k("s_add_u32", s(sx), s(sx), s(sy))
    k("s_add_u32", s(sx), s(sx), s(sB))
    k("s_lshl_b32", s(sx), s(sx), 12)
    k("s_add_u32", s(sx), s(sx), hex(WS_PART))
    k("buffer_store_dwordx4", v(vBt, 4), v(vL16), s(rWS, 4), s(sx), mods="offen sc1", cond=True)
    k("buffer_store_dwordx4", v(vBt, 4), v(vL16), s(rWS, 4), s(sx), mods="offen offset:1024 sc1", cond=True)
    k.raw("s_mov_b64 exec, 0xff")
    k("buffer_store_dwordx4", v(vBt, 4), v(vL16), s(rWS, 4), s(sx), mods="offen offset:2048 sc1", cond=True)
    l2 = L("z")
    k("s_cmp_lg_u32", s(sR), 0)
    k("s_cbranch_scc1", l2)
    prog_off()
    k("buffer_store_dword", v(vZero), v(vL4), s(rWS, 4), s(sx), mods="offen", cond=True)
    k.label(l2)
    k.raw("s_mov_b64 exec, -1")
    k.label(l)
    def register(younger):
        l = L("h1")
        k("s_cmp_lg_u32", s(sH), 1)
        k("s_cbranch_scc1", l)
        k("s_lshl_b32", s(sy), s(sBad), 16)
        k("s_add_u32", s(sy), s(sy), 1)
        k("v_mov_b32", v(vReg), s(sy))
        k.raw("s_mov_b64 exec, 1")
        k.raw("s_waitcnt vmcnt(%d)" % younger)
        k("buffer_atomic_add", v(vReg), v(vZero), s(rDBG, 4), 0, mods="offen offset:128 sc1", cond=True)
        k.raw("s_mov_b64 exec, -1")
        k.label(l)
    lg = L("good")
    k("s_cmp_eq_u32", s(sBad), 0)
    k("s_cbranch_scc1", lg)
    register(0)
    k("s_branch", N + "_hfallback")
    k.label(lg)
    k.label(N + "_hstart")
    l = L("h2")
    k("s_cmp_lg_u32", s(sH), 2)
    k("s_cbranch_scc1", l)
    k.raw("s_getpc_b64 s[%d:%d]" % (sC, sC + 1))
    k.label(N + "_pc")
    k.raw("s_sub_u32 s%d, s%d, %s_pc-%s" % (sC, sC, N, N))
    k.raw("s_subb_u32 s%d, s%d, 0" % (sC + 1, sC + 1))
    k.raw("s_and_b32 s%d, s%d, 0xffff" % (sC + 1, sC + 1))
    k.raw("s_mov_b32 s%d, %s_done-%s" % (sC + 2, N, N))
    k.raw("s_mov_b32 s%d, 0x20000" % (sC + 3))
    k("s_mul_i32", s(sx), s(sR), 10 * 128)
    k("v_add_u32", v(t0), s(sx), v(vPf))
    k.raw("s_mov_b64 exec, 0x3ff")
    k("buffer_load_dword", v(vDum), v(t0), s(sC, 4), 0, mods="offen", cond=True)
    k.raw("s_mov_b64 exec, -1")
    k.label(l)
    if "r" not in SQ: touch_ws("r1")
    l = L("h3")
    k("s_cmp_lg_u32", s(sH), 3)
    k("s_cbranch_scc1", l)
    k.raw("s_mov_b64 exec, 7")
    k("s_mul_i32", s(sx), s(sHg), 224)
    k("v_mul_u32_u24", v(t0), 110, v(vL))
    k("buffer_load_ubyte", v(vDum), v(t0), s(rB1, 4), s(sx), mods="offen", cond=True)
    k.raw("s_mov_b64 exec, 1")
    k("s_lshl_b32", s(sx), s(sNb), 7)
    k("buffer_load_dword", v(vDum), v(vZero), s(rB2, 4), s(sx), mods="offen", cond=True)
    k.raw("s_mov_b64 exec, -1")
    k.label(l)
    l = h0_begin()
    k.raw("s_mov_b64 exec, 1")
    prog_off()
    k("buffer_load_dword", v(vDum), v(vZero), s(rWS, 4), s(sx), mods="offen sc1", cond=True)
    h0_end(l)
    k("v_lshrrev_b32", v(t0), 4, v(vL))
    k("v_mul_u32_u24", v(t0), "0xc00", v(t0))
    k("v_and_b32", v(t1), 15, v(vL))
    k("v_lshl_add_u32", v(t0), v(t1), 7, v(t0))
    k("s_mul_i32", s(sx), s(sR), 3)
    k("s_mul_i32", s(sy), s(sR), 5)
    k("s_sub_u32", s(sy), s(sy), 32)
    k("s_cmp_lt_u32", s(sR), 16)
    k("s_cselect_b32", s(sx), s(sx), s(sy))
    k("s_cselect_b32", s(sy), 3, 4)
    k("s_add_u32", s(sx), s(sx), s(sH))
    k("s_mul_i32", s(sx), s(sx), 4 * 3072)
    l = L("kv")
    k("s_cmp_ge_u32", s(sH), s(sy))
    k("s_cbranch_scc1", l)
    k("buffer_load_dword", v(vDum), v(t0), s(rWQ, 4), s(sx), mods="offen offset:1024", tag="PF", cond=True)
    k("s_cmp_lg_u32", s(sH), 3)
    k("s_cbranch_scc1", l)
    k("s_add_u32", s(sx), s(sx), 4 * 3072)
    k("buffer_load_dword", v(vDum), v(t0), s(rWQ, 4), s(sx), mods="offen offset:1024", tag="PF", cond=True)
    k.label(l)
    lm = L("nr")
    k("s_cmp_lg_u32", s(sMode), 0)
    k("s_cbranch_scc1", lm)
    register(1 if "r" in SQ else 2)
    k.label(lm)
    BAR("p")
    BAR("X0")
    def s0_off():
        k("s_lshl_b32", s(sx), s(sX), 4)
    l = h0_begin()
    k("s_cmp_lg_u32", s(sMode), 0)
    k("s_cbranch_scc1", l)
    k("s_cmp_ge_u32", s(sR), 16)
    k("s_cbranch_scc1", l)
    def own():
        s0_off()
        k("s_add_u32", s(sx), s(sx), s(sR))
    publish(rDBG, own, 1, "buffer_store_byte", "")
    h0_end(l)
    k.raw("s_waitcnt vmcnt(1)")
    l = L("w1")
    k("s_lshl_b32", s(sy), s(sMode), 1)
    k("s_add_u32", s(sy), s(sy), s(sH))
    k("s_cmp_eq_u32", s(sy), 1)
    k("s_cbranch_scc1", l)
    k.raw("s_waitcnt vmcnt(0)")
    k.label(l)
    k.vmq = [("?", "AT")]
    ST("hpf", "a")
    BAR("q")
    sync(0, lambda: poll(rDBG, s0_off, 4, mask_range(lambda: k("s_lshl_b32", s(sy), s(sB), 1), 2), 1, True))
    ST("hs0", "a")
    BAR("Y0")
    BAR("a1")
    l = h0_begin()
    lx = L("rx")
    k("s_cmp_lg_u32", s(sMode), 0)
    k("s_cbranch_scc1", lx)
    k.raw("s_mov_b64 exec, 1")
    k("s_mov_b32", s(sit), 0)
    lp, lt = L("rp"), L("rt")
    k.label(lp)
    k.raw("buffer_load_dword v%d, v%d, s[%d:%d], 0 offen offset:128 sc1" % (vReg, vZero, rDBG, rDBG + 3))
    k.raw("s_waitcnt vmcnt(0)")
    k("v_readfirstlane_b32", s(sy), v(vReg))
    k("s_lshr_b32", s(sx), s(sy), 16)
    k("s_cmp_lg_u32", s(sx), 0)
    k("s_cbranch_scc1", lt)
    k("s_cmp_eq_u32", s(sy), 256)
    k("s_cbranch_scc1", lx)
    k("s_add_u32", s(sit), s(sit), 1)
    k("s_cmp_gt_u32", s(sit), LIMIT)
    k("s_cbranch_scc1", lt)
    k("s_sleep", 4)
    k("s_branch", lp)
    k.label(lt)
    k("s_mov_b32", s(sAb), 1)
    k.label(lx)
    k.raw("s_mov_b64 exec, 1")
    k("v_mov_b32", v(t0), s(sAb))
    k("v_mov_b32", v(t1), ABW)
    k.raw("ds_write_b32 v%d, v%d" % (t1, t0))
    k.raw("s_waitcnt lgkmcnt(0)")
    h0_end(l)
    slot("a0")
    k.wait_vm("PF")
    for i in range(4): ld_wq(0, i)
    slot("a1")
    BAR("k")
    BAR("s")
    k("v_mov_b32", v(t1), ABW)
    k("ds_read_b32", v(t3), v(t1))
    k.wait_lg()
    k("v_readfirstlane_b32", s(sy), v(t3))
    k("s_cmp_lg_u32", s(sy), 0)
    k("s_cbranch_scc1", N + "_hfallback")
    k.wait_vm("WQ")
    BAR("ps")
    slot("ps")
    BAR("X1")
    sync(1, lambda: None)
    BAR("Y1")
    k.wait_vm("PF")
    for n in range(8): ld_64(rWO, 8, n, WOBLK[n], "WO")
    for j in range(6): ld_w1(j)
    slot("y1")
    BAR("o")
    k.wait_vm("W1_5")
    BAR("X2")
    def m_half():
        k("s_bfe_u32", s(sy), s(sR), "0x10001")
        k("s_lshl_b32", s(sy), s(sy), 3)
        k("s_lshl_b32", s(sy), "0x00800080", s(sy))
    def lsync(idx, stage, mask_fn):
        def f():
            publish(rWS, prog_own_off, stage, "buffer_store_byte", "")
            poll(rWS, prog_off, 8, mask_fn, stage, False)
        sync(idx, f)
    lsync(2, 1, mask_all(m_half))
    BAR("Y2")
    BAR("a3")
    for j in range(6, 12): ld_w1(j)
    slot("a3")
    BAR("w")
    BAR("r")
    k.wait_vm("W1_11")
    BAR("X3")
    def m_quarter():
        k("s_lshr_b32", s(sy), s(sR), 2)
        k("s_lshl_b32", s(sy), s(sy), 3)
        k("s_lshl_b32", s(sy), "0x80", s(sy))
    lfree, ljoin = L("hfree"), L("hjoin")
    k("s_cmp_ge_u32", s(sR), 16)
    k("s_cbranch_scc1", lfree)
    sp0 = {"lines": list(spq["lines"]), "q": list(spq["q"])}
    lsync(3, 2, mask_all(m_quarter))
    BAR("Y3")
    BAR("h")
    q0 = list(k.vmq)
    for j in range(12, 16): ld_w1(j)
    slot("xl", 16)
    BAR("l")
    k.wait_vm("W1_15")
    k("s_branch", ljoin)
    k.label(lfree)
    k.vmq = q0
    sync(3, lambda: publish(rWS, prog_own_off, 2, "buffer_store_byte", ""))
    for j in range(12, 16): ld_w1(j)
    slot("xf", 16)
    spq.update(sp0)
    sp(sum(SS.get(x, 0) for x in ("Y3", "h", "l")))
    k.wait_vm("W1_15")
    k.label(ljoin)
    k.vmq = [("?", "PF")]
    BAR("X4")
    lsync(4, 3, mask_range(lambda: k("s_lshl_b32", s(sy), s(sB), 1), 2))
    BAR("Y4")
    BAR("a4")
    slot("a4")
    for n in range(4): ld_w2(n)
    BAR("g")
    for n in range(4, 20): ld_w2(n)
    k.wait_vm("W2_19")
    ST("hw2", "m")
    BAR("X5")
    lsync(5, 4, mask_all(m_half))
    BAR("Y5")
    BAR("b5")
    for n in range(20, 24): ld_w2(n)
    BAR("b9")
    for n in range(24, 28): ld_w2(n)
    for j in (20, 24):
        k.wait_vm("W2_%d" % (j + 3))
        BAR("b%d" % j)
    BAR("r2")
    k.dump_stamps(rWS, 0)
    k("s_endpgm")
    k.label(N + "_hfallback")
    k("s_mov_b32", s(sMode), 1)
    k("s_mov_b32", s(sAb), 0)
    k.raw("s_waitcnt vmcnt(0) lgkmcnt(0)")
    k("s_barrier")
    l = h0_begin()
    gbar(6)
    h0_end(l)
    k("s_barrier")
    k("s_branch", N + "_hstart")
    k.label(N + "_done")
    k("s_endpgm")
    assert bars["C"] == bars["H"], (bars["C"], bars["H"])
    n = len(bars["C"])
    assert cbars[0][:n] == bars["C"] and cbars[1][:n] == bars["C"], (cbars, bars["C"])
    assert k.snext <= 80, k.snext
    if spq["lines"] or spq["q"]: print("WARNING scalar stream left:", len(spq["lines"]), spq["q"])
    if PROF: print("STAMPS", " ".join(sorted(slots, key=slots.get)))
    return k, 768, 163840

if __name__ == "__main__":
    gen.build_list([gen_main()], sys.argv[1] if len(sys.argv) > 1 else "cdna_kernels/%s.s" % NAME)
```

```python
import sys, os, math, struct
sys.path.insert(0, "dev")
from asmlib import *
import gen
from gen import unpack, phi_pack, LOG2E, HI
from gen2 import bf16r, rowln, f2h

NAME = gen.NAME
MB = 1 << 20
WS_PART, WS_FLA = 16 * MB, 17 * MB
R2, HALF, PROGO = 256 * 1024, 448 * 1024, 1152 * 1024
PROF = bool(int(os.environ.get("PROF", "0")))
PROFSET = os.environ.get("PROFSET", "m")

rX, rWQ, rWO, rW1, rB1, rW2, rB2, rOUT, rDBG, rWS = 4, 8, 12, 16, 20, 24, 28, 32, 36, 40
BLK = 8192
W1BLK = [8, 9, 10, 11, 4, 5, 6, 0, 1, 2, 3, 7, 16, 17, 18, 19]
W2BLK = [12, 13, 14, 15] + W1BLK
W2BLK = W2BLK + W2BLK[:8]
WOBLK = [12 + n for n in range(8)]
P0SCR = 12 * BLK
KVSCR = 4 * BLK
OSCR = 7 * BLK
ABW = 19 * BLK
P2SCR = 12 * BLK
LSCR = 12 * BLK
LIMIT = 1 << 15
SP = int(os.environ.get("SP", "20"))
NQ = 4
PFA = int(os.environ.get("PFA", "6")) * 32 * 3584
GFP = os.environ.get("GFP", "a1")
SCHED = dict(x.split(":") for x in os.environ.get("SCHED", "a0:q,ps:c.o.a.b.w0.w1.w2,y1:c.w3.w4.w5.w6,xf:c.v0.v3.v4.v1,a4:c.g.v5.v2.v6").split(","))
SQ = [x for x in os.environ.get("SQ", "").split(".") if x]
SS = {a: int(b) for a, b in (x.split(":") for x in os.environ.get("SS", "").split(",") if x)}
A4T = int(os.environ.get("A4T", "1"))
WOT = int(os.environ.get("WOT", "0"))
A1W = int(os.environ.get("A1W", "0"))
FW2 = int(os.environ.get("FW2", "14"))
WB = os.environ.get("WB", "")
WBR = int(os.environ.get("WBR", "0"))
OUTM = os.environ.get("OUTM", "")
NLO = int(os.environ.get("NLO", "24"))
P3H = ()

def gemm1(k, steps, T, rd, mfma, pre=None):
    j0 = steps[0]
    if pre: pre(j0)
    for t in range(T): rd(j0, t)
    for n, j in enumerate(steps):
        nxt = steps[n + 1] if n + 1 < len(steps) else None
        if nxt is not None and pre: pre(nxt)
        for t in range(T):
            k.wait_lg("f%d_%d" % (j, t))
            mfma(j, t)
            if nxt is not None: rd(nxt, t)

def gemm_ring(k, seq, rd, mf, ring, pre_rd=None, post_mf=None):
    def R(n):
        if pre_rd: pre_rd(seq[n])
        rd(seq[n], n % ring, "f%d" % n)
    for n in range(min(ring, len(seq))): R(n)
    for n, it in enumerate(seq):
        k.wait_lg("f%d" % n)
        mf(it, n % ring)
        if post_mf: post_mf(it)
        if n + ring < len(seq): R(n + ring)

def gen_main():
    k = Kern("fused_kernel")
    k.prof = PROF
    k.ndump = 16
    slots = {}
    def ST(name, grp="m"):
        if PROF and set(grp) & set(PROFSET):
            if name not in slots: slots[name] = len(slots)
            k.stamp(slots[name])
    k.snext = 44
    k.vnext = 1
    N = k.name
    if PROF:
        for i in range(16): k("s_mov_b32", s(82 + i), 0)
    ST("start", "mabcd")
    ENDSPIN = os.environ.get("ENDSPIN", "")
    if ENDSPIN:
        mi = "s_memrealtime" if ENDSPIN[0] == "r" else "s_memtime"
        k.raw("%s s[84:85]" % mi)
        k.maxs = 90
    k("s_cmp_ge_u32", "s2", 256)
    k("s_cbranch_scc1", N + "_done")
    srds = [(rX, 0, 2 * MB), (rWQ, 1, 512 * 1536 * 2), (rWO, 2, 512 * 512 * 2), (rW1, 4, 512 * 1792 * 2), (rB1, 5, 1792 * 2),
            (rW2, 6, 1792 * 512 * 2), (rB2, 7, 1024), (rOUT, 8, 2 * MB), (rDBG, 9, 256), (rWS, 10, 32 * MB)]
    for r, sl, sz in srds:
        k("s_load_dwordx2", s(r, 2), "s[0:1]", sl * 8)
    for r, sl, sz in srds:
        k("s_mov_b32", s(r + 2), hex(sz))
        k("s_mov_b32", s(r + 3), "0x20000")
    S = lambda: k.salloc()
    sW, sX, sR, sMode, sAb, sBad = S(), S(), S(), S(), S(), S()
    sx, sy, sO, sit, sOne = S(), S(), S(), S(), S()
    sB, sHg, smt1, smt2, sNb, sG, sWq, sA, sLo = S(), S(), S(), S(), S(), S(), S(), S(), S()
    sC = k.salloc(8, 4)
    sT1, sT2 = S(), S()
    sH, sHq, sH1k, sH8k = smt1, smt2, sG, sWq
    V = lambda n=1: k.valloc(n)
    vL, vG, vL16, vT8 = V(), V(), V(), V()
    t0, t1, t2, t3 = V(), V(), V(), V()
    vXo = V()
    ones = V(2)
    pq, hr, xr = V(4), V(4), V(4)
    b2r = xr
    vTb = V(21 + 3)
    vT = [vTb + i for i in range(24)]
    vA = [vL16, vT[21], vT[22]]
    vB = [vT[12], vT[13], vT[14]]
    acc = V(28)
    bf = V(28)
    xa = V(64)
    assert k.vnext <= 168, k.vnext
    vBq, vB64, vBw1, vPf, vL4, vZero, vMask, vReg, vDum, vBa = [acc + i for i in range(10)]
    vBb, vBt = acc + 10, acc + 12

    lab = [0]
    def L(p):
        lab[0] += 1
        return "%s_%s%d" % (N, p, lab[0])
    bars = {"C": [], "H": []}
    role = ["C"]
    def BAR(name, cls=None):
        if cls is None:
            for c in cbars: c.append(name)
            bars[role[0]].append(name)
            if role[0] == "H": sp(SS.get(name, 0))
            k("s_barrier")
            return
        cbars[cls].append(name)
        if cls == 0: bars[role[0]].append(name)
        l = L("cb")
        k("s_cmp_eq_u32", s(sG), 1 - cls)
        k("s_cbranch_scc1", l)
        k("s_barrier")
        k.label(l)
    cbars = [[], []]
    sPp = k.salloc(2)
    spq = {"lines": [], "q": list(SQ)}
    def sp(n):
        if not n or not (spq["lines"] or spq["q"]): return
        l = L("sp")
        k("s_cmp_eq_u32", s(sH), 0)
        k("s_cbranch_scc1", l)
        for _ in range(n):
            if not spq["lines"]:
                if not spq["q"]: break
                pc = spq["q"].pop(0)
                if pc == "q":
                    k("s_lshl_b32", s(sC + 6), s(sR), 4)
                    k("s_mul_i32", s(sC + 7), s(sH), 5)
                    k("s_add_u32", s(sC + 6), s(sC + 6), s(sC + 7))
                    k("s_sub_u32", s(sC + 6), s(sC + 6), 5)
                    k("s_mul_i32", s(sC + 6), s(sC + 6), 3072)
                    k("s_add_u32", s(sC + 6), s(sC + 6), 60)
                    k("s_add_u32", s(sPp), s(rWQ), s(sC + 6))
                    k("s_addc_u32", s(sPp + 1), s(rWQ + 1), 0)
                    spq["lines"] = [(i >> 3) * 24 + (i & 7) for i in range(48)]
            if not spq["lines"]:
                nl = 160 if pc == "g" else 64
                per = (nl + 2) // 3
                if pc in "ab": srd, base = rWO, (pc == "b") * 262144
                elif pc[0] == "w": srd, base = rW1, int(pc[1:]) * 262144
                elif pc[0] == "v": srd, base = rW2, int(pc[1:]) * 262144
                else: srd, base = rWS, (0 if pc == "r" else R2 + (0 if pc == "o" else 128 * 1024))
                if pc == "r":
                    k("s_lshl_b32", s(sC + 6), s(sR), 13)
                    k("s_lshl_b32", s(sC + 7), s(sX), 21)
                    k("s_add_u32", s(sC + 6), s(sC + 6), s(sC + 7))
                elif srd == rWS:
                    k("s_and_b32", s(sC + 6), s(sR), 15)
                    k("s_mul_i32", s(sC + 6), s(sC + 6), nl * 128)
                    k("s_lshr_b32", s(sC + 7), s(sR), 4)
                    k("s_mul_i32", s(sC + 7), s(sC + 7), HALF)
                    k("s_add_u32", s(sC + 6), s(sC + 6), s(sC + 7))
                    k("s_lshl_b32", s(sC + 7), s(sX), 21)
                    k("s_add_u32", s(sC + 6), s(sC + 6), s(sC + 7))
                else:
                    k("s_mul_i32", s(sC + 6), s(sR), nl * 128)
                assert 2 * (per - 1) + per == nl
                k("s_mul_i32", s(sC + 7), s(sH), (per - 1) * 128)
                k("s_add_u32", s(sC + 6), s(sC + 6), s(sC + 7))
                k("s_add_u32", s(sC + 6), s(sC + 6), hex(base + 60 - (per - 1) * 128 + (1 << 32)) if base + 60 < (per - 1) * 128 else hex(base + 60 - (per - 1) * 128))
                k("s_add_u32", s(sPp), s(srd), s(sC + 6))
                k("s_addc_u32", s(sPp + 1), s(srd + 1), 0)
                spq["lines"] = list(range(per))
            i = spq["lines"].pop(0)
            k.raw("s_load_dwordx2 s[%d:%d], s[%d:%d], 0x%x" % (sC + 4, sC + 5, sPp, sPp + 1, i * 128))
        k.label(l)

    k("v_lshrrev_b32", v(t0), 6, "v0")
    k("v_readfirstlane_b32", s(sW), v(t0))
    k("s_and_b32", s(sX), "s2", 7)
    k("s_lshr_b32", s(sR), "s2", 3)
    k("v_and_b32", v(vL), 63, "v0")
    k("v_bfe_u32", v(vG), "v0", 4, 2)
    k("v_lshlrev_b32", v(vL16), 4, v(vL))
    k("s_and_b32", s(sB), s(sR), 1)
    k("s_lshr_b32", s(sHg), s(sR), 1)
    k("s_lshr_b32", s(sNb), s(sR), 2)
    k("s_mov_b32", s(sMode), 0)
    k("s_mov_b32", s(sAb), 0)
    k("s_mul_i32", s(sT1), s(sX), hex(2 * MB - 256 * 1024))
    k("s_mul_i32", s(sT2), s(sX), hex(2 * MB - 896 * 1024))
    k("s_add_u32", s(sT2), s(sT2), hex(R2))
    k.raw("s_getreg_b32 s%d, hwreg(HW_REG_XCC_ID)" % sBad)
    k("s_and_b32", s(sBad), s(sBad), 15)
    k("s_cmp_lg_u32", s(sBad), s(sX))
    k("s_cselect_b32", s(sBad), 1, 0)
    k("s_cmp_ge_u32", s(sW), 8)
    k("s_cbranch_scc1", N + "_helper")

    k("v_lshlrev_b32", v(vT8), 3, "v0")
    k("v_add_u32", v(vA[1]), "0x10000", v(vL16))
    k("v_add_u32", v(vA[2]), "0x20000", v(vL16))
    k("s_mov_b32", s(sOne), "0x3f803f80")
    k("s_lshl_b32", s(smt1), s(sX), 4)
    k("s_lshl_b32", s(sx), s(sB), 3)
    k("s_add_u32", s(smt1), s(smt1), s(sx))
    k("s_add_u32", s(smt1), s(smt1), s(sW))
    k("s_lshr_b32", s(sG), s(sW), 2)
    k("s_and_b32", s(sWq), s(sW), 3)
    k("s_and_b32", s(sx), s(sR), 3)
    k("s_lshl_b32", s(sx), s(sx), 2)
    k("s_lshl_b32", s(smt2), s(sX), 4)
    k("s_add_u32", s(smt2), s(smt2), s(sx))
    k("s_add_u32", s(smt2), s(smt2), s(sWq))
    k("s_lshl_b32", s(sx), s(smt2), 14)
    k("s_lshl_b32", s(sO), s(sNb), 7)
    k("s_add_u32", s(sx), s(sx), s(sO))
    k("s_lshl_b32", s(sO), s(sG), 6)
    k("s_add_u32", s(sx), s(sx), s(sO))
    k("v_and_b32", v(t0), 15, "v0")
    k("v_lshlrev_b32", v(vXo), 10, v(t0))
    k("v_lshl_add_u32", v(vXo), v(vG), 3, v(vXo))
    k("v_add_u32", v(vXo), s(sx), v(vXo))
    k.wait_smem()
    for r, sl, sz in srds:
        k("s_and_b32", s(r + 1), s(r + 1), "0xffff")
    DIAG = os.environ.get("DIAG", "")
    if DIAG:
        k.maxs = 96
        k.raw("s_mov_b32 s90, 0")
        ld = L("dg")
        k("s_cmp_lg_u32", s(sW), 7)
        k("s_cbranch_scc1", ld)
        k("v_mov_b32", v(t0), 0)
        k("s_lshl_b32", s(sx), "s2", 7)
        if DIAG == "s":
            k("s_lshl_b32", s(sy), s(sX), 21)
            k("s_add_u32", s(sx), s(sx), s(sy))
            k("s_add_u32", s(sx), s(sx), hex(R2 + 512 * 1024))
        if DIAG == "w": k("s_add_u32", s(sx), s(sx), hex(1536 * 1024))
        if DIAG == "x": k("s_add_u32", s(sx), s(sx), hex(1024 * 1024))
        k.raw("s_memtime s[84:85]")
        k.raw("s_waitcnt lgkmcnt(0)")
        if DIAG == "i":
            k.raw("s_getpc_b64 s[92:93]")
            k.raw("s_add_u32 s92, s92, 16")
            k.raw("s_addc_u32 s93, s93, 0")
            k.raw("s_branch %s_icode" % N)
        elif DIAG != "0":
            k.raw("s_mov_b64 exec, 1")
            k.raw("buffer_load_dword v%d, v%d, s[%d:%d], s%d offen" % (t1, t0, {"s": rWS, "w": rW2, "x": rX, "o": rOUT}[DIAG], {"s": rWS, "w": rW2, "x": rX, "o": rOUT}[DIAG] + 3, sx))
            k.raw("s_waitcnt vmcnt(0)")
            k.raw("s_mov_b64 exec, -1")
        k.label(N + "_iret")
        k.raw("s_memtime s[86:87]")
        k.raw("s_waitcnt lgkmcnt(0)")
        k.raw("s_sub_u32 s90, s86, s84")
        k.raw("s_lshl_b32 s90, s90, 4")
        k.label(ld)
        k.raw("s_barrier")
    k("s_cmp_lg_u32", s(sBad), 0)
    k("s_cbranch_scc1", N + "_cfallback")
    k.label(N + "_cstart")
    for i in range(2): k("v_mov_b32", v(ones + i), "0x3f803f80")
    ST("go", "a")

    D = xa; TL = xa + 8
    lp0 = L("p0a")
    k("s_cmp_ge_u32", s(sR), 16)
    k("s_cbranch_scc1", lp0)
    k("v_lshrrev_b32", v(t0), 5, v(vL))
    k("v_and_b32", v(t1), 31, v(vL))
    k("v_lshlrev_b32", v(t2), 10, v(t0))
    k("v_lshl_add_u32", v(t2), v(t1), 4, v(t2))
    k("s_lshl_b32", s(sx), s(sX), 4)
    k("s_add_u32", s(sx), s(sx), s(sR))
    k("s_lshl_b32", s(sx), s(sx), 14)
    k("s_lshl_b32", s(sy), s(sW), 11)
    k("s_add_u32", s(sx), s(sx), s(sy))
    k("buffer_load_dwordx4", v(D, 4), v(t2), s(rX, 4), s(sx), mods="offen", tag="X0", cond=True)
    k("buffer_load_dwordx4", v(D + 4, 4), v(t2), s(rX, 4), s(sx), mods="offen offset:512", tag="X0", cond=True)
    k.label(lp0)
    NHI = 64 - NLO
    k("s_lshl_b32", s(sy), s(sR), 3)
    k("s_add_u32", s(sy), s(sy), s(sW))
    k("s_mul_i32", s(sO), s(sy), NLO)
    k("s_mul_i32", s(sy), s(sy), NHI)
    k("s_sub_u32", s(sy), s(sy), 128 * (NHI - NLO))
    k("s_cmp_lt_u32", s(sR), 16)
    k("s_cselect_b32", s(sO), s(sO), s(sy))
    k("s_cselect_b32", "exec_lo", hex(((1 << NLO) - 1) & 0xffffffff), hex(((1 << NHI) - 1) & 0xffffffff))
    k("s_cselect_b32", "exec_hi", hex(((1 << NLO) - 1) >> 32), hex(((1 << NHI) - 1) >> 32))
    k("v_add_u32", v(vT[16]), s(sO), v(vL))
    k("v_lshrrev_b32", v(vT[17]), 4, v(vT[16]))
    k("v_mul_u32_u24", v(vT[17]), "0xc00", v(vT[17]))
    k("v_and_b32", v(vT[16]), 15, v(vT[16]))
    k("v_lshl_add_u32", v(vT[16]), v(vT[16]), 7, v(vT[17]))
    k("buffer_load_dword", v(vT[17]), v(vT[16]), s(rWQ, 4), 0, mods="offen offset:1024", tag="KP")
    k.raw("s_mov_b64 exec, -1")
    lp0 = L("p0a")
    k("s_cmp_ge_u32", s(sR), 16)
    k("s_cbranch_scc1", lp0)
    k("v_lshrrev_b32", v(t2), 2, v(t1))
    k("v_mul_u32_u24", v(t2), 1056, v(t2))
    k("v_and_b32", v(t3), 3, v(t1))
    k("v_lshl_add_u32", v(t2), v(t3), 8, v(t2))
    k("v_lshl_add_u32", v(t2), v(t0), 4, v(t2))
    k("s_lshl_b32", s(sy), s(sW), 5)
    k("s_add_u32", s(sy), s(sy), P0SCR)
    k("v_add_u32", v(t2), s(sy), v(t2))
    k("s_mul_i32", s(sy), s(sW), 2112)
    k("s_add_u32", s(sy), s(sy), P0SCR)
    k("v_add_u32", v(t3), s(sy), v(vL16))
    k.raw("s_waitcnt vmcnt(1)")
    ST("xw", "a")
    rowln(k, D, TL, sOne, 1)
    k("ds_write_b128", v(t2), v(D, 4))
    k("ds_write_b128", v(t2), v(D + 4, 4), mods="offset:%d" % (8 * 1056))
    k.wait_lg()
    k.label(lp0)
    BAR("p")
    lp0 = L("p0b")
    k("s_cmp_ge_u32", s(sR), 16)
    k("s_cbranch_scc1", lp0)
    k("ds_read_b128", v(D, 4), v(t3))
    k("ds_read_b128", v(D + 4, 4), v(t3), mods="offset:1056")
    k("s_add_u32", s(sx), s(sx), s(sT1))
    k.wait_lg()
    k("buffer_store_dwordx4", v(D, 4), v(vL16), s(rWS, 4), s(sx), mods="offen", tag="XS", cond=True)
    k("buffer_store_dwordx4", v(D + 4, 4), v(vL16), s(rWS, 4), s(sx), mods="offen offset:1024", tag="XS", cond=True)
    k.label(lp0)
    k("v_bfe_u32", v(t0), v(vL), 2, 2)
    k("v_and_b32", v(t2), 1, v(vG))
    k("v_lshl_add_u32", v(t0), v(t2), 3, v(t0))
    k("v_lshlrev_b32", v(t0), 6, v(t0))
    k("v_and_b32", v(t1), 1, v(vL))
    k("v_lshl_add_u32", v(t0), v(t1), 3, v(t0))
    k("v_bfe_u32", v(t1), v(vL), 1, 1)
    k("v_lshlrev_b32", v(t2), 1, v(t2))
    k("v_xor_b32", v(t1), v(t1), v(t2))
    k("v_lshrrev_b32", v(t3), 1, v(vG))
    for t in range(2):
        if t: k("v_xor_b32", v(t1), 2, v(t1))
        k("v_lshl_add_u32", v(t2), v(t1), 4, v(t0))
        k("v_lshl_add_u32", v(vT[t]), v(t3), 10, v(t2))
        k("v_add_u32", v(vT[2 + t]), "0x10000", v(vT[t]))
    vBqc = vT[6]
    k("v_lshrrev_b32", v(t0), 2, v(vL))
    k("v_and_b32", v(t1), 3, v(vL))
    k("v_lshrrev_b32", v(t2), 3, v(t0))
    k("v_lshlrev_b32", v(t2), 1, v(t2))
    k("v_xor_b32", v(t1), v(t1), v(t2))
    k("v_mul_u32_u24", v(vBqc), "0xc00", v(t0))
    k("v_lshl_add_u32", v(vBqc), v(t1), 4, v(vBqc))
    k("s_lshl_b32", s(sx), s(sHg), 6)
    k("v_add_u32", v(vBqc), s(sx), v(vBqc))
    k("s_mul_i32", s(sx), s(sW), 98304)
    k("s_lshl_b32", s(sy), s(sW), 11)
    for t in range(2): k("v_mov_b32", v(vT[8 + t]), v(vT[t]))
    for t in range(4): k("v_add_u32", v(vT[t]), s(sy), v(vT[t]))
    k("v_add_u32", v(vT[4]), s(sy), v(vL16))
    k("v_add_u32", v(vT[5]), s(sy), v(vA[1]))
    k.wait_vm()
    ST("xs", "a")
    BAR("X0")
    for seg in (1, 2):
        for i in range(2):
            for c in range(2):
                k("s_add_u32", s(sO), s(sx), hex(i * 8 * 98304 + c * 49152 + seg * 1024))
                k("s_add_u32", "m0", s(sy), hex(seg * 32768 + i * 16384 + c * 1024))
                k("buffer_load_dwordx4", v(vBqc), s(rWQ, 4), s(sO), mods="offen lds", tag="WQ%d" % seg)
    BAR("d")
    for t in range(2):
        k("buffer_load_dwordx2", v(xr + 2 * t, 2), v(vXo), s(rX, 4), 0, mods="offen offset:%d" % (32 * t), tag="XR")
    k("s_mul_i32", s(sO), s(sHg), 224)
    k("v_lshlrev_b32", v(t0), 3, v(vL))
    k("v_add_u32", v(t0), s(sO), v(t0))
    k("buffer_load_dwordx2", v(vT[12], 2), v(t0), s(rB1, 4), 0, mods="offen", tag="BI")
    k("s_lshl_b32", s(sx), s(smt1), 14)
    k("s_add_u32", s(sx), s(sx), s(sT1))
    def tr_wq(segs, R):
        units = [(seg, i, t) for seg in segs for i in range(2) for t in range(2)]
        for n, (seg, i, t) in enumerate(units):
            for h in range(2):
                off = seg * 32768 + i * 16384 + 256 * h
                a = vT[t]
                if off >= 65536: a, off = vT[2 + t], off - 65536
                k("ds_read_b64_tr_b16", v(R + 4 * n + 2 * h, 2), v(a), mods="offset:%d" % off)
        k.wait_lg()
        for n, (seg, i, t) in enumerate(units):
            off = seg * 32768 + i * 16384 + 1024 * t
            k("ds_write_b128", v(vT[4 + (off >> 16)]), v(R + 4 * n, 4), mods="offset:%d" % (off & 65535))
        k.wait_lg()
    k.wait_vm("WQ2")
    ST("wq", "a")
    tr_wq((1, 2), xa)
    BAR("Y0")
    ST("S0", "ma")

    def lda16():
        for j in range(16):
            if j % 4 == 0 and j: k("s_add_u32", s(sx), s(sx), 4096)
            k("buffer_load_dwordx4", v(xa + 4 * j, 4), v(vL16), s(rWS, 4), s(sx), mods=("offen offset:%d sc1" % ((j & 3) * 1024)) if j & 3 else "offen sc1", tag="A%d" % j)
    lda16()
    BAR("a1", 1)
    def rd1(it, slot, tag):
        j, t6 = it
        off = (t6 >> 1) * 32768 + j * 2048 + (t6 & 1) * 1024
        k("ds_read_b128", v(bf + 4 * slot, 4), v(vA[off >> 16]), mods="offset:%d" % (off & 65535), tag=tag)
    def mf1(it, slot):
        j, t6 = it
        W = v(bf + 4 * slot, 4); X = v(xa + 4 * j, 4); C = v(acc + 4 * t6, 4)
        k.wait_vm("A%d" % j)
        a, b = (W, X) if t6 < 2 else (X, W)
        k("v_mfma_f32_16x16x32_bf16", C, a, b, (C if j else 0))
    gemm_ring(k, [(j, t6) for j in range(16) for t6 in (2, 3, 4, 5)], rd1, mf1, 7)
    ST("kvG", "ma")
    T = bf; pk = bf + 12; vv = bf + 16
    kvr = [acc, acc + 4, bf + 20, bf + 24]
    for t in range(2):
        phi_pack(k, acc + 8 + 4 * t, pk + 2 * t, T, sC)
        k("v_cvt_pk_bf16_f32", v(vv + 2 * t), v(acc + 16 + 4 * t), v(acc + 17 + 4 * t))
        k("v_cvt_pk_bf16_f32", v(vv + 2 * t + 1), v(acc + 18 + 4 * t), v(acc + 19 + 4 * t))
    for t in range(2):
        k("v_mfma_f32_16x16x16_bf16", v(kvr[t], 4), v(pk + 2 * t, 2), v(vv + 2 * t, 2), 0)
        k("v_mfma_f32_16x16x16_bf16", v(kvr[2 + t], 4), v(pk + 2 * t, 2), v(ones, 2), 0)
    k("s_lshl_b32", s(sx), s(sW), 12)
    k("v_add_u32", v(t1), s(sx), v(vL16))
    BAR("a1", 0)
    BAR("k")
    for a in range(4):
        k("ds_write_b128", v(t1), v(kvr[a], 4), mods="offset:%d" % (KVSCR + a * 1024))
    k.wait_lg()
    BAR("s")
    R = acc + 8
    k("v_mov_b32", v(t1), ABW)
    k("ds_read_b32", v(t3), v(t1))
    for w in range(8):
        k("ds_read_b64", v(R + 2 * w, 2), v(vT8), mods="offset:%d" % (KVSCR + w * 4096))
    k.wait_lg()
    k("v_readfirstlane_b32", s(sy), v(t3))
    k("s_cmp_lg_u32", s(sy), 0)
    k("s_cbranch_scc1", N + "_cfallback")
    for w in range(1, 8):
        k("v_pk_add_f32", v(R, 2), v(R, 2), v(R + 2 * w, 2))
    k("s_lshl_b32", s(sx), s(sHg), 4)
    k("s_lshl_b32", s(sy), s(sX), 1)
    k("s_add_u32", s(sx), s(sx), s(sy))
    k("s_add_u32", s(sx), s(sx), s(sB))
    k("s_lshl_b32", s(sx), s(sx), 12)
    k("s_add_u32", s(sx), s(sx), hex(WS_PART))
    vPo = vT[15]
    k("v_bfe_u32", v(t0), "v0", 7, 1)
    k("v_lshlrev_b32", v(t0), 6, v(t0))
    k("v_bfe_u32", v(t2), "v0", 5, 2)
    k("v_lshl_add_u32", v(t0), v(t2), 4, v(t0))
    k("v_and_b32", v(t2), 1, "v0")
    k("v_lshl_add_u32", v(t0), v(t2), 3, v(t0))
    k("v_add_u32", v(t0), 2048, v(t0))
    k("s_cmp_ge_u32", s(sW), 4)
    k("s_cselect_b64", "vcc", -1, 0)
    k("v_cndmask_b32", v(vPo), v(vT8), v(t0), "vcc")
    k("s_cselect_b32", s(sy), 3, -1)
    k("s_mov_b32", "exec_lo", s(sy))
    k("s_mov_b32", "exec_hi", s(sy))
    k("buffer_store_dwordx2", v(R, 2), v(vPo), s(rWS, 4), s(sx), mods="offen sc1", tag="PS")
    k.raw("s_mov_b64 exec, -1")
    BAR("ps")
    ST("pubA", "m")
    def rdq(it, slot, tag):
        j, t = it
        for h in range(2):
            k("ds_read_b64_tr_b16", v(bf + 4 * slot + 2 * h, 2), v(vT[8 + t]), mods="offset:%d" % (j * 2048 + 256 * h), tag=tag)
    gemm_ring(k, [(j, t6) for j in range(16) for t6 in (0, 1)], rdq, mf1, 7)
    for t in range(2):
        phi_pack(k, acc + 4 * t, pq + 2 * t, T, sC)
    def tr64():
        k("v_bfe_u32", v(t0), v(vL), 2, 2)
        k("v_lshl_add_u32", v(t1), v(vG), 2, v(t0))
        k("v_bfe_u32", v(t2), v(t1), 1, 2)
        k("v_lshlrev_b32", v(t0), 7, v(t1))
        k("v_and_b32", v(t1), 3, v(vL))
        k("v_lshl_add_u32", v(t0), v(t1), 3, v(t0))
        for t in range(4):
            k("v_xor_b32", v(t1), t, v(t2))
            k("v_lshl_add_u32", v(vT[t]), v(t1), 5, v(t0))
        k("s_lshl_b32", s(sy), s(sG), 12)
    def tr_units(sbase, nu):
        for t in range(4): k("v_add_u32", v(vT[4 + t]), s(sbase), v(vT[t]))
        k("v_add_u32", v(vT[8]), s(sbase), v(vL16))
        for u0 in range(0, nu, 4):
            us = list(range(u0, min(nu, u0 + 4)))
            for u in us:
                for t in range(4):
                    for h in range(2):
                        k("ds_read_b64_tr_b16", v(xa + 16 * (u - u0) + 4 * t + 2 * h, 2), v(vT[4 + t]), mods="offset:%d" % (u * 4096 + h * 2048), tag="u%d" % u)
            for u in us:
                k.wait_lg("u%d" % u)
                for t in range(4):
                    k("ds_write_b128", v(vT[8]), v(xa + 16 * (u - u0) + 4 * t, 4), mods="offset:%d" % (u * 4096 + t * 1024))
            k.wait_lg()
    tr64()
    k("s_lshl_b32", s(sy), s(sG), 12)
    k("s_add_u32", s(sy), s(sy), "0x10000")
    for t in range(4):
        k("v_add_u32", v(vT[7 + t]), s(sy), v(vT[t]))
        k("v_add_u32", v(vT[16 + t]), "0x10000", v(vT[7 + t]))
    k("s_mul_i32", s(sy), s(sHg), 224)
    k("s_bfe_u32", s(sx), s(sy), "0x10005")
    k("s_lshl_b32", s(sx), s(sx), 1)
    k("v_bfe_u32", v(t0), v(vL), 2, 2)
    k("v_lshl_add_u32", v(t0), v(vG), 2, v(t0))
    k("v_and_b32", v(t1), 7, v(t0))
    k("v_lshlrev_b32", v(t1), 1, v(t1))
    k("v_lshlrev_b32", v(t0), 8, v(t0))
    k("v_and_b32", v(t2), 1, v(vL))
    k("v_lshl_add_u32", v(t0), v(t2), 3, v(t0))
    k("v_bfe_u32", v(t2), v(vL), 1, 1)
    k("v_add_u32", v(t2), s(sx), v(t2))
    for t in range(7):
        k("v_add_u32", v(t3), 2 * t, v(t2))
        k("v_xor_b32", v(t3), v(t3), v(t1))
        k("v_lshl_add_u32", v(vT[t]), v(t3), 4, v(t0))
    BIAS = W1BLK[0] * BLK + 7168
    def tr_w1(js):
        l = L("tw")
        k("s_cmp_ge_u32", s(sW), len(js))
        k("s_cbranch_scc1", l)
        k("s_mul_i32", s(sy), s(sW), 5)
        k("s_lshr_b32", s(sy), hex(sum(W1BLK[j] << (5 * i) for i, j in enumerate(js))), s(sy))
        k("s_and_b32", s(sy), s(sy), 31)
        k("s_lshl_b32", s(sy), s(sy), 13)
        for t in range(7): k("v_add_u32", v(bf + t), s(sy), v(vT[t]))
        k("v_add_u32", v(bf + 7), s(sy), v(vL16))
        for t in range(7):
            for h in range(2):
                k("ds_read_b64_tr_b16", v(xa + 4 * t + 2 * h, 2), v(bf + t), mods="offset:%d" % (h * 4096))
        k.wait_lg()
        for t in range(7):
            k("ds_write_b128", v(bf + 7), v(xa + 4 * t, 4), mods="offset:%d" % (t * 1024))
        if js[0] == 0:
            l2 = L("bt")
            k("s_cmp_lg_u32", s(sW), 0)
            k("s_cbranch_scc1", l2)
            for q in range(2): unpack(k, xa + 56 + 2 * q, xa + 57 + 2 * q, vT[12] + q)
            k.raw("s_mov_b64 exec, 0xfffffff")
            k("ds_write_b128", v(bf + 7), v(xa + 56, 4), mods="offset:7168")
            k.raw("s_mov_b64 exec, -1")
            k.label(l2)
        k.wait_lg()
        k.label(l)
    l = L("fm")
    k("s_cmp_eq_u32", s(sMode), 0)
    k("s_cbranch_scc1", l)
    k.raw("s_waitcnt vmcnt(0)")
    k.label(l)
    BAR("X1")
    BAR("Y1")
    ST("SA", "m")

    pr = xa
    lp, lx = L("pp"), L("px")
    k("s_mov_b32", s(sit), 0)
    k.label(lp)
    k("s_lshl_b32", s(sx), s(sHg), 16)
    k("s_add_u32", s(sx), s(sx), hex(WS_PART))
    for m in range(16):
        k("buffer_load_dwordx2", v(pr + 2 * m, 2), v(vPo), s(rWS, 4), s(sx), mods="offen sc1", tag="P")
        if m < 15: k("s_add_u32", s(sx), s(sx), 4096)
    k.wait_vm("P")
    k("v_max3_u32", v(t0), v(pr), v(pr + 1), v(pr + 2))
    k("v_max3_u32", v(t1), v(pr + 3), v(pr + 4), v(pr + 5))
    for m in range(6, 30, 4):
        k("v_max3_u32", v(t0), v(t0), v(pr + m), v(pr + m + 1))
        k("v_max3_u32", v(t1), v(t1), v(pr + m + 2), v(pr + m + 3))
    k("v_max3_u32", v(t0), v(t0), v(pr + 30), v(pr + 31))
    k("v_max_u32", v(t0), v(t0), v(t1))
    k("v_cmp_eq_u32", "vcc", -1, v(t0))
    k("s_add_u32", s(sit), s(sit), 1)
    k.raw("s_nop 4")
    k.raw("s_cbranch_vccz %s" % lx)
    k("s_cmp_lt_u32", s(sit), 4096)
    k("s_cbranch_scc1", lp)
    k.label(lx)
    ST("prt", "m")
    for m in range(1, 16):
        k("v_pk_add_f32", v(pr, 2), v(pr, 2), v(pr + 2 * m, 2))
    k("v_cvt_pk_bf16_f32", v(pr + 2), v(pr), v(pr + 1))
    k("v_lshlrev_b32", v(t0), 2, "v0")
    k("ds_write_b32", v(t0), v(pr + 2), mods="offset:%d" % OSCR)
    k.wait_lg()
    BAR("o")
    fr = xa + 32; nd = xa + 40; o = xa + 56
    k("v_lshlrev_b32", v(t0), 3, v(vL))
    for a in range(4):
        k("ds_read_b64", v(fr + 2 * a, 2), v(t0), mods="offset:%d" % (OSCR + a * 512))
    k.wait_lg()
    for h in range(2):
        k("v_mfma_f32_16x16x16_bf16", v(nd + 4 * h, 4), v(fr + 2 * h, 2), v(pq + 2 * h, 2), 0)
        k("v_mfma_f32_16x16x16_bf16", v(nd + 8 + 4 * h, 4), v(fr + 4 + 2 * h, 2), v(pq + 2 * h, 2), 0)
    for h in range(2):
        d = T + 8 * h; a = [d + 2 + q for q in range(4)]; u0, u1 = d + 6, d + 7
        bf16r(k, d, nd + 8 + 4 * h)
        k("v_add_f32", v(d), "0x358637bd", v(d))
        bf16r(k, d, d)
        k("v_rcp_f32", v(d), v(d))
        k("v_cvt_pk_bf16_f32", v(u0), v(nd + 4 * h), v(nd + 4 * h + 1))
        k("v_cvt_pk_bf16_f32", v(u1), v(nd + 4 * h + 2), v(nd + 4 * h + 3))
        unpack(k, a[0], a[1], u0); unpack(k, a[2], a[3], u1)
        for q in range(4): k("v_mul_f32", v(a[q]), v(a[q]), v(d))
        k("v_cvt_pk_bf16_f32", v(o + 2 * h), v(a[0]), v(a[1]))
        k("v_cvt_pk_bf16_f32", v(o + 2 * h + 1), v(a[2]), v(a[3]))
    k("s_lshl_b32", s(sx), s(smt1), 4)
    k("s_add_u32", s(sx), s(sx), s(sHg))
    k("s_lshl_b32", s(sx), s(sx), 10)
    k("s_add_u32", s(sx), s(sx), s(sT1))
    k("s_mul_i32", s(sy), s(sB), HALF - 128 * 1024)
    k("s_add_u32", s(sx), s(sx), s(sy))
    k("s_add_u32", s(sx), s(sx), hex(R2))
    k("buffer_store_dwordx4", v(o, 4), v(vL16), s(rWS, 4), s(sx), mods="offen", tag="OS")
    def a_base(NH, abase, AJ):
        k("s_mul_i32", s(sA), s(smt2), AJ * 1024)
        k("s_mul_i32", s(sy), s(sG), NH * 1024)
        k("s_add_u32", s(sA), s(sA), s(sy))
        k("s_add_u32", s(sA), s(sA), s(abase))
    a_base(8, sT1, 16)
    k("s_bfe_u32", s(sy), s(sR), "0x10001")
    k("s_mul_i32", s(sy), s(sy), HALF - 128 * 1024)
    k("s_add_u32", s(sA), s(sA), s(sy))
    k("s_add_u32", s(sA), s(sA), hex(R2))
    k.wait_vm("OS")
    BAR("X2")
    tr_w1(list(range(6)))
    BAR("Y2")
    ST("SB", "m")

    def g64(NH, blks, NA):
        st = {"n": 0}
        def lda():
            n = st["n"]
            if n >= NH: return
            if n % 4 == 0 and n: k("s_add_u32", s(sA), s(sA), 4096)
            k("buffer_load_dwordx4", v(xa + 4 * (n % NA), 4), v(vL16), s(rWS, 4), s(sA), mods=("offen offset:%d sc1" % ((n & 3) * 1024)) if n & 3 else "offen sc1", tag="A%d" % n)
            st["n"] += 1
        for n in range(min(NH, NA)): lda()
        def rd(it, slot, tag):
            j, t = it
            base = blks[j] * BLK
            win = base >> 16
            if NH == 8:
                for h in range(2):
                    k("ds_read_b64_tr_b16", v(bf + 4 * slot + 2 * h, 2), v(vT[(7 if win == 1 else 16) + t]),
                      mods="offset:%d" % (base - (win << 16) + h * 2048), tag=tag)
            else:
                for h in range(2):
                    k("ds_read_b64_tr_b16", v(bf + 4 * slot + 2 * h, 2), v(vT[4 * win + t]),
                      mods="offset:%d" % (base - (win << 16) + h * 2048), tag=tag)
        def mf(it, slot):
            j, t = it
            C = v(acc + 4 * t, 4)
            if t == 0: k.wait_vm("A%d" % j)
            k("v_mfma_f32_16x16x32_bf16", C, v(bf + 4 * slot, 4), v(xa + 4 * (j % NA), 4), (C if j else 0))
            if t == 3: lda()
        return rd, mf
    def g64_reduce(scr, bname):
        ln = L("ns")
        k("s_cmp_eq_u32", s(sG), 0)
        k("s_cbranch_scc1", ln)
        for i in range(8): k("v_swap_b32", v(acc + i), v(acc + 8 + i))
        k.label(ln)
        k("s_lshl_b32", s(sy), s(sW), 11)
        k("s_add_u32", s(sy), s(sy), scr)
        k("v_add_u32", v(t0), s(sy), v(vL16))
        k("s_xor_b32", s(sy), s(sW), 4)
        k("s_lshl_b32", s(sy), s(sy), 11)
        k("s_add_u32", s(sy), s(sy), scr)
        k("v_add_u32", v(t1), s(sy), v(vL16))
        k("ds_write_b128", v(t0), v(acc + 8, 4))
        k("ds_write_b128", v(t0), v(acc + 12, 4), mods="offset:1024")
        k.wait_lg()
        BAR(bname)
        k("ds_read_b128", v(acc + 8, 4), v(t1))
        k("ds_read_b128", v(acc + 12, 4), v(t1), mods="offset:1024")
        k.wait_lg()
        for i in range(0, 8, 2): k("v_pk_add_f32", v(acc + i, 2), v(acc + i, 2), v(acc + 8 + i, 2))

    rd, mf = g64(8, WOBLK, 16)
    BAR("a3", 1)
    gemm_ring(k, [(j, t) for j in range(8) for t in range(4)], rd, mf, 7)
    BAR("a3", 0)
    ST("P2G", "m")
    BAR("w")
    g64_reduce(P2SCR, "r")
    k.wait_vm("XR")
    for t in range(2):
        a = [T + q for q in range(4)]; b = [T + 4 + q for q in range(4)]; u0, u1 = T + 8, T + 9
        k("v_cvt_pk_bf16_f32", v(u0), v(acc + 4 * t), v(acc + 4 * t + 1))
        k("v_cvt_pk_bf16_f32", v(u1), v(acc + 4 * t + 2), v(acc + 4 * t + 3))
        unpack(k, a[0], a[1], u0); unpack(k, a[2], a[3], u1)
        unpack(k, b[0], b[1], xr + 2 * t); unpack(k, b[2], b[3], xr + 2 * t + 1)
        k("v_pk_add_f32", v(a[0], 2), v(a[0], 2), v(b[0], 2))
        k("v_pk_add_f32", v(a[2], 2), v(a[2], 2), v(b[2], 2))
        k("v_cvt_pk_bf16_f32", v(hr + 2 * t), v(a[0]), v(a[1]))
        k("v_cvt_pk_bf16_f32", v(hr + 2 * t + 1), v(a[2]), v(a[3]))
    k("s_lshl_b32", s(sx), s(smt2), 14)
    k("s_lshl_b32", s(sy), s(sNb), 11)
    k("s_add_u32", s(sx), s(sx), s(sy))
    k("s_lshl_b32", s(sy), s(sG), 10)
    k("s_add_u32", s(sx), s(sx), s(sy))
    k("s_add_u32", s(sx), s(sx), s(sT1))
    k("buffer_store_dwordx4", v(hr, 4), v(vL16), s(rWS, 4), s(sx), mods="offen", tag="HS")
    vLr, vLw = vT[12], vT[13]
    k("v_lshrrev_b32", v(t0), 5, v(vL))
    k("v_and_b32", v(t1), 31, v(vL))
    k("v_lshrrev_b32", v(vLr), 2, v(t1))
    k("v_mul_u32_u24", v(vLr), 1056, v(vLr))
    k("v_and_b32", v(t3), 3, v(t1))
    k("v_lshl_add_u32", v(vLr), v(t3), 8, v(vLr))
    k("v_lshl_add_u32", v(vLr), v(t0), 4, v(vLr))
    k("s_lshl_b32", s(sy), s(sW), 5)
    k("s_add_u32", s(sy), s(sy), LSCR)
    k("v_add_u32", v(vLr), s(sy), v(vLr))
    k("s_lshl_b32", s(sLo), s(sX), 4)
    k("s_add_u32", s(sLo), s(sLo), s(sR))
    k("s_lshl_b32", s(sLo), s(sLo), 14)
    k("s_lshl_b32", s(sO), s(sW), 11)
    k("s_add_u32", s(sLo), s(sLo), s(sO))
    k("s_add_u32", s(sLo), s(sLo), s(sT1))
    k("s_mul_i32", s(sO), s(sW), 2112)
    k("s_add_u32", s(sO), s(sO), LSCR)
    k("v_add_u32", v(vLw), s(sO), v(vL16))
    k("s_mov_b32", "m0", s(sO))
    k.wait_vm("HS")
    BAR("X3")
    tr_w1(list(range(6, 12)))
    lfree = L("free")
    k("s_cmp_ge_u32", s(sR), 16)
    k("s_cbranch_scc1", lfree)
    BAR("Y3")
    ST("SC", "m")

    k("buffer_load_dwordx4", v(vL16), s(rWS, 4), s(sLo), mods="offen sc1 lds", tag="HL", cond=True)
    k("s_add_u32", "m0", s(sO), 1056 - 1024)
    k("buffer_load_dwordx4", v(vL16), s(rWS, 4), s(sLo), mods="offen offset:1024 sc1 lds", tag="HL", cond=True)
    k.raw("s_waitcnt vmcnt(0)")
    BAR("h")
    k("ds_read_b128", v(D, 4), v(vLr))
    k("ds_read_b128", v(D + 4, 4), v(vLr), mods="offset:%d" % (8 * 1056))
    k.wait_lg()
    rowln(k, D, TL, sOne, 2)
    k("ds_write_b128", v(vLr), v(D, 4))
    k("ds_write_b128", v(vLr), v(D + 4, 4), mods="offset:%d" % (8 * 1056))
    k.wait_lg()
    BAR("l")
    k("ds_read_b128", v(D, 4), v(vLw))
    k("ds_read_b128", v(D + 4, 4), v(vLw), mods="offset:1056")
    k.wait_lg()
    k("buffer_store_dwordx4", v(D, 4), v(vL16), s(rWS, 4), s(sLo), mods="offen", tag="YS", cond=True)
    k("buffer_store_dwordx4", v(D + 4, 4), v(vL16), s(rWS, 4), s(sLo), mods="offen offset:1024", tag="YS", cond=True)
    k.label(lfree)
    vBi = vT[19]
    k("v_lshlrev_b32", v(vBi), 4, v(vG))
    k("v_add_u32", v(vBi), hex(BIAS), v(vBi))
    c1 = 2 * math.sqrt(2 / math.pi) * math.log2(math.e)
    vC2 = vT[18]
    k("v_mov_b32", v(vC2), f2h(-c1 * 0.044715))
    k("s_lshl_b32", s(sx), s(smt1), 14)
    k("s_add_u32", s(sx), s(sx), s(sT1))
    k.raw("s_waitcnt vmcnt(0)")
    k.vmq = []
    BAR("X4")
    tr_w1(list(range(12, 16)))
    BAR("Y4")
    ST("SC2", "mc")

    lda16()
    ST("p3iss", "c")
    BAR("a4", 1)
    RING = 6
    E = vT[8]
    bb = [bf + 24, pq]
    seq = [(t, j) for t in range(7) for j in range(16)]
    def rd3(n):
        t, j = seq[n]
        base = W1BLK[j] * BLK + t * 1024
        k("ds_read_b128", v(bf + (n % RING) * 4, 4), v(vA[base >> 16]), mods="offset:%d" % (base & 65535), tag="f%d" % n)
    def rdb(t):
        k("ds_read_b128", v(bb[t & 1], 4), v(vBi), mods="offset:%d" % (64 * t), tag="bb%d" % t)
    def epi(t):
        a = [E + q for q in range(4)]; b = [E + 4 + q for q in range(4)]; u0, u1 = E + 8, E + 9
        c = acc + 4 * t; B = bb[t & 1]
        o = []
        A = o.append
        A(lambda: k("v_cvt_pk_bf16_f32", v(u0), v(c), v(c + 1)))
        A(lambda: k("v_cvt_pk_bf16_f32", v(u1), v(c + 2), v(c + 3)))
        for q in range(2):
            A(lambda q=q: k("v_lshlrev_b32", v(a[2 * q]), 16, v(u0 + q)))
            A(lambda q=q: k("v_and_b32", v(a[2 * q + 1]), HI, v(u0 + q)))
        A(lambda: k.wait_lg("bb%d" % t))
        for q in range(4): A(lambda q=q: k("v_add_f32", v(a[q]), v(a[q]), v(B + q)))
        A(lambda: k("v_cvt_pk_bf16_f32", v(u0), v(a[0]), v(a[1])))
        A(lambda: k("v_cvt_pk_bf16_f32", v(u1), v(a[2]), v(a[3])))
        for q in range(2):
            A(lambda q=q: k("v_lshlrev_b32", v(a[2 * q]), 16, v(u0 + q)))
            A(lambda q=q: k("v_and_b32", v(a[2 * q + 1]), HI, v(u0 + q)))
        for q in range(4): A(lambda q=q: k("v_mul_f32", v(b[q]), v(a[q]), v(a[q])))
        for q in range(4): A(lambda q=q: k("v_fmaak_f32", v(b[q]), v(vC2), v(b[q]), f2h(-c1)))
        for q in range(4): A(lambda q=q: k("v_mul_f32", v(b[q]), v(a[q]), v(b[q])))
        for q in range(4): A(lambda q=q: k("v_exp_f32", v(b[q]), v(b[q])))
        for q in range(4): A(lambda q=q: k("v_add_f32", v(b[q]), 1.0, v(b[q])))
        for q in range(4): A(lambda q=q: k("v_rcp_f32", v(b[q]), v(b[q])))
        for q in range(4): A(lambda q=q: k("v_mul_f32", v(a[q]), v(a[q]), v(b[q])))
        A(lambda: k("v_cvt_pk_bf16_f32", v(acc + 2 * t), v(a[0]), v(a[1])))
        A(lambda: k("v_cvt_pk_bf16_f32", v(acc + 2 * t + 1), v(a[2]), v(a[3])))
        return o
    for n in range(RING): rd3(n)
    for t in range(8):
        valu = []
        if t >= 1: valu += epi(t - 1)
        if t < 7:
            rdb(t)
            per = -(-len(valu) // 15)
            for j in range(16):
                n = 16 * t + j
                k.wait_lg("f%d" % n)
                if t == 0: k.wait_vm("A%d" % j)
                C = v(acc + 4 * t, 4)
                k("v_mfma_f32_16x16x32_bf16", C, v(bf + (n % RING) * 4, 4), v(xa + 4 * j, 4), (C if j else 0))
                if n + RING < len(seq): rd3(n + RING)
                for f in valu[:per]: f()
                valu = valu[per:]
            if t == A4T: BAR("a4", 0)
            if t in (0, 2, 4): ST("p3t%d" % t, "c")
            if t == 6:
                ST("P3G", "mc")
                BAR("g", 1)
        for f in valu: f()
    k("s_mul_i32", s(sx), s(smt1), 56 * 1024)
    k("s_add_u32", s(sx), s(sx), s(sT2))
    k("s_mul_i32", s(sy), s(sHg), 7)
    k("s_lshr_b32", s(sy), s(sy), 1)
    k("s_lshl_b32", s(sy), s(sy), 10)
    k("s_add_u32", s(sx), s(sx), s(sy))
    lo_, le_ = L("odd"), L("gs")
    k("s_bitcmp1_b32", s(sHg), 0)
    k("s_cbranch_scc1", lo_)
    for i in range(3):
        k("buffer_store_dwordx4", v(acc + 4 * i, 4), v(vL16), s(rWS, 4), s(sx), mods="offen offset:%d" % (1024 * i), tag="GS", cond=True)
    k("buffer_store_dwordx2", v(acc + 12, 2), v(vL16), s(rWS, 4), s(sx), mods="offen offset:3072", tag="GS", cond=True)
    k("s_branch", le_)
    k.label(lo_)
    k("buffer_store_dwordx2", v(acc, 2), v(vL16), s(rWS, 4), s(sx), mods="offen offset:8", tag="GS", cond=True)
    for i in range(3):
        k("buffer_store_dwordx4", v(acc + 2 + 4 * i, 4), v(vL16), s(rWS, 4), s(sx), mods="offen offset:%d" % (1024 * (i + 1)), tag="GS", cond=True)
    k.label(le_)
    k("s_lshl_b32", s(sy), s(sNb), 7)
    k("s_lshl_b32", s(sO), s(sG), 6)
    k("s_add_u32", s(sy), s(sy), s(sO))
    k("v_lshlrev_b32", v(t3), 3, v(vG))
    k("v_add_u32", v(t3), s(sy), v(t3))
    for t in range(2):
        k("buffer_load_dwordx2", v(b2r + 2 * t, 2), v(t3), s(rB2, 4), 0, mods="offen offset:%d" % (32 * t), tag="B2")
    tr64()
    for t in range(4):
        k("v_add_u32", v(vT[t]), s(sy), v(vT[t]))
        k("v_add_u32", v(vT[4 + t]), "0x10000", v(vT[t]))
        k("v_add_u32", v(vT[8 + t]), "0x20000", v(vT[t]))
    a_base(28, sT2, 56)
    ST("P3E", "mc")
    BAR("g", 0)
    k.wait_vm("GS")
    BAR("X5")
    BAR("Y5")
    ST("SD", "mc")

    rd, mf = g64(28, W2BLK, 16)
    def pre4(it):
        if it in ((20, 0), (24, 0)): BAR("b%d" % it[0])
    def post4(it):
        if it == (3, 3): BAR("b5")
        if it == (7, 3): BAR("b9")
    gemm_ring(k, [(j, t) for j in range(28) for t in range(4)], rd, mf, 7, pre4, post4)
    ST("P4G", "m")
    assert W2BLK[9] == W2BLK[8] + 1
    g64_reduce(W2BLK[8] * BLK, "r2")
    k.wait_vm("B2")
    hp = T + 12
    for t in range(2):
        a = [T + q for q in range(4)]; b = [T + 4 + q for q in range(4)]; u0, u1 = T + 8, T + 9
        k("v_cvt_pk_bf16_f32", v(u0), v(acc + 4 * t), v(acc + 4 * t + 1))
        k("v_cvt_pk_bf16_f32", v(u1), v(acc + 4 * t + 2), v(acc + 4 * t + 3))
        unpack(k, a[0], a[1], u0); unpack(k, a[2], a[3], u1)
        unpack(k, b[0], b[1], b2r + 2 * t); unpack(k, b[2], b[3], b2r + 2 * t + 1)
        k("v_pk_add_f32", v(a[0], 2), v(a[0], 2), v(b[0], 2))
        k("v_pk_add_f32", v(a[2], 2), v(a[2], 2), v(b[2], 2))
        k("v_cvt_pk_bf16_f32", v(u0), v(a[0]), v(a[1]))
        k("v_cvt_pk_bf16_f32", v(u1), v(a[2]), v(a[3]))
        unpack(k, a[0], a[1], u0); unpack(k, a[2], a[3], u1)
        unpack(k, b[0], b[1], hr + 2 * t); unpack(k, b[2], b[3], hr + 2 * t + 1)
        k("v_pk_add_f32", v(a[0], 2), v(b[0], 2), v(a[0], 2))
        k("v_pk_add_f32", v(a[2], 2), v(b[2], 2), v(a[2], 2))
        k("v_cvt_pk_bf16_f32", v(hp + 2 * t), v(a[0]), v(a[1]))
        k("v_cvt_pk_bf16_f32", v(hp + 2 * t + 1), v(a[2]), v(a[3]))
        k("buffer_store_dwordx2", v(hp + 2 * t, 2), v(vXo), s(rOUT, 4), 0, mods=("offen offset:%d " % (32 * t) + OUTM).strip())
    ST("end", "m")
    if ENDSPIN:
        k.raw("s_waitcnt vmcnt(0) lgkmcnt(0)")
        k.label(N + "_spin")
        k.raw("s_sleep 2")
        k.raw("%s s[86:87]" % mi)
        k.raw("s_waitcnt lgkmcnt(0)")
        k.raw("s_sub_u32 s88, s86, s84")
        k.raw("s_cmp_lt_u32 s88, %d" % int(ENDSPIN[1:]))
        k.raw("s_cbranch_scc1 %s_spin" % N)
    if DIAG:
        k.raw("s_waitcnt vmcnt(0) lgkmcnt(0)")
        k.raw("s_memtime s[84:85]")
        k.label(N + "_spin2")
        k.raw("s_sleep 2")
        k.raw("s_memtime s[86:87]")
        k.raw("s_waitcnt lgkmcnt(0)")
        k.raw("s_sub_u32 s88, s86, s84")
        k.raw("s_cmp_lt_u32 s88, s90")
        k.raw("s_cbranch_scc1 %s_spin2" % N)
    k.dump_stamps(rWS, 0)
    k("s_endpgm")
    k.label(N + "_cfallback")
    k("s_mov_b32", s(sMode), 1)
    k.raw("s_waitcnt vmcnt(0) lgkmcnt(0)")
    k("s_barrier")
    k("s_barrier")
    k("s_branch", N + "_cstart")

    role[0] = "H"
    k.vmq = []; k.lgq = []
    k.label(N + "_helper")
    k("s_sub_u32", s(sH), s(sW), 8)
    k("s_mul_i32", s(sHq), s(sH), 49152)
    k("s_lshl_b32", s(sH1k), s(sH), 10)
    k("s_lshl_b32", s(sH8k), s(sH), 13)
    k("v_lshlrev_b32", v(vL4), 2, v(vL))
    k("v_lshlrev_b32", v(vPf), 7, v(vL))
    k("v_mov_b32", v(vZero), 0)
    k("v_lshrrev_b32", v(t0), 2, v(vL))
    k("v_and_b32", v(t1), 3, v(vL))
    k("v_lshrrev_b32", v(t2), 3, v(t0))
    k("v_lshlrev_b32", v(t2), 1, v(t2))
    k("v_xor_b32", v(t1), v(t1), v(t2))
    k("v_mul_u32_u24", v(vBq), "0xc00", v(t0))
    k("v_lshl_add_u32", v(vBq), v(t1), 4, v(vBq))
    k("s_lshl_b32", s(sx), s(sHg), 6)
    k("v_add_u32", v(vBq), s(sx), v(vBq))
    k("v_lshrrev_b32", v(t0), 3, v(vL))
    k("v_and_b32", v(t1), 7, v(vL))
    k("v_bfe_u32", v(t2), v(t0), 1, 2)
    k("v_lshlrev_b32", v(t2), 1, v(t2))
    k("v_xor_b32", v(t1), v(t1), v(t2))
    k("v_lshlrev_b32", v(vB64), 10, v(t0))
    k("v_lshl_add_u32", v(vB64), v(t1), 4, v(vB64))
    k("s_lshl_b32", s(sx), s(sNb), 7)
    k("v_add_u32", v(vB64), s(sx), v(vB64))
    k("s_mul_i32", s(sy), s(sHg), 224)
    k("s_and_b32", s(sx), s(sy), "0xffffffc0")
    k("v_lshrrev_b32", v(t0), 4, v(vL))
    k("s_lshl_b32", s(sO), s(sH), 2)
    k("v_add_u32", v(t0), s(sO), v(t0))
    k("v_and_b32", v(t1), 7, v(t0))
    k("v_lshlrev_b32", v(t1), 1, v(t1))
    k("v_and_b32", v(t2), 15, v(vL))
    k("v_xor_b32", v(t2), v(t2), v(t1))
    k("v_mul_u32_u24", v(vBw1), 3584, v(t0))
    k("v_lshl_add_u32", v(vBw1), v(t2), 4, v(vBw1))
    k("v_add_u32", v(vBw1), s(sx), v(vBw1))
    k.wait_smem()
    for r, sl, sz in srds:
        k("s_and_b32", s(r + 1), s(r + 1), "0xffff")

    k("s_mov_b32", s(sPp), s(rWS))
    k("s_mov_b32", s(sPp + 1), s(rWS + 1))
    if DIAG: k.raw("s_barrier")
    rC = k.salloc(4)
    k.raw("s_getpc_b64 s[%d:%d]" % (rC, rC + 1))
    k.label(N + "_pc")
    k.raw("s_sub_u32 s%d, s%d, %s_pc-%s" % (rC, rC, N, N))
    k.raw("s_subb_u32 s%d, s%d, 0" % (rC + 1, rC + 1))
    k.raw("s_and_b32 s%d, s%d, 0xffff" % (rC + 1, rC + 1))
    k.raw("s_mov_b32 s%d, %s_done-%s" % (rC + 2, N, N))
    k.raw("s_mov_b32 s%d, 0x20000" % (rC + 3))
    def code_touch(nwg):
        l = L("h2")
        n = 320 // nwg
        k("s_cmp_lg_u32", s(sH), 2)
        k("s_cbranch_scc1", l)
        k("s_and_b32", s(sx), s(sR), nwg - 1)
        k("s_mul_i32", s(sx), s(sx), n * 128)
        k("v_add_u32", v(t0), s(sx), v(vPf))
        k.raw("s_mov_b64 exec, 0x%x" % ((1 << n) - 1))
        k("buffer_load_dword", v(vDum), v(t0), s(rC, 4), 0, mods="offen", cond=True)
        k.raw("s_mov_b64 exec, -1")
        k.label(l)
    def h0_begin():
        l = L("h0")
        k("s_cmp_lg_u32", s(sH), 0)
        k("s_cbranch_scc1", l)
        return l
    def h0_end(l):
        k.raw("s_mov_b64 exec, -1")
        k.label(l)
    def ld_wq(seg, i):
        for u in range(2):
            k("s_add_u32", s(sO), s(sHq), hex((8 * i + 4 * u) * 49152 + seg * 1024))
            k("s_add_u32", "m0", s(sH1k), hex(seg * 32768 + i * 8192 + u * 4096))
            k("buffer_load_dwordx4", v(vBq), s(rWQ, 4), s(sO), mods="offen lds", tag="WQ")
    def ld_64(srd, NH, n, blk, tag):
        for u in range(2):
            k("s_add_u32", s(sO), s(sH8k), hex((u * NH + n) * 32768))
            k("s_add_u32", "m0", s(sH1k), hex(blk * BLK + u * 4096))
            k("buffer_load_dwordx4", v(vB64), s(srd, 4), s(sO), mods="offen lds", tag=tag)
    def ld_w1(j):
        for u in range(2):
            k("s_add_u32", "m0", s(sH1k), hex(W1BLK[j] * BLK + u * 4096))
            k("s_mov_b32", s(sO), hex((j * 32 + u * 16) * 3584))
            k("buffer_load_dwordx4", v(vBw1), s(rW1, 4), s(sO), mods="offen lds", tag="W1_%d" % j)
    def ld_w2(n):
        ld_64(rW2, 28, n, W2BLK[n], "W2_%d" % n)
    npf = [0]
    def prefetch(srd, base, total, nwg=32):
        q = total // (4 * nwg)
        assert q % 128 == 0
        k("s_and_b32", s(sx), s(sR), nwg - 1)
        k("s_lshl_b32", s(sx), s(sx), 2)
        k("s_add_u32", s(sx), s(sx), s(sH))
        k("s_mul_i32", s(sx), s(sx), q)
        if base: k("s_add_u32", s(sx), s(sx), hex(base))
        lines = q // 128
        while lines > 0:
            n = min(lines, 64)
            if n < 64:
                m = (1 << n) - 1
                k.raw("s_mov_b32 exec_lo, 0x%x" % (m & 0xffffffff))
                k.raw("s_mov_b32 exec_hi, 0x%x" % (m >> 32))
            k("buffer_load_dword", v(vDum), v(vPf), s(srd, 4), s(sx), mods="offen", tag="PF")
            npf[0] += 1
            if n < 64: k.raw("s_mov_b64 exec, -1")
            lines -= n
            if lines: k("s_add_u32", s(sx), s(sx), 8192)

    def touch_ws(kind):
        k("s_lshl_b32", s(sx), s(sX), 21)
        if kind == "r1":
            n = 16
            k("s_lshl_b32", s(sy), s(sR), 13)
            k("s_add_u32", s(sx), s(sx), s(sy))
            k("s_lshl_b32", s(sy), s(sH), 11)
        else:
            k("s_lshr_b32", s(sy), s(sR), 4)
            k("s_mul_i32", s(sy), s(sy), HALF)
            k("s_add_u32", s(sx), s(sx), s(sy))
            k("s_and_b32", s(sy), s(sR), 15)
            k("s_lshl_b32", s(sy), s(sy), 2)
            k("s_add_u32", s(sy), s(sy), s(sH))
            n = 16 if kind == "o" else 40
            k("s_mul_i32", s(sy), s(sy), n * 128)
            k("s_add_u32", s(sx), s(sx), hex(R2 + (0 if kind == "o" else 128 * 1024)))
        k("s_add_u32", s(sx), s(sx), s(sy))
        m = (1 << n) - 1
        k.raw("s_mov_b32 exec_lo, 0x%x" % (m & 0xffffffff))
        k.raw("s_mov_b32 exec_hi, 0x%x" % (m >> 32))
        k("buffer_load_dword", v(vDum), v(vPf), s(rWS, 4), s(sx), mods="offen sc1", tag="PF")
        k.raw("s_mov_b64 exec, -1")
    def slot(name, nwg=32):
        for pc in SCHED.get(name, "").split("."):
            if not pc: continue
            if pc in "og": touch_ws(pc)
            elif pc == "c": code_touch(nwg)
            elif pc == "q":
                k("v_lshrrev_b32", v(t0), 3, v(vL))
                k("v_mul_u32_u24", v(t0), "0xc00", v(t0))
                k("v_and_b32", v(t1), 7, v(vL))
                k("v_lshl_add_u32", v(t0), v(t1), 7, v(t0))
                k("s_lshl_b32", s(sx), s(sR), 2)
                k("s_add_u32", s(sx), s(sx), s(sH))
                k("s_mul_i32", s(sx), s(sx), 4 * 3072)
                k.raw("s_mov_b32 exec_hi, 0")
                k("buffer_load_dword", v(vDum), v(t0), s(rWQ, 4), s(sx), mods="offen", tag="PF")
                k.raw("s_mov_b64 exec, -1")
            elif pc in "ab": prefetch(rWO, (pc == "b") * 262144, 262144, nwg)
            elif pc[0] == "w": prefetch(rW1, int(pc[1:]) * 262144, 262144, nwg)
            elif pc[0] == "v": prefetch(rW2, int(pc[1:]) * 262144, 262144, nwg)
            else: assert 0, pc
    def wback(name):
        if WB != name: return
        l = L("wb")
        k("s_lshl_b32", s(sy), s(sH), 5)
        k("s_add_u32", s(sy), s(sy), s(sR))
        k("s_cmp_lg_u32", s(sy), WBR)
        k("s_cbranch_scc1", l)
        k.raw("buffer_wbl2 sc1")
        k.label(l)
    def gbar(i):
        k.raw("buffer_wbl2 sc1")
        k.raw("s_waitcnt vmcnt(0)")
        k.raw("s_mov_b64 exec, 1")
        k("v_mov_b32", v(t0), 1)
        k.raw("buffer_atomic_add v%d, v%d, s[%d:%d], 0 offen offset:%d sc1" % (t0, vZero, rDBG, rDBG + 3, 132 + 4 * i))
        k("s_mov_b32", s(sit), 0)
        lp, lx = L("gp"), L("gx")
        k.label(lp)
        k("s_sleep", 8)
        k("s_add_u32", s(sit), s(sit), 1)
        k("s_cmp_gt_u32", s(sit), LIMIT)
        k("s_cbranch_scc1", lx)
        k.raw("buffer_load_dword v%d, v%d, s[%d:%d], 0 offen offset:%d sc1" % (t0, vZero, rDBG, rDBG + 3, 132 + 4 * i))
        k.raw("s_waitcnt vmcnt(0)")
        k("v_cmp_gt_u32", "vcc", 256, v(t0))
        k.raw("s_nop 4")
        k.raw("s_cbranch_vccnz %s" % lp)
        k.label(lx)
        k.raw("s_mov_b64 exec, -1")
        k.raw("buffer_inv sc1")
        k.raw("s_waitcnt vmcnt(0)")
    def publish(srd, off_fn, val, mn, bits):
        off_fn()
        k("v_mov_b32", v(t0), val)
        k.raw("s_mov_b64 exec, 1")
        k(mn, v(t0), v(vZero), s(srd, 4), s(sx), mods=("offen " + bits).strip(), cond=True)
    def poll(srd, off_fn, nl, mask_fn, stage, checkbad):
        k.raw("s_mov_b64 exec, 0x%x" % ((1 << nl) - 1))
        off_fn()
        mask_fn()
        k("s_mov_b32", s(sit), 0)
        lp, lx, lt = L("p"), L("x"), L("t")
        k.label(lp)
        k.raw("buffer_load_dword v%d, v%d, s[%d:%d], s%d offen sc1" % (t0, vL4, srd, srd + 3, sx))
        k.raw("s_waitcnt vmcnt(0)")
        k("v_or_b32", v(t0), "0x80808080", v(t0))
        k("v_subrev_u32", v(t0), hex(stage * 0x01010101), v(t0))
        k("v_and_b32", v(t0), v(t0), v(vMask))
        k("v_cmp_ne_u32", "vcc", v(t0), v(vMask))
        k.raw("s_nop 4")
        k.raw("s_cbranch_vccz %s" % lx)
        k("s_add_u32", s(sit), s(sit), 1)
        k("s_cmp_gt_u32", s(sit), LIMIT)
        k("s_cbranch_scc1", lt)
        if checkbad:
            k("s_and_b32", s(sy), s(sit), 7)
            k("s_cmp_lg_u32", s(sy), 0)
            k("s_cbranch_scc1", lp)
            k.raw("buffer_load_dword v%d, v%d, s[%d:%d], 0 offen offset:128 sc1" % (t1, vZero, rDBG, rDBG + 3))
            k.raw("s_waitcnt vmcnt(0)")
            k("v_readfirstlane_b32", s(sy), v(t1))
            k("s_lshr_b32", s(sy), s(sy), 16)
            k("s_cmp_eq_u32", s(sy), 0)
            k("s_cbranch_scc1", lp)
        else:
            k("s_branch", lp)
        k.label(lt)
        k("s_mov_b32", s(sAb), 1)
        k.label(lx)
    def sync(idx, fast_fn):
        l = h0_begin()
        lf = L("fb")
        k("s_cmp_lg_u32", s(sMode), 0)
        k("s_cbranch_scc1", lf)
        fast_fn()
        k.raw("s_mov_b64 exec, -1")
        k("s_branch", l)
        k.label(lf)
        gbar(idx)
        h0_end(l)
    def prog_off():
        k("s_lshl_b32", s(sx), s(sX), 21)
        k("s_add_u32", s(sx), s(sx), hex(PROGO))
    def prog_own_off():
        prog_off()
        k("s_add_u32", s(sx), s(sx), s(sR))
    def mask_all(sval_fn):
        def f():
            sval_fn()
            k("v_mov_b32", v(vMask), s(sy))
        return f
    def mask_range(slo_fn, n):
        def f():
            slo_fn()
            k("v_subrev_u32", v(t1), s(sy), v(vL))
            k("v_cmp_gt_u32", "vcc", n, v(t1))
            k("v_mov_b32", v(t1), "0x80808080")
            k("v_cndmask_b32", v(vMask), 0, v(t1), "vcc")
        return f
    def fla_off():
        k("s_mul_i32", s(sx), s(sHg), 4352)
        k("s_add_u32", s(sx), s(sx), hex(WS_FLA))
    def fla_own():
        fla_off()
        k("s_lshl_b32", s(sy), s(sX), 3)
        k("s_add_u32", s(sx), s(sx), s(sy))
        k("s_lshl_b32", s(sy), s(sB), 2)
        k("s_add_u32", s(sx), s(sx), s(sy))

    l = L("h1")
    k("s_cmp_lg_u32", s(sH), 1)
    k("s_cbranch_scc1", l)
    k("s_cmp_ge_u32", s(sR), 16)
    k("s_cbranch_scc1", l)
    for i in range(4): k("v_mov_b32", v(vBt + i), -1)
    k("s_and_b32", s(sx), s(sR), 7)
    k("s_lshl_b32", s(sx), s(sx), 5)
    k("s_lshl_b32", s(sy), s(sX), 1)
    k("s_add_u32", s(sx), s(sx), s(sy))
    k("s_lshr_b32", s(sy), s(sR), 3)
    k("s_add_u32", s(sx), s(sx), s(sy))
    k("s_lshl_b32", s(sx), s(sx), 12)
    k("s_add_u32", s(sx), s(sx), hex(WS_PART))
    k("s_add_u32", s(sy), s(sx), 65536)
    for so in (sx, sy):
        k("buffer_store_dwordx4", v(vBt, 4), v(vL16), s(rWS, 4), s(so), mods="offen sc1", cond=True)
        k("buffer_store_dwordx4", v(vBt, 4), v(vL16), s(rWS, 4), s(so), mods="offen offset:1024 sc1", cond=True)
    k.raw("s_mov_b64 exec, 0xff")
    for so in (sx, sy):
        k("buffer_store_dwordx4", v(vBt, 4), v(vL16), s(rWS, 4), s(so), mods="offen offset:2048 sc1", cond=True)
    l2 = L("z")
    k("s_cmp_lg_u32", s(sR), 0)
    k("s_cbranch_scc1", l2)
    prog_off()
    k("buffer_store_dword", v(vZero), v(vL4), s(rWS, 4), s(sx), mods="offen", cond=True)
    k.label(l2)
    k.raw("s_mov_b64 exec, -1")
    k.label(l)
    lg = L("good")
    k("s_cmp_eq_u32", s(sBad), 0)
    k("s_cbranch_scc1", lg)
    l = L("h1")
    k("s_cmp_lg_u32", s(sH), 1)
    k("s_cbranch_scc1", l)
    k("v_mov_b32", v(vReg), "0x10000")
    k.raw("s_mov_b64 exec, 1")
    k("buffer_atomic_add", v(vReg), v(vZero), s(rDBG, 4), 0, mods="offen offset:128 sc1", cond=True)
    k.raw("s_mov_b64 exec, -1")
    k.label(l)
    k("s_branch", N + "_hfallback")
    k.label(lg)
    k.label(N + "_hstart")
    code_touch(32)
    l = L("h3")
    k("s_cmp_lg_u32", s(sH), 3)
    k("s_cbranch_scc1", l)
    k.raw("s_mov_b64 exec, 7")
    k("s_mul_i32", s(sx), s(sHg), 224)
    k("v_mul_u32_u24", v(t0), 110, v(vL))
    k("buffer_load_ubyte", v(vDum), v(t0), s(rB1, 4), s(sx), mods="offen", cond=True)
    k.raw("s_mov_b64 exec, 1")
    k("s_lshl_b32", s(sx), s(sNb), 7)
    k("buffer_load_dword", v(vDum), v(vZero), s(rB2, 4), s(sx), mods="offen", cond=True)
    k.raw("s_mov_b64 exec, -1")
    k.label(l)
    l = h0_begin()
    k.raw("s_mov_b64 exec, 1")
    prog_off()
    k("buffer_load_dword", v(vDum), v(vZero), s(rWS, 4), s(sx), mods="offen sc1", cond=True)
    h0_end(l)
    BAR("p")
    k.raw("s_waitcnt vmcnt(0)")
    k.vmq = []
    BAR("X0")
    def s0_off():
        k("s_lshl_b32", s(sx), s(sX), 4)
    l = h0_begin()
    k("s_cmp_lg_u32", s(sMode), 0)
    k("s_cbranch_scc1", l)
    k("s_cmp_ge_u32", s(sR), 16)
    k("s_cbranch_scc1", l)
    def own():
        s0_off()
        k("s_add_u32", s(sx), s(sx), s(sR))
    publish(rDBG, own, 1, "buffer_store_byte", "")
    h0_end(l)
    ST("hpf", "a")
    BAR("d")
    touch_ws("r1")
    slot("d")
    sync(0, lambda: poll(rDBG, s0_off, 4, mask_range(lambda: k("s_lshl_b32", s(sy), s(sB), 1), 2), 1, True))
    l = L("ld")
    k("s_lshl_b32", s(sy), s(sMode), 2)
    k("s_add_u32", s(sy), s(sy), s(sH))
    k("s_lshl_b32", s(sy), s(sy), 5)
    k("s_add_u32", s(sy), s(sy), s(sR))
    k("s_cmp_lg_u32", s(sy), 3 * 32 + 16)
    k("s_cbranch_scc1", l)
    poll(rDBG, s0_off, 4, mask_all(lambda: k("s_mov_b32", s(sy), "0x80808080")), 1, True)
    k.raw("s_mov_b64 exec, 1")
    k("v_mov_b32", v(t0), 1)
    k("s_cmp_lg_u32", s(sAb), 0)
    k("s_mov_b32", s(sAb), 0)
    l2 = L("ld")
    k("s_cbranch_scc1", l2)
    k("buffer_atomic_add", v(t0), v(vZero), s(rDBG, 4), 0, mods="offen offset:128 sc1", cond=True)
    k.label(l2)
    k.raw("s_mov_b64 exec, -1")
    k.label(l)
    ST("hs0", "a")
    BAR("Y0")
    BAR("a1")
    l = h0_begin()
    lx = L("rx")
    k("s_cmp_lg_u32", s(sMode), 0)
    k("s_cbranch_scc1", lx)
    k.raw("s_mov_b64 exec, 1")
    k("s_mov_b32", s(sit), 0)
    lp, lt = L("rp"), L("rt")
    k.label(lp)
    k.raw("buffer_load_dword v%d, v%d, s[%d:%d], 0 offen offset:128 sc1" % (vReg, vZero, rDBG, rDBG + 3))
    k.raw("s_waitcnt vmcnt(0)")
    k("v_readfirstlane_b32", s(sy), v(vReg))
    k("s_lshr_b32", s(sx), s(sy), 16)
    k("s_cmp_lg_u32", s(sx), 0)
    k("s_cbranch_scc1", lt)
    k("s_cmp_eq_u32", s(sy), 8)
    k("s_cbranch_scc1", lx)
    k("s_add_u32", s(sit), s(sit), 1)
    k("s_cmp_gt_u32", s(sit), LIMIT)
    k("s_cbranch_scc1", lt)
    k("s_sleep", 4)
    k("s_branch", lp)
    k.label(lt)
    k("s_mov_b32", s(sAb), 1)
    k.label(lx)
    k.raw("s_mov_b64 exec, 1")
    k("v_mov_b32", v(t0), s(sAb))
    k("v_mov_b32", v(t1), ABW)
    k.raw("ds_write_b32 v%d, v%d" % (t1, t0))
    k.raw("s_waitcnt lgkmcnt(0)")
    h0_end(l)
    slot("a0")
    k.wait_vm("PF")
    for i in range(4): ld_wq(0, i)
    slot("a1")
    BAR("k")
    BAR("s")
    k("v_mov_b32", v(t1), ABW)
    k("ds_read_b32", v(t3), v(t1))
    k.wait_lg()
    k("v_readfirstlane_b32", s(sy), v(t3))
    k("s_cmp_lg_u32", s(sy), 0)
    k("s_cbranch_scc1", N + "_hfallback")
    k.wait_vm("WQ")
    BAR("ps")
    slot("ps")
    BAR("X1")
    sync(1, lambda: None)
    BAR("Y1")
    k.wait_vm("PF")
    for n in range(8): ld_64(rWO, 8, n, WOBLK[n], "WO")
    for j in range(6): ld_w1(j)
    slot("y1")
    BAR("o")
    k.wait_vm("W1_5")
    BAR("X2")
    def m_half():
        k("s_bfe_u32", s(sy), s(sR), "0x10001")
        k("s_lshl_b32", s(sy), s(sy), 3)
        k("s_lshl_b32", s(sy), "0x00800080", s(sy))
    def lsync(idx, stage, mask_fn):
        def f():
            publish(rWS, prog_own_off, stage, "buffer_store_byte", "")
            poll(rWS, prog_off, 8, mask_fn, stage, False)
        sync(idx, f)
    lsync(2, 1, mask_all(m_half))
    BAR("Y2")
    BAR("a3")
    for j in range(6, 12): ld_w1(j)
    slot("a3")
    BAR("w")
    BAR("r")
    k.wait_vm("W1_11")
    BAR("X3")
    def m_quarter():
        k("s_lshr_b32", s(sy), s(sR), 2)
        k("s_lshl_b32", s(sy), s(sy), 3)
        k("s_lshl_b32", s(sy), "0x80", s(sy))
    lfree, ljoin = L("hfree"), L("hjoin")
    k("s_cmp_ge_u32", s(sR), 16)
    k("s_cbranch_scc1", lfree)
    sp0 = {"lines": list(spq["lines"]), "q": list(spq["q"])}
    lsync(3, 2, mask_all(m_quarter))
    BAR("Y3")
    BAR("h")
    q0 = list(k.vmq)
    for j in range(12, 16): ld_w1(j)
    slot("xl", 16)
    BAR("l")
    k.wait_vm("W1_15")
    k("s_branch", ljoin)
    k.label(lfree)
    k.vmq = q0
    sync(3, lambda: publish(rWS, prog_own_off, 2, "buffer_store_byte", ""))
    for j in range(12, 16): ld_w1(j)
    slot("xf", 16)
    spq.update(sp0)
    sp(sum(SS.get(x, 0) for x in ("Y3", "h", "l")))
    k.wait_vm("W1_15")
    k.label(ljoin)
    k.vmq = [("?", "PF")]
    BAR("X4")
    lsync(4, 3, mask_range(lambda: k("s_lshl_b32", s(sy), s(sB), 1), 2))
    BAR("Y4")
    BAR("a4")
    slot("a4")
    for n in range(4): ld_w2(n)
    BAR("g")
    for n in range(4, 20): ld_w2(n)
    k.wait_vm("W2_19")
    ST("hw2", "m")
    BAR("X5")
    lsync(5, 4, mask_all(m_half))
    BAR("Y5")
    BAR("b5")
    for n in range(20, 24): ld_w2(n)
    BAR("b9")
    for n in range(24, 28): ld_w2(n)
    for j in (20, 24):
        k.wait_vm("W2_%d" % (j + 3))
        BAR("b%d" % j)
        wback("b%d" % j)
    BAR("r2")
    wback("r2")
    k.dump_stamps(rWS, 0)
    k("s_endpgm")
    k.label(N + "_hfallback")
    k("s_mov_b32", s(sMode), 1)
    k("s_mov_b32", s(sAb), 0)
    k.raw("s_waitcnt vmcnt(0) lgkmcnt(0)")
    k("s_barrier")
    l = h0_begin()
    gbar(6)
    h0_end(l)
    k("s_barrier")
    k("s_branch", N + "_hstart")
    k.label(N + "_done")
    k("s_endpgm")
    if DIAG == "i":
        k.raw(".p2align 8")
        k.label(N + "_icode")
        for i in range(512): k.raw("s_nop 0")
        k.raw("s_branch %s_iret" % N)
    assert bars["C"] == bars["H"], (bars["C"], bars["H"])
    n = len(bars["C"])
    assert cbars[0][:n] == bars["C"] and cbars[1][:n] == bars["C"], (cbars, bars["C"])
    assert k.snext <= 80, k.snext
    if spq["lines"] or spq["q"]: print("WARNING scalar stream left:", len(spq["lines"]), spq["q"])
    if PROF: print("STAMPS", " ".join(sorted(slots, key=slots.get)))
    return k, 768, 163840

if __name__ == "__main__":
    gen.build_list([gen_main()], sys.argv[1] if len(sys.argv) > 1 else "cdna_kernels/%s.s" % NAME)
```

```python
import sys, os, math, struct
sys.path.insert(0, "dev")
from asmlib import *
import gen
from gen import unpack, phi_pack, LOG2E, HI
from gen2 import bf16r, rowln, f2h

NAME = gen.NAME
MB = 1 << 20
WS_PART, WS_FLA = 16 * MB, 17 * MB
R2, HALF, PROGO = 256 * 1024, 448 * 1024, 1152 * 1024
PROF = bool(int(os.environ.get("PROF", "0")))
PROFSET = os.environ.get("PROFSET", "m")

rX, rWQ, rWO, rW1, rB1, rW2, rB2, rOUT, rDBG, rWS = 4, 8, 12, 16, 20, 24, 28, 32, 36, 40
BLK = 8192
W1BLK = [8, 9, 10, 11, 4, 5, 6, 0, 1, 2, 3, 7, 16, 17, 18, 19]
W2BLK = [12, 13, 14, 15] + W1BLK
W2BLK = W2BLK + W2BLK[:8]
WOBLK = [12 + n for n in range(8)]
P0SCR = 12 * BLK
KVSCR = 4 * BLK
OSCR = 7 * BLK
ABW = 8 * BLK
P2SCR = 12 * BLK
LSCR = 12 * BLK
LIMIT = 1 << 15
SP = int(os.environ.get("SP", "20"))
NQ = 4
PFA = int(os.environ.get("PFA", "6")) * 32 * 3584
GFP = os.environ.get("GFP", "a1")
SCHED = dict(x.split(":") for x in os.environ.get("SCHED", "a0:q,a1:a.b,ps:c.o.w0.w1.w2,x2:c.w3.w4.w5,a3:w6,xf:c.v0.v3.v4,x4:v1,a4:c.g.v5.v2,x5:v6").split(","))
SQ = [x for x in os.environ.get("SQ", "").split(".") if x]
SS = {a: int(b) for a, b in (x.split(":") for x in os.environ.get("SS", "").split(",") if x)}
SAF = {a: int(b) for a, b in (x.split(":") for x in os.environ.get("SAF", "").split(",") if x)}
A4T = int(os.environ.get("A4T", "1"))
WOT = int(os.environ.get("WOT", "0"))
A1W = int(os.environ.get("A1W", "0"))
FW2 = int(os.environ.get("FW2", "14"))
WB = os.environ.get("WB", "b24")
WBR = int(os.environ.get("WBR", "0"))
OUTM = os.environ.get("OUTM", "")
NLO = int(os.environ.get("NLO", "24"))
WOE = int(os.environ.get("WOE", "0"))
X5E = int(os.environ.get("X5E", "1"))
P3H = ()

def rnd(k, d, src):
    k("v_cvt_pk_bf16_f32", v(d), 0, v(src))
bf16r = rnd

def phi_pack(k, src, dst, T, sC):
    a = [T + i for i in range(4)]; e = [T + 4 + i for i in range(4)]
    for i in range(4): rnd(k, a[i], src + i)
    for i in range(4): k("v_mul_f32", v(e[i]), LOG2E, v(a[i]))
    for i in range(4): k("v_exp_f32", v(e[i]), v(e[i]))
    for i in range(4): k("v_cmp_lt_f32", s(sC + 2 * i, 2), 0, v(a[i]))
    for i in range(4): k("v_add_f32", v(a[i]), 1.0, v(a[i]))
    for i in range(4): k("v_cndmask_b32", v(a[i]), v(e[i]), v(a[i]), s(sC + 2 * i, 2))
    for i in range(4): rnd(k, a[i], a[i])
    for i in range(4): k("v_add_f32", v(a[i]), "0x358637bd", v(a[i]))
    k("v_cvt_pk_bf16_f32", v(dst), v(a[0]), v(a[1]))
    k("v_cvt_pk_bf16_f32", v(dst + 1), v(a[2]), v(a[3]))

def rowln(k, D, T, sOne, reps):
    s0, s1, q0, q1, tm, mbv, nm, P = T, T + 1, T + 2, T + 3, T + 4, T + 5, T + 6, T + 8
    for rep in range(reps):
        if rep == 0:
            k("v_dot2_f32_bf16", v(s0), v(D), s(sOne), 0)
            k("v_dot2_f32_bf16", v(s1), v(D + 1), s(sOne), 0)
            k("v_dot2_f32_bf16", v(q0), v(D), v(D), 0)
            k("v_dot2_f32_bf16", v(q1), v(D + 1), v(D + 1), 0)
            for i in range(2, 8, 2):
                k("v_dot2_f32_bf16", v(s0), v(D + i), s(sOne), v(s0))
                k("v_dot2_f32_bf16", v(s1), v(D + i + 1), s(sOne), v(s1))
                k("v_dot2_f32_bf16", v(q0), v(D + i), v(D + i), v(q0))
                k("v_dot2_f32_bf16", v(q1), v(D + i + 1), v(D + i + 1), v(q1))
            for i in range(8): unpack(k, P + 2 * i, P + 2 * i + 1, D + i)
        else:
            k("v_pk_add_f32", v(s0, 2), v(P, 2), v(P + 2, 2))
            k("v_pk_mul_f32", v(q0, 2), v(P, 2), v(P, 2))
            k("v_pk_fma_f32", v(q0, 2), v(P + 2, 2), v(P + 2, 2), v(q0, 2))
            for i in range(2, 8):
                k("v_pk_add_f32", v(s0, 2), v(s0, 2), v(P + 2 * i, 2))
                k("v_pk_fma_f32", v(q0, 2), v(P + 2 * i, 2), v(P + 2 * i, 2), v(q0, 2))
        k("v_add_f32", v(s0), v(s0), v(s1))
        k("v_add_f32", v(q0), v(q0), v(q1))
        for ctl in ("quad_perm:[1,0,3,2]", "quad_perm:[2,3,0,1]", "row_half_mirror", "row_mirror"):
            k("v_add_f32_dpp", v(s0), v(s0), v(s0), mods=ctl + " row_mask:0xf bank_mask:0xf")
            k("v_add_f32_dpp", v(q0), v(q0), v(q0), mods=ctl + " row_mask:0xf bank_mask:0xf")
        k("v_mov_b32", v(s1), v(s0))
        k("v_mov_b32", v(q1), v(q0))
        k("v_permlane16_swap_b32", v(s0), v(s1))
        k("v_permlane16_swap_b32", v(q0), v(q1))
        k("v_add_f32", v(s0), v(s0), v(s1))
        k("v_add_f32", v(q0), v(q0), v(q1))
        k("v_mul_f32", v(s0), "0x3b000000", v(s0))
        k("v_mul_f32", v(q0), "0x3b000000", v(q0))
        rnd(k, mbv, s0)
        k("v_mul_f32", v(tm), v(s0), v(s0))
        k("v_sub_f32", v(nm), 0, v(mbv))
        k("v_sub_f32", v(nm + 1), 0, v(mbv))
        k("v_sub_f32", v(q0), v(q0), v(tm))
        k("v_max_f32", v(q0), 0, v(q0))
        rnd(k, q0, q0)
        for i in range(8): k("v_pk_add_f32", v(P + 2 * i, 2), v(P + 2 * i, 2), v(nm, 2))
        k("v_add_f32", v(q0), "0x3727c5ac", v(q0))
        rnd(k, q0, q0)
        k("v_sqrt_f32", v(q0), v(q0))
        for i in range(8): rnd(k, P + i, P + i)
        rnd(k, q0, q0)
        k("v_rcp_f32", v(nm), v(q0))
        k("v_rcp_f32", v(nm + 1), v(q0))
        for i in range(8, 16): rnd(k, P + i, P + i)
        for i in range(8): k("v_pk_mul_f32", v(P + 2 * i, 2), v(P + 2 * i, 2), v(nm, 2))
        if rep == reps - 1:
            for i in range(8): k("v_cvt_pk_bf16_f32", v(D + i), v(P + 2 * i), v(P + 2 * i + 1))
        else:
            for i in range(16): rnd(k, P + i, P + i)

def gemm1(k, steps, T, rd, mfma, pre=None):
    j0 = steps[0]
    if pre: pre(j0)
    for t in range(T): rd(j0, t)
    for n, j in enumerate(steps):
        nxt = steps[n + 1] if n + 1 < len(steps) else None
        if nxt is not None and pre: pre(nxt)
        for t in range(T):
            k.wait_lg("f%d_%d" % (j, t))
            mfma(j, t)
            if nxt is not None: rd(nxt, t)

def gemm_ring(k, seq, rd, mf, ring, pre_rd=None, post_mf=None):
    def R(n):
        if pre_rd: pre_rd(seq[n])
        rd(seq[n], n % ring, "f%d" % n)
    for n in range(min(ring, len(seq))): R(n)
    for n, it in enumerate(seq):
        k.wait_lg("f%d" % n)
        mf(it, n % ring)
        if post_mf: post_mf(it)
        if n + ring < len(seq): R(n + ring)

def gen_main():
    k = Kern("fused_kernel")
    k.prof = PROF
    k.ndump = 16
    slots = {}
    def ST(name, grp="m"):
        if PROF and set(grp) & set(PROFSET):
            if name not in slots: slots[name] = len(slots)
            k.stamp(slots[name])
    k.snext = 44
    k.vnext = 1
    N = k.name
    if PROF:
        for i in range(16): k("s_mov_b32", s(82 + i), 0)
    ST("start", "mabcdef")
    ENDSPIN = os.environ.get("ENDSPIN", "")
    if ENDSPIN:
        mi = "s_memrealtime" if ENDSPIN[0] == "r" else "s_memtime"
        k.raw("%s s[84:85]" % mi)
        k.maxs = 90
    k("s_cmp_ge_u32", "s2", 256)
    k("s_cbranch_scc1", N + "_done")
    srds = [(rX, 0, 2 * MB), (rWQ, 1, 512 * 1536 * 2), (rWO, 2, 512 * 512 * 2), (rW1, 4, 512 * 1792 * 2), (rB1, 5, 1792 * 2),
            (rW2, 6, 1792 * 512 * 2), (rB2, 7, 1024), (rOUT, 8, 2 * MB), (rDBG, 9, 256), (rWS, 10, 32 * MB)]
    for r, sl, sz in srds:
        k("s_load_dwordx2", s(r, 2), "s[0:1]", sl * 8)
    for r, sl, sz in srds:
        k("s_mov_b32", s(r + 2), hex(sz))
        k("s_mov_b32", s(r + 3), "0x20000")
    S = lambda: k.salloc()
    sW, sX, sR, sMode, sAb, sBad = S(), S(), S(), S(), S(), S()
    sx, sy, sO, sit, sOne = S(), S(), S(), S(), S()
    sB, sHg, smt1, smt2, sNb, sG, sWq, sA, sLo = S(), S(), S(), S(), S(), S(), S(), S(), S()
    sC = k.salloc(8, 4)
    sT1, sT2 = S(), S()
    sH, sHq, sH1k, sH8k = smt1, smt2, sG, sWq
    V = lambda n=1: k.valloc(n)
    vL, vG, vL16, vT8 = V(), V(), V(), V()
    t0, t1, t2, t3 = V(), V(), V(), V()
    vXo = V()
    ones = V(2)
    pq, hr, xr = V(4), V(4), V(4)
    b2r = xr
    vTb = V(21 + 3)
    vT = [vTb + i for i in range(24)]
    vA = [vL16, vT[21], vT[22]]
    vB = [vT[12], vT[13], vT[14]]
    acc = V(28)
    bf = V(28)
    xa = V(64)
    assert k.vnext <= 168, k.vnext
    vBq, vB64, vBw1, vPf, vL4, vZero, vMask, vReg, vDum, vBa = [acc + i for i in range(10)]
    vBb, vBt = acc + 10, acc + 12

    lab = [0]
    def L(p):
        lab[0] += 1
        return "%s_%s%d" % (N, p, lab[0])
    bars = {"C": [], "H": []}
    role = ["C"]
    def BAR(name, cls=None):
        if cls is None:
            for c in cbars: c.append(name)
            bars[role[0]].append(name)
            if role[0] == "H": sp(SS.get(name, 0))
            k("s_barrier")
            if role[0] == "H": sp(SAF.get(name, 0))
            return
        cbars[cls].append(name)
        if cls == 0: bars[role[0]].append(name)
        l = L("cb")
        k("s_cmp_eq_u32", s(sG), 1 - cls)
        k("s_cbranch_scc1", l)
        k("s_barrier")
        k.label(l)
    cbars = [[], []]
    sPp = k.salloc(2)
    spq = {"lines": [], "q": list(SQ)}
    def sp(n):
        if not n or not (spq["lines"] or spq["q"]): return
        l = L("sp")
        k("s_cmp_eq_u32", s(sH), 0)
        k("s_cbranch_scc1", l)
        for _ in range(n):
            if not spq["lines"]:
                if not spq["q"]: break
                pc = spq["q"].pop(0)
                if pc == "q":
                    k("s_lshl_b32", s(sC + 6), s(sR), 4)
                    k("s_mul_i32", s(sC + 7), s(sH), 5)
                    k("s_add_u32", s(sC + 6), s(sC + 6), s(sC + 7))
                    k("s_sub_u32", s(sC + 6), s(sC + 6), 5)
                    k("s_mul_i32", s(sC + 6), s(sC + 6), 3072)
                    k("s_add_u32", s(sC + 6), s(sC + 6), 60)
                    k("s_add_u32", s(sPp), s(rWQ), s(sC + 6))
                    k("s_addc_u32", s(sPp + 1), s(rWQ + 1), 0)
                    spq["lines"] = [(i >> 3) * 24 + (i & 7) for i in range(48)]
            if not spq["lines"]:
                nl = {"g": 160, "ga": 79, "gb": 82}.get(pc, 64)
                per = (nl + 2) // 3
                if pc in "ab": srd, base = rWO, (pc == "b") * 262144
                elif pc[0] == "w": srd, base = rW1, int(pc[1:]) * 262144
                elif pc[0] == "v": srd, base = rW2, int(pc[1:]) * 262144
                else: srd, base = rWS, (0 if pc == "r" else R2 + (0 if pc == "o" else 128 * 1024))
                if pc == "r":
                    k("s_lshl_b32", s(sC + 6), s(sR), 13)
                    k("s_lshl_b32", s(sC + 7), s(sX), 21)
                    k("s_add_u32", s(sC + 6), s(sC + 6), s(sC + 7))
                elif srd == rWS:
                    k("s_and_b32", s(sC + 6), s(sR), 15)
                    k("s_mul_i32", s(sC + 6), s(sC + 6), nl * 128)
                    k("s_lshr_b32", s(sC + 7), s(sR), 4)
                    k("s_mul_i32", s(sC + 7), s(sC + 7), HALF)
                    k("s_add_u32", s(sC + 6), s(sC + 6), s(sC + 7))
                    k("s_lshl_b32", s(sC + 7), s(sX), 21)
                    k("s_add_u32", s(sC + 6), s(sC + 6), s(sC + 7))
                else:
                    k("s_mul_i32", s(sC + 6), s(sR), nl * 128)
                assert 2 * (per - 1) + per == nl
                k("s_mul_i32", s(sC + 7), s(sH), (per - 1) * 128)
                k("s_add_u32", s(sC + 6), s(sC + 6), s(sC + 7))
                k("s_add_u32", s(sC + 6), s(sC + 6), hex(base + 60 - (per - 1) * 128 + (1 << 32)) if base + 60 < (per - 1) * 128 else hex(base + 60 - (per - 1) * 128))
                k("s_add_u32", s(sPp), s(srd), s(sC + 6))
                k("s_addc_u32", s(sPp + 1), s(srd + 1), 0)
                spq["lines"] = list(range(per))
            i = spq["lines"].pop(0)
            k.raw("s_load_dwordx2 s[%d:%d], s[%d:%d], 0x%x" % (sC + 4, sC + 5, sPp, sPp + 1, i * 128))
        k.label(l)

    k("v_lshrrev_b32", v(t0), 6, "v0")
    k("v_readfirstlane_b32", s(sW), v(t0))
    k("s_and_b32", s(sX), "s2", 7)
    k("s_lshr_b32", s(sR), "s2", 3)
    k("v_and_b32", v(vL), 63, "v0")
    k("v_bfe_u32", v(vG), "v0", 4, 2)
    k("v_lshlrev_b32", v(vL16), 4, v(vL))
    k("s_and_b32", s(sB), s(sR), 1)
    k("s_lshr_b32", s(sHg), s(sR), 1)
    k("s_lshr_b32", s(sNb), s(sR), 2)
    k("s_mov_b32", s(sMode), 0)
    k("s_mov_b32", s(sAb), 0)
    k("s_mul_i32", s(sT1), s(sX), hex(2 * MB - 256 * 1024))
    k("s_mul_i32", s(sT2), s(sX), hex(2 * MB - 896 * 1024))
    k("s_add_u32", s(sT2), s(sT2), hex(R2))
    k.raw("s_getreg_b32 s%d, hwreg(HW_REG_XCC_ID)" % sBad)
    k("s_and_b32", s(sBad), s(sBad), 15)
    k("s_cmp_lg_u32", s(sBad), s(sX))
    k("s_cselect_b32", s(sBad), 1, 0)
    k("s_cmp_ge_u32", s(sW), 8)
    k("s_cbranch_scc1", N + "_helper")

    k("v_lshlrev_b32", v(vT8), 3, "v0")
    k("v_add_u32", v(vA[1]), "0x10000", v(vL16))
    k("v_add_u32", v(vA[2]), "0x20000", v(vL16))
    k("s_mov_b32", s(sOne), "0x3f803f80")
    k("s_lshl_b32", s(smt1), s(sX), 4)
    k("s_lshl_b32", s(sx), s(sB), 3)
    k("s_add_u32", s(smt1), s(smt1), s(sx))
    k("s_add_u32", s(smt1), s(smt1), s(sW))
    k("s_lshr_b32", s(sG), s(sW), 2)
    k("s_and_b32", s(sWq), s(sW), 3)
    k("s_and_b32", s(sx), s(sR), 3)
    k("s_lshl_b32", s(sx), s(sx), 2)
    k("s_lshl_b32", s(smt2), s(sX), 4)
    k("s_add_u32", s(smt2), s(smt2), s(sx))
    k("s_add_u32", s(smt2), s(smt2), s(sWq))
    k("s_lshl_b32", s(sx), s(smt2), 14)
    k("s_lshl_b32", s(sO), s(sNb), 7)
    k("s_add_u32", s(sx), s(sx), s(sO))
    k("s_lshl_b32", s(sO), s(sG), 6)
    k("s_add_u32", s(sx), s(sx), s(sO))
    k("v_and_b32", v(t0), 15, "v0")
    k("v_lshlrev_b32", v(vXo), 10, v(t0))
    k("v_lshl_add_u32", v(vXo), v(vG), 3, v(vXo))
    k("v_add_u32", v(vXo), s(sx), v(vXo))
    k.wait_smem()
    for r, sl, sz in srds:
        k("s_and_b32", s(r + 1), s(r + 1), "0xffff")
    DIAG = os.environ.get("DIAG", "")
    if DIAG:
        k.maxs = 96
        k.raw("s_mov_b32 s90, 0")
        ld = L("dg")
        k("s_cmp_lg_u32", s(sW), 7)
        k("s_cbranch_scc1", ld)
        k("v_mov_b32", v(t0), 0)
        k("s_lshl_b32", s(sx), "s2", 7)
        if DIAG == "s":
            k("s_lshl_b32", s(sy), s(sX), 21)
            k("s_add_u32", s(sx), s(sx), s(sy))
            k("s_add_u32", s(sx), s(sx), hex(R2 + 512 * 1024))
        if DIAG == "w": k("s_add_u32", s(sx), s(sx), hex(1536 * 1024))
        if DIAG == "x": k("s_add_u32", s(sx), s(sx), hex(1024 * 1024))
        k.raw("s_memtime s[84:85]")
        k.raw("s_waitcnt lgkmcnt(0)")
        if DIAG == "i":
            k.raw("s_getpc_b64 s[92:93]")
            k.raw("s_add_u32 s92, s92, 16")
            k.raw("s_addc_u32 s93, s93, 0")
            k.raw("s_branch %s_icode" % N)
        elif DIAG != "0":
            k.raw("s_mov_b64 exec, 1")
            k.raw("buffer_load_dword v%d, v%d, s[%d:%d], s%d offen" % (t1, t0, {"s": rWS, "w": rW2, "x": rX, "o": rOUT}[DIAG], {"s": rWS, "w": rW2, "x": rX, "o": rOUT}[DIAG] + 3, sx))
            k.raw("s_waitcnt vmcnt(0)")
            k.raw("s_mov_b64 exec, -1")
        k.label(N + "_iret")
        k.raw("s_memtime s[86:87]")
        k.raw("s_waitcnt lgkmcnt(0)")
        k.raw("s_sub_u32 s90, s86, s84")
        k.raw("s_lshl_b32 s90, s90, 4")
        k.label(ld)
        k.raw("s_barrier")
    k("s_cmp_lg_u32", s(sBad), 0)
    k("s_cbranch_scc1", N + "_cfallback")
    k.label(N + "_cstart")
    for i in range(2): k("v_mov_b32", v(ones + i), "0x3f803f80")
    ST("go", "a")

    D = xa; TL = xa + 8
    lp0 = L("p0a")
    k("s_cmp_ge_u32", s(sR), 16)
    k("s_cbranch_scc1", lp0)
    k("v_lshrrev_b32", v(t0), 5, v(vL))
    k("v_and_b32", v(t1), 31, v(vL))
    k("v_lshlrev_b32", v(t2), 10, v(t0))
    k("v_lshl_add_u32", v(t2), v(t1), 4, v(t2))
    k("s_lshl_b32", s(sx), s(sX), 4)
    k("s_add_u32", s(sx), s(sx), s(sR))
    k("s_lshl_b32", s(sx), s(sx), 14)
    k("s_lshl_b32", s(sy), s(sW), 11)
    k("s_add_u32", s(sx), s(sx), s(sy))
    k("buffer_load_dwordx4", v(D, 4), v(t2), s(rX, 4), s(sx), mods="offen", tag="X0", cond=True)
    k("buffer_load_dwordx4", v(D + 4, 4), v(t2), s(rX, 4), s(sx), mods="offen offset:512", tag="X0", cond=True)
    k.label(lp0)
    NHI = 64 - NLO
    k("s_lshl_b32", s(sy), s(sR), 3)
    k("s_add_u32", s(sy), s(sy), s(sW))
    k("s_mul_i32", s(sO), s(sy), NLO)
    k("s_mul_i32", s(sy), s(sy), NHI)
    k("s_sub_u32", s(sy), s(sy), 128 * (NHI - NLO))
    k("s_cmp_lt_u32", s(sR), 16)
    k("s_cselect_b32", s(sO), s(sO), s(sy))
    k("s_cselect_b32", "exec_lo", hex(((1 << NLO) - 1) & 0xffffffff), hex(((1 << NHI) - 1) & 0xffffffff))
    k("s_cselect_b32", "exec_hi", hex(((1 << NLO) - 1) >> 32), hex(((1 << NHI) - 1) >> 32))
    k("v_add_u32", v(vT[16]), s(sO), v(vL))
    k("v_lshrrev_b32", v(vT[17]), 4, v(vT[16]))
    k("v_mul_u32_u24", v(vT[17]), "0xc00", v(vT[17]))
    k("v_and_b32", v(vT[16]), 15, v(vT[16]))
    k("v_lshl_add_u32", v(vT[16]), v(vT[16]), 7, v(vT[17]))
    k("buffer_load_dword", v(vT[17]), v(vT[16]), s(rWQ, 4), 0, mods="offen offset:1024", tag="KP")
    k.raw("s_mov_b64 exec, -1")
    lp0 = L("p0a")
    k("s_cmp_ge_u32", s(sR), 16)
    k("s_cbranch_scc1", lp0)
    k("v_lshrrev_b32", v(t2), 2, v(t1))
    k("v_mul_u32_u24", v(t2), 1056, v(t2))
    k("v_and_b32", v(t3), 3, v(t1))
    k("v_lshl_add_u32", v(t2), v(t3), 8, v(t2))
    k("v_lshl_add_u32", v(t2), v(t0), 4, v(t2))
    k("s_lshl_b32", s(sy), s(sW), 5)
    k("s_add_u32", s(sy), s(sy), P0SCR)
    k("v_add_u32", v(t2), s(sy), v(t2))
    k("s_mul_i32", s(sy), s(sW), 2112)
    k("s_add_u32", s(sy), s(sy), P0SCR)
    k("v_add_u32", v(t3), s(sy), v(vL16))
    k.raw("s_waitcnt vmcnt(1)")
    ST("xw", "a")
    rowln(k, D, TL, sOne, 1)
    k("ds_write_b128", v(t2), v(D, 4))
    k("ds_write_b128", v(t2), v(D + 4, 4), mods="offset:%d" % (8 * 1056))
    k.wait_lg()
    k.label(lp0)
    BAR("p")
    lp0 = L("p0b")
    k("s_cmp_ge_u32", s(sR), 16)
    k("s_cbranch_scc1", lp0)
    k("ds_read_b128", v(D, 4), v(t3))
    k("ds_read_b128", v(D + 4, 4), v(t3), mods="offset:1056")
    k("s_add_u32", s(sx), s(sx), s(sT1))
    k.wait_lg()
    k("buffer_store_dwordx4", v(D, 4), v(vL16), s(rWS, 4), s(sx), mods="offen", tag="XS", cond=True)
    k("buffer_store_dwordx4", v(D + 4, 4), v(vL16), s(rWS, 4), s(sx), mods="offen offset:1024", tag="XS", cond=True)
    k.label(lp0)
    k("v_bfe_u32", v(t0), v(vL), 2, 2)
    k("v_and_b32", v(t2), 1, v(vG))
    k("v_lshl_add_u32", v(t0), v(t2), 3, v(t0))
    k("v_lshlrev_b32", v(t0), 6, v(t0))
    k("v_and_b32", v(t1), 1, v(vL))
    k("v_lshl_add_u32", v(t0), v(t1), 3, v(t0))
    k("v_bfe_u32", v(t1), v(vL), 1, 1)
    k("v_lshlrev_b32", v(t2), 1, v(t2))
    k("v_xor_b32", v(t1), v(t1), v(t2))
    k("v_lshrrev_b32", v(t3), 1, v(vG))
    for t in range(2):
        if t: k("v_xor_b32", v(t1), 2, v(t1))
        k("v_lshl_add_u32", v(t2), v(t1), 4, v(t0))
        k("v_lshl_add_u32", v(vT[t]), v(t3), 10, v(t2))
        k("v_add_u32", v(vT[2 + t]), "0x10000", v(vT[t]))
    vBqc = vT[6]
    k("v_lshrrev_b32", v(t0), 2, v(vL))
    k("v_and_b32", v(t1), 3, v(vL))
    k("v_lshrrev_b32", v(t2), 3, v(t0))
    k("v_lshlrev_b32", v(t2), 1, v(t2))
    k("v_xor_b32", v(t1), v(t1), v(t2))
    k("v_mul_u32_u24", v(vBqc), "0xc00", v(t0))
    k("v_lshl_add_u32", v(vBqc), v(t1), 4, v(vBqc))
    k("s_lshl_b32", s(sx), s(sHg), 6)
    k("v_add_u32", v(vBqc), s(sx), v(vBqc))
    k("s_mul_i32", s(sx), s(sW), 98304)
    k("s_lshl_b32", s(sy), s(sW), 11)
    for t in range(2): k("v_mov_b32", v(vT[8 + t]), v(vT[t]))
    for t in range(4): k("v_add_u32", v(vT[t]), s(sy), v(vT[t]))
    k("v_add_u32", v(vT[4]), s(sy), v(vL16))
    k("v_add_u32", v(vT[5]), s(sy), v(vA[1]))
    k.wait_vm()
    ST("xs", "a")
    BAR("X0")
    for seg in (1, 2):
        for i in range(2):
            for c in range(2):
                k("s_add_u32", s(sO), s(sx), hex(i * 8 * 98304 + c * 49152 + seg * 1024))
                k("s_add_u32", "m0", s(sy), hex(seg * 32768 + i * 16384 + c * 1024))
                k("buffer_load_dwordx4", v(vBqc), s(rWQ, 4), s(sO), mods="offen lds", tag="WQ%d" % seg)
    BAR("d")
    for t in range(2):
        k("buffer_load_dwordx2", v(xr + 2 * t, 2), v(vXo), s(rX, 4), 0, mods="offen offset:%d" % (32 * t), tag="XR")
    k("s_mul_i32", s(sO), s(sHg), 224)
    k("v_lshlrev_b32", v(t0), 3, v(vL))
    k("v_add_u32", v(t0), s(sO), v(t0))
    k("buffer_load_dwordx2", v(vT[12], 2), v(t0), s(rB1, 4), 0, mods="offen", tag="BI")
    k("s_lshl_b32", s(sx), s(smt1), 14)
    k("s_add_u32", s(sx), s(sx), s(sT1))
    def tr_wq(segs, R):
        units = [(seg, i, t) for seg in segs for i in range(2) for t in range(2)]
        for n, (seg, i, t) in enumerate(units):
            for h in range(2):
                off = seg * 32768 + i * 16384 + 256 * h
                a = vT[t]
                if off >= 65536: a, off = vT[2 + t], off - 65536
                k("ds_read_b64_tr_b16", v(R + 4 * n + 2 * h, 2), v(a), mods="offset:%d" % off)
        k.wait_lg()
        for n, (seg, i, t) in enumerate(units):
            off = seg * 32768 + i * 16384 + 1024 * t
            k("ds_write_b128", v(vT[4 + (off >> 16)]), v(R + 4 * n, 4), mods="offset:%d" % (off & 65535))
        k.wait_lg()
    k.wait_vm("WQ2")
    ST("wq", "a")
    tr_wq((1, 2), xa)
    BAR("Y0")
    ST("S0", "ma")

    def lda16():
        for j in range(16):
            if j % 4 == 0 and j: k("s_add_u32", s(sx), s(sx), 4096)
            k("buffer_load_dwordx4", v(xa + 4 * j, 4), v(vL16), s(rWS, 4), s(sx), mods=("offen offset:%d sc1" % ((j & 3) * 1024)) if j & 3 else "offen sc1", tag="A%d" % j)
    lda16()
    BAR("a1", 1)
    def rd1(it, slot, tag):
        j, t6 = it
        off = (t6 >> 1) * 32768 + j * 2048 + (t6 & 1) * 1024
        k("ds_read_b128", v(bf + 4 * slot, 4), v(vA[off >> 16]), mods="offset:%d" % (off & 65535), tag=tag)
    def mf1(it, slot):
        j, t6 = it
        W = v(bf + 4 * slot, 4); X = v(xa + 4 * j, 4); C = v(acc + 4 * t6, 4)
        k.wait_vm("A%d" % j)
        a, b = (W, X) if t6 < 2 else (X, W)
        k("v_mfma_f32_16x16x32_bf16", C, a, b, (C if j else 0))
    gemm_ring(k, [(j, t6) for j in range(16) for t6 in (2, 3, 4, 5)], rd1, mf1, 7)
    ST("kvG", "ma")
    T = bf; pk = bf + 12; vv = bf + 16
    kvr = [acc, acc + 4, bf + 20, bf + 24]
    for t in range(2):
        phi_pack(k, acc + 8 + 4 * t, pk + 2 * t, T, sC)
        k("v_cvt_pk_bf16_f32", v(vv + 2 * t), v(acc + 16 + 4 * t), v(acc + 17 + 4 * t))
        k("v_cvt_pk_bf16_f32", v(vv + 2 * t + 1), v(acc + 18 + 4 * t), v(acc + 19 + 4 * t))
    for t in range(2):
        k("v_mfma_f32_16x16x16_bf16", v(kvr[t], 4), v(pk + 2 * t, 2), v(vv + 2 * t, 2), 0)
        k("v_mfma_f32_16x16x16_bf16", v(kvr[2 + t], 4), v(pk + 2 * t, 2), v(ones, 2), 0)
    k("s_lshl_b32", s(sx), s(sW), 12)
    k("v_add_u32", v(t1), s(sx), v(vL16))
    BAR("a1", 0)
    BAR("k")
    for a in range(4):
        k("ds_write_b128", v(t1), v(kvr[a], 4), mods="offset:%d" % (KVSCR + a * 1024))
    k.wait_lg()
    BAR("s")
    R = acc + 8
    k("v_mov_b32", v(t1), ABW)
    k("ds_read_b32", v(t3), v(t1))
    for w in range(8):
        k("ds_read_b64", v(R + 2 * w, 2), v(vT8), mods="offset:%d" % (KVSCR + w * 4096))
    k.wait_lg()
    k("v_readfirstlane_b32", s(sy), v(t3))
    k("s_cmp_lg_u32", s(sy), 0)
    k("s_cbranch_scc1", N + "_cfallback")
    for w in range(1, 8):
        k("v_pk_add_f32", v(R, 2), v(R, 2), v(R + 2 * w, 2))
    k("s_lshl_b32", s(sx), s(sHg), 4)
    k("s_lshl_b32", s(sy), s(sX), 1)
    k("s_add_u32", s(sx), s(sx), s(sy))
    k("s_add_u32", s(sx), s(sx), s(sB))
    k("s_lshl_b32", s(sx), s(sx), 12)
    k("s_add_u32", s(sx), s(sx), hex(WS_PART))
    vPo = vT[15]
    k("v_bfe_u32", v(t0), "v0", 7, 1)
    k("v_lshlrev_b32", v(t0), 6, v(t0))
    k("v_bfe_u32", v(t2), "v0", 5, 2)
    k("v_lshl_add_u32", v(t0), v(t2), 4, v(t0))
    k("v_and_b32", v(t2), 1, "v0")
    k("v_lshl_add_u32", v(t0), v(t2), 3, v(t0))
    k("v_add_u32", v(t0), 2048, v(t0))
    k("s_cmp_ge_u32", s(sW), 4)
    k("s_cselect_b64", "vcc", -1, 0)
    k("v_cndmask_b32", v(vPo), v(vT8), v(t0), "vcc")
    k("s_cselect_b32", s(sy), 3, -1)
    k("s_mov_b32", "exec_lo", s(sy))
    k("s_mov_b32", "exec_hi", s(sy))
    k("buffer_store_dwordx2", v(R, 2), v(vPo), s(rWS, 4), s(sx), mods="offen sc1", tag="PS")
    k.raw("s_mov_b64 exec, -1")
    BAR("ps")
    ST("pubA", "m")
    def rdq(it, slot, tag):
        j, t = it
        for h in range(2):
            k("ds_read_b64_tr_b16", v(bf + 4 * slot + 2 * h, 2), v(vT[8 + t]), mods="offset:%d" % (j * 2048 + 256 * h), tag=tag)
    gemm_ring(k, [(j, t6) for j in range(16) for t6 in (0, 1)], rdq, mf1, 7)
    for t in range(2):
        phi_pack(k, acc + 4 * t, pq + 2 * t, T, sC)
    def tr64():
        k("v_bfe_u32", v(t0), v(vL), 2, 2)
        k("v_lshl_add_u32", v(t1), v(vG), 2, v(t0))
        k("v_bfe_u32", v(t2), v(t1), 1, 2)
        k("v_lshlrev_b32", v(t0), 7, v(t1))
        k("v_and_b32", v(t1), 3, v(vL))
        k("v_lshl_add_u32", v(t0), v(t1), 3, v(t0))
        for t in range(4):
            k("v_xor_b32", v(t1), t, v(t2))
            k("v_lshl_add_u32", v(vT[t]), v(t1), 5, v(t0))
        k("s_lshl_b32", s(sy), s(sG), 12)
    def tr_units(sbase, nu):
        for t in range(4): k("v_add_u32", v(vT[4 + t]), s(sbase), v(vT[t]))
        k("v_add_u32", v(vT[8]), s(sbase), v(vL16))
        for u0 in range(0, nu, 4):
            us = list(range(u0, min(nu, u0 + 4)))
            for u in us:
                for t in range(4):
                    for h in range(2):
                        k("ds_read_b64_tr_b16", v(xa + 16 * (u - u0) + 4 * t + 2 * h, 2), v(vT[4 + t]), mods="offset:%d" % (u * 4096 + h * 2048), tag="u%d" % u)
            for u in us:
                k.wait_lg("u%d" % u)
                for t in range(4):
                    k("ds_write_b128", v(vT[8]), v(xa + 16 * (u - u0) + 4 * t, 4), mods="offset:%d" % (u * 4096 + t * 1024))
            k.wait_lg()
    tr64()
    k("s_lshl_b32", s(sy), s(sG), 12)
    k("s_add_u32", s(sy), s(sy), "0x10000")
    for t in range(4):
        k("v_add_u32", v(vT[7 + t]), s(sy), v(vT[t]))
        k("v_add_u32", v(vT[16 + t]), "0x10000", v(vT[7 + t]))
    k("s_mul_i32", s(sy), s(sHg), 224)
    k("s_bfe_u32", s(sx), s(sy), "0x10005")
    k("s_lshl_b32", s(sx), s(sx), 1)
    k("v_bfe_u32", v(t0), v(vL), 2, 2)
    k("v_lshl_add_u32", v(t0), v(vG), 2, v(t0))
    k("v_and_b32", v(t1), 7, v(t0))
    k("v_lshlrev_b32", v(t1), 1, v(t1))
    k("v_lshlrev_b32", v(t0), 8, v(t0))
    k("v_and_b32", v(t2), 1, v(vL))
    k("v_lshl_add_u32", v(t0), v(t2), 3, v(t0))
    k("v_bfe_u32", v(t2), v(vL), 1, 1)
    k("v_add_u32", v(t2), s(sx), v(t2))
    for t in range(7):
        k("v_add_u32", v(t3), 2 * t, v(t2))
        k("v_xor_b32", v(t3), v(t3), v(t1))
        k("v_lshl_add_u32", v(vT[t]), v(t3), 4, v(t0))
    BIAS = W1BLK[0] * BLK + 7168
    def tr_w1(js):
        l = L("tw")
        k("s_cmp_ge_u32", s(sW), len(js))
        k("s_cbranch_scc1", l)
        k("s_mul_i32", s(sy), s(sW), 5)
        k("s_lshr_b32", s(sy), hex(sum(W1BLK[j] << (5 * i) for i, j in enumerate(js))), s(sy))
        k("s_and_b32", s(sy), s(sy), 31)
        k("s_lshl_b32", s(sy), s(sy), 13)
        for t in range(7): k("v_add_u32", v(bf + t), s(sy), v(vT[t]))
        k("v_add_u32", v(bf + 7), s(sy), v(vL16))
        for t in range(7):
            for h in range(2):
                k("ds_read_b64_tr_b16", v(xa + 4 * t + 2 * h, 2), v(bf + t), mods="offset:%d" % (h * 4096))
        k.wait_lg()
        for t in range(7):
            k("ds_write_b128", v(bf + 7), v(xa + 4 * t, 4), mods="offset:%d" % (t * 1024))
        if js[0] == 0:
            l2 = L("bt")
            k("s_cmp_lg_u32", s(sW), 0)
            k("s_cbranch_scc1", l2)
            for q in range(2): unpack(k, xa + 56 + 2 * q, xa + 57 + 2 * q, vT[12] + q)
            k.raw("s_mov_b64 exec, 0xfffffff")
            k("ds_write_b128", v(bf + 7), v(xa + 56, 4), mods="offset:7168")
            k.raw("s_mov_b64 exec, -1")
            k.label(l2)
        k.wait_lg()
        k.label(l)
    l = L("fm")
    k("s_cmp_eq_u32", s(sMode), 0)
    k("s_cbranch_scc1", l)
    k.raw("s_waitcnt vmcnt(0)")
    k.label(l)
    BAR("X1")
    BAR("Y1")
    ST("SA", "mf")

    pr = xa
    lp, lx = L("pp"), L("px")
    k("s_mov_b32", s(sit), 0)
    k.label(lp)
    k("s_lshl_b32", s(sx), s(sHg), 16)
    k("s_add_u32", s(sx), s(sx), hex(WS_PART))
    for m in range(16):
        k("buffer_load_dwordx2", v(pr + 2 * m, 2), v(vPo), s(rWS, 4), s(sx), mods="offen sc1", tag="P")
        if m < 15: k("s_add_u32", s(sx), s(sx), 4096)
    k.wait_vm("P")
    k("v_max3_u32", v(t0), v(pr), v(pr + 1), v(pr + 2))
    k("v_max3_u32", v(t1), v(pr + 3), v(pr + 4), v(pr + 5))
    for m in range(6, 30, 4):
        k("v_max3_u32", v(t0), v(t0), v(pr + m), v(pr + m + 1))
        k("v_max3_u32", v(t1), v(t1), v(pr + m + 2), v(pr + m + 3))
    k("v_max3_u32", v(t0), v(t0), v(pr + 30), v(pr + 31))
    k("v_max_u32", v(t0), v(t0), v(t1))
    k("v_cmp_eq_u32", "vcc", -1, v(t0))
    k("s_add_u32", s(sit), s(sit), 1)
    k.raw("s_nop 4")
    k.raw("s_cbranch_vccz %s" % lx)
    k("s_cmp_lt_u32", s(sit), 4096)
    k("s_cbranch_scc1", lp)
    k.label(lx)
    ST("prt", "mf")
    for m in range(1, 16):
        k("v_pk_add_f32", v(pr, 2), v(pr, 2), v(pr + 2 * m, 2))
    k("v_cvt_pk_bf16_f32", v(pr + 2), v(pr), v(pr + 1))
    k("v_lshlrev_b32", v(t0), 2, "v0")
    k("ds_write_b32", v(t0), v(pr + 2), mods="offset:%d" % OSCR)
    k.wait_lg()
    BAR("o")
    ST("bo", "f")
    fr = xa + 32; nd = xa + 40; o = xa + 56
    k("v_lshlrev_b32", v(t0), 3, v(vL))
    for a in range(4):
        k("ds_read_b64", v(fr + 2 * a, 2), v(t0), mods="offset:%d" % (OSCR + a * 512))
    k.wait_lg()
    for h in range(2):
        k("v_mfma_f32_16x16x16_bf16", v(nd + 4 * h, 4), v(fr + 2 * h, 2), v(pq + 2 * h, 2), 0)
        k("v_mfma_f32_16x16x16_bf16", v(nd + 8 + 4 * h, 4), v(fr + 4 + 2 * h, 2), v(pq + 2 * h, 2), 0)
    for h in range(2):
        d = T + 8 * h; a = [d + 2 + q for q in range(4)]; u0, u1 = d + 6, d + 7
        bf16r(k, d, nd + 8 + 4 * h)
        k("v_add_f32", v(d), "0x358637bd", v(d))
        bf16r(k, d, d)
        k("v_rcp_f32", v(d), v(d))
        for q in range(4): rnd(k, a[q], nd + 4 * h + q)
        for q in range(4): k("v_mul_f32", v(a[q]), v(a[q]), v(d))
        k("v_cvt_pk_bf16_f32", v(o + 2 * h), v(a[0]), v(a[1]))
        k("v_cvt_pk_bf16_f32", v(o + 2 * h + 1), v(a[2]), v(a[3]))
    k("s_lshl_b32", s(sx), s(smt1), 4)
    k("s_add_u32", s(sx), s(sx), s(sHg))
    k("s_lshl_b32", s(sx), s(sx), 10)
    k("s_add_u32", s(sx), s(sx), s(sT1))
    k("s_mul_i32", s(sy), s(sB), HALF - 128 * 1024)
    k("s_add_u32", s(sx), s(sx), s(sy))
    k("s_add_u32", s(sx), s(sx), hex(R2))
    k("buffer_store_dwordx4", v(o, 4), v(vL16), s(rWS, 4), s(sx), mods="offen", tag="OS")
    def a_base(NH, abase, AJ):
        k("s_mul_i32", s(sA), s(smt2), AJ * 1024)
        k("s_mul_i32", s(sy), s(sG), NH * 1024)
        k("s_add_u32", s(sA), s(sA), s(sy))
        k("s_add_u32", s(sA), s(sA), s(abase))
    a_base(8, sT1, 16)
    k("s_bfe_u32", s(sy), s(sR), "0x10001")
    k("s_mul_i32", s(sy), s(sy), HALF - 128 * 1024)
    k("s_add_u32", s(sA), s(sA), s(sy))
    k("s_add_u32", s(sA), s(sA), hex(R2))
    ST("osi", "f")
    k.wait_vm("OS")
    ST("os", "f")
    BAR("X2")
    ST("X2", "f")
    tr_w1(list(range(6)))
    ST("tw2", "f")
    BAR("Y2")
    ST("SB", "mf")

    def g64(NH, blks, NA):
        st = {"n": 0}
        def lda():
            n = st["n"]
            if n >= NH: return
            if n % 4 == 0 and n: k("s_add_u32", s(sA), s(sA), 4096)
            k("buffer_load_dwordx4", v(xa + 4 * (n % NA), 4), v(vL16), s(rWS, 4), s(sA), mods=("offen offset:%d sc1" % ((n & 3) * 1024)) if n & 3 else "offen sc1", tag="A%d" % n)
            st["n"] += 1
        for n in range(min(NH, NA)): lda()
        def rd(it, slot, tag):
            j, t = it
            base = blks[j] * BLK
            win = base >> 16
            if NH == 8:
                for h in range(2):
                    k("ds_read_b64_tr_b16", v(bf + 4 * slot + 2 * h, 2), v(vT[(7 if win == 1 else 16) + t]),
                      mods="offset:%d" % (base - (win << 16) + h * 2048), tag=tag)
            else:
                for h in range(2):
                    k("ds_read_b64_tr_b16", v(bf + 4 * slot + 2 * h, 2), v(vT[4 * win + t]),
                      mods="offset:%d" % (base - (win << 16) + h * 2048), tag=tag)
        def mf(it, slot):
            j, t = it
            C = v(acc + 4 * t, 4)
            if t == 0: k.wait_vm("A%d" % j)
            k("v_mfma_f32_16x16x32_bf16", C, v(bf + 4 * slot, 4), v(xa + 4 * (j % NA), 4), (C if j else 0))
            if t == 3: lda()
        return rd, mf
    def g64_reduce(scr, bname):
        ln = L("ns")
        k("s_cmp_eq_u32", s(sG), 0)
        k("s_cbranch_scc1", ln)
        for i in range(8): k("v_swap_b32", v(acc + i), v(acc + 8 + i))
        k.label(ln)
        k("s_lshl_b32", s(sy), s(sW), 11)
        k("s_add_u32", s(sy), s(sy), scr)
        k("v_add_u32", v(t0), s(sy), v(vL16))
        k("s_xor_b32", s(sy), s(sW), 4)
        k("s_lshl_b32", s(sy), s(sy), 11)
        k("s_add_u32", s(sy), s(sy), scr)
        k("v_add_u32", v(t1), s(sy), v(vL16))
        k("ds_write_b128", v(t0), v(acc + 8, 4))
        k("ds_write_b128", v(t0), v(acc + 12, 4), mods="offset:1024")
        k.wait_lg()
        BAR(bname)
        k("ds_read_b128", v(acc + 8, 4), v(t1))
        k("ds_read_b128", v(acc + 12, 4), v(t1), mods="offset:1024")
        k.wait_lg()
        for i in range(0, 8, 2): k("v_pk_add_f32", v(acc + i, 2), v(acc + i, 2), v(acc + 8 + i, 2))

    rd, mf = g64(8, WOBLK, 16)
    BAR("a3", 1)
    gemm_ring(k, [(j, t) for j in range(8) for t in range(4)], rd, mf, 7)
    BAR("a3", 0)
    ST("P2G", "me")
    BAR("w")
    g64_reduce(P2SCR, "r")
    k.wait_vm("XR")
    for t in range(2):
        a = [T + q for q in range(4)]; b = [T + 4 + q for q in range(4)]; u0, u1 = T + 8, T + 9
        for q in range(4): rnd(k, a[q], acc + 4 * t + q)
        unpack(k, b[0], b[1], xr + 2 * t); unpack(k, b[2], b[3], xr + 2 * t + 1)
        k("v_pk_add_f32", v(a[0], 2), v(a[0], 2), v(b[0], 2))
        k("v_pk_add_f32", v(a[2], 2), v(a[2], 2), v(b[2], 2))
        k("v_cvt_pk_bf16_f32", v(hr + 2 * t), v(a[0]), v(a[1]))
        k("v_cvt_pk_bf16_f32", v(hr + 2 * t + 1), v(a[2]), v(a[3]))
    k("s_lshl_b32", s(sx), s(smt2), 14)
    k("s_lshl_b32", s(sy), s(sNb), 11)
    k("s_add_u32", s(sx), s(sx), s(sy))
    k("s_lshl_b32", s(sy), s(sG), 10)
    k("s_add_u32", s(sx), s(sx), s(sy))
    k("s_add_u32", s(sx), s(sx), s(sT1))
    k("buffer_store_dwordx4", v(hr, 4), v(vL16), s(rWS, 4), s(sx), mods="offen", tag="HS")
    vLr, vLw = vT[12], vT[13]
    k("v_lshrrev_b32", v(t0), 5, v(vL))
    k("v_and_b32", v(t1), 31, v(vL))
    k("v_lshrrev_b32", v(vLr), 2, v(t1))
    k("v_mul_u32_u24", v(vLr), 1056, v(vLr))
    k("v_and_b32", v(t3), 3, v(t1))
    k("v_lshl_add_u32", v(vLr), v(t3), 8, v(vLr))
    k("v_lshl_add_u32", v(vLr), v(t0), 4, v(vLr))
    k("s_lshl_b32", s(sy), s(sW), 5)
    k("s_add_u32", s(sy), s(sy), LSCR)
    k("v_add_u32", v(vLr), s(sy), v(vLr))
    k("s_lshl_b32", s(sLo), s(sX), 4)
    k("s_add_u32", s(sLo), s(sLo), s(sR))
    k("s_lshl_b32", s(sLo), s(sLo), 14)
    k("s_lshl_b32", s(sO), s(sW), 11)
    k("s_add_u32", s(sLo), s(sLo), s(sO))
    k("s_add_u32", s(sLo), s(sLo), s(sT1))
    k("s_mul_i32", s(sO), s(sW), 2112)
    k("s_add_u32", s(sO), s(sO), LSCR)
    k("v_add_u32", v(vLw), s(sO), v(vL16))
    k("s_mov_b32", "m0", s(sO))
    ST("hsi", "e")
    k.wait_vm("HS")
    ST("hs", "e")
    BAR("X3")
    ST("X3", "e")
    tr_w1(list(range(6, 12)))
    lfree = L("free")
    k("s_cmp_ge_u32", s(sR), 16)
    k("s_cbranch_scc1", lfree)
    BAR("Y3")
    ST("SC", "me")

    k("buffer_load_dwordx4", v(vL16), s(rWS, 4), s(sLo), mods="offen sc1 lds", tag="HL", cond=True)
    k("s_add_u32", "m0", s(sO), 1056 - 1024)
    k("buffer_load_dwordx4", v(vL16), s(rWS, 4), s(sLo), mods="offen offset:1024 sc1 lds", tag="HL", cond=True)
    k.raw("s_waitcnt vmcnt(0)")
    ST("hl", "e")
    BAR("h")
    k("ds_read_b128", v(D, 4), v(vLr))
    k("ds_read_b128", v(D + 4, 4), v(vLr), mods="offset:%d" % (8 * 1056))
    k.wait_lg()
    rowln(k, D, TL, sOne, 2)
    k("ds_write_b128", v(vLr), v(D, 4))
    k("ds_write_b128", v(vLr), v(D + 4, 4), mods="offset:%d" % (8 * 1056))
    k.wait_lg()
    ST("ln", "e")
    BAR("l")
    k("ds_read_b128", v(D, 4), v(vLw))
    k("ds_read_b128", v(D + 4, 4), v(vLw), mods="offset:1056")
    k.wait_lg()
    k("buffer_store_dwordx4", v(D, 4), v(vL16), s(rWS, 4), s(sLo), mods="offen", tag="YS", cond=True)
    k("buffer_store_dwordx4", v(D + 4, 4), v(vL16), s(rWS, 4), s(sLo), mods="offen offset:1024", tag="YS", cond=True)
    k.label(lfree)
    vBi = vT[19]
    k("v_lshlrev_b32", v(vBi), 4, v(vG))
    k("v_add_u32", v(vBi), hex(BIAS), v(vBi))
    c1 = 2 * math.sqrt(2 / math.pi) * math.log2(math.e)
    vC2 = vT[18]
    k("v_mov_b32", v(vC2), f2h(-c1 * 0.044715))
    k("s_lshl_b32", s(sx), s(smt1), 14)
    k("s_add_u32", s(sx), s(sx), s(sT1))
    k.raw("s_waitcnt vmcnt(0)")
    k.vmq = []
    ST("ys", "e")
    BAR("X4")
    ST("X4", "e")
    tr_w1(list(range(12, 16)))
    ST("tw4", "e")
    BAR("Y4")
    ST("SC2", "mce")

    lda16()
    ST("p3iss", "c")
    BAR("a4", 1)
    RING = 6
    E = vT[8]
    bb = [bf + 24, pq]
    seq = [(t, j) for t in range(7) for j in range(16)]
    def rd3(n):
        t, j = seq[n]
        base = W1BLK[j] * BLK + t * 1024
        k("ds_read_b128", v(bf + (n % RING) * 4, 4), v(vA[base >> 16]), mods="offset:%d" % (base & 65535), tag="f%d" % n)
    def rdb(t):
        k("ds_read_b128", v(bb[t & 1], 4), v(vBi), mods="offset:%d" % (64 * t), tag="bb%d" % t)
    def epi(t):
        a = [E + q for q in range(4)]; b = [E + 4 + q for q in range(4)]; u0, u1 = E + 8, E + 9
        c = acc + 4 * t; B = bb[t & 1]
        o = []
        A = o.append
        for q in range(4): A(lambda q=q: rnd(k, a[q], c + q))
        A(lambda: k.wait_lg("bb%d" % t))
        for q in range(4): A(lambda q=q: k("v_add_f32", v(a[q]), v(a[q]), v(B + q)))
        for q in range(4): A(lambda q=q: rnd(k, a[q], a[q]))
        for q in range(4): A(lambda q=q: k("v_mul_f32", v(b[q]), v(a[q]), v(a[q])))
        for q in range(4): A(lambda q=q: k("v_fmaak_f32", v(b[q]), v(vC2), v(b[q]), f2h(-c1)))
        for q in range(4): A(lambda q=q: k("v_mul_f32", v(b[q]), v(a[q]), v(b[q])))
        for q in range(4): A(lambda q=q: k("v_exp_f32", v(b[q]), v(b[q])))
        for q in range(4): A(lambda q=q: k("v_add_f32", v(b[q]), 1.0, v(b[q])))
        for q in range(4): A(lambda q=q: k("v_rcp_f32", v(b[q]), v(b[q])))
        for q in range(4): A(lambda q=q: k("v_mul_f32", v(a[q]), v(a[q]), v(b[q])))
        A(lambda: k("v_cvt_pk_bf16_f32", v(acc + 2 * t), v(a[0]), v(a[1])))
        A(lambda: k("v_cvt_pk_bf16_f32", v(acc + 2 * t + 1), v(a[2]), v(a[3])))
        return o
    for n in range(RING): rd3(n)
    for t in range(8):
        valu = []
        if t >= 1: valu += epi(t - 1)
        if t < 7:
            rdb(t)
            per = -(-len(valu) // 15)
            for j in range(16):
                n = 16 * t + j
                k.wait_lg("f%d" % n)
                if t == 0: k.wait_vm("A%d" % j)
                C = v(acc + 4 * t, 4)
                k("v_mfma_f32_16x16x32_bf16", C, v(bf + (n % RING) * 4, 4), v(xa + 4 * j, 4), (C if j else 0))
                if n + RING < len(seq): rd3(n + RING)
                for f in valu[:per]: f()
                valu = valu[per:]
            if t == A4T: BAR("a4", 0)
            if t in (0, 2, 4): ST("p3t%d" % t, "c")
            if t == 6:
                ST("P3G", "mc")
                BAR("g", 1)
        for f in valu: f()
    k("s_mul_i32", s(sx), s(smt1), 56 * 1024)
    k("s_add_u32", s(sx), s(sx), s(sT2))
    k("s_mul_i32", s(sy), s(sHg), 7)
    k("s_lshr_b32", s(sy), s(sy), 1)
    k("s_lshl_b32", s(sy), s(sy), 10)
    k("s_add_u32", s(sx), s(sx), s(sy))
    lo_, le_ = L("odd"), L("gs")
    k("s_bitcmp1_b32", s(sHg), 0)
    k("s_cbranch_scc1", lo_)
    for i in range(3):
        k("buffer_store_dwordx4", v(acc + 4 * i, 4), v(vL16), s(rWS, 4), s(sx), mods="offen offset:%d" % (1024 * i), tag="GS", cond=True)
    k("buffer_store_dwordx2", v(acc + 12, 2), v(vL16), s(rWS, 4), s(sx), mods="offen offset:3072", tag="GS", cond=True)
    k("s_branch", le_)
    k.label(lo_)
    k("buffer_store_dwordx2", v(acc, 2), v(vL16), s(rWS, 4), s(sx), mods="offen offset:8", tag="GS", cond=True)
    for i in range(3):
        k("buffer_store_dwordx4", v(acc + 2 + 4 * i, 4), v(vL16), s(rWS, 4), s(sx), mods="offen offset:%d" % (1024 * (i + 1)), tag="GS", cond=True)
    k.label(le_)
    k("s_lshl_b32", s(sy), s(sNb), 7)
    k("s_lshl_b32", s(sO), s(sG), 6)
    k("s_add_u32", s(sy), s(sy), s(sO))
    k("v_lshlrev_b32", v(t3), 3, v(vG))
    k("v_add_u32", v(t3), s(sy), v(t3))
    for t in range(2):
        k("buffer_load_dwordx2", v(b2r + 2 * t, 2), v(t3), s(rB2, 4), 0, mods="offen offset:%d" % (32 * t), tag="B2")
    tr64()
    for t in range(4):
        k("v_add_u32", v(vT[t]), s(sy), v(vT[t]))
        k("v_add_u32", v(vT[4 + t]), "0x10000", v(vT[t]))
        k("v_add_u32", v(vT[8 + t]), "0x20000", v(vT[t]))
    a_base(28, sT2, 56)
    ST("P3E", "mc")
    BAR("g", 0)
    k.wait_vm("GS")
    BAR("X5")
    BAR("Y5")
    ST("SD", "mc")

    rd, mf = g64(28, W2BLK, 16)
    def pre4(it):
        if it in ((20, 0), (24, 0)): BAR("b%d" % it[0])
    def post4(it):
        if it == (3, 3): BAR("b5")
        if it == (7, 3): BAR("b9")
    gemm_ring(k, [(j, t) for j in range(28) for t in range(4)], rd, mf, 7, pre4, post4)
    ST("P4G", "m")
    assert W2BLK[9] == W2BLK[8] + 1
    g64_reduce(W2BLK[8] * BLK, "r2")
    k.wait_vm("B2")
    hp = T + 12
    for t in range(2):
        a = [T + q for q in range(4)]; b = [T + 4 + q for q in range(4)]; u0, u1 = T + 8, T + 9
        for q in range(4): rnd(k, a[q], acc + 4 * t + q)
        unpack(k, b[0], b[1], b2r + 2 * t); unpack(k, b[2], b[3], b2r + 2 * t + 1)
        k("v_pk_add_f32", v(a[0], 2), v(a[0], 2), v(b[0], 2))
        k("v_pk_add_f32", v(a[2], 2), v(a[2], 2), v(b[2], 2))
        for q in range(4): rnd(k, a[q], a[q])
        unpack(k, b[0], b[1], hr + 2 * t); unpack(k, b[2], b[3], hr + 2 * t + 1)
        k("v_pk_add_f32", v(a[0], 2), v(b[0], 2), v(a[0], 2))
        k("v_pk_add_f32", v(a[2], 2), v(b[2], 2), v(a[2], 2))
        k("v_cvt_pk_bf16_f32", v(hp + 2 * t), v(a[0]), v(a[1]))
        k("v_cvt_pk_bf16_f32", v(hp + 2 * t + 1), v(a[2]), v(a[3]))
        k("buffer_store_dwordx2", v(hp + 2 * t, 2), v(vXo), s(rOUT, 4), 0, mods=("offen offset:%d " % (32 * t) + OUTM).strip())
    ST("end", "m")
    if ENDSPIN:
        k.raw("s_waitcnt vmcnt(0) lgkmcnt(0)")
        k.label(N + "_spin")
        k.raw("s_sleep 2")
        k.raw("%s s[86:87]" % mi)
        k.raw("s_waitcnt lgkmcnt(0)")
        k.raw("s_sub_u32 s88, s86, s84")
        k.raw("s_cmp_lt_u32 s88, %d" % int(ENDSPIN[1:]))
        k.raw("s_cbranch_scc1 %s_spin" % N)
    if DIAG:
        k.raw("s_waitcnt vmcnt(0) lgkmcnt(0)")
        k.raw("s_memtime s[84:85]")
        k.label(N + "_spin2")
        k.raw("s_sleep 2")
        k.raw("s_memtime s[86:87]")
        k.raw("s_waitcnt lgkmcnt(0)")
        k.raw("s_sub_u32 s88, s86, s84")
        k.raw("s_cmp_lt_u32 s88, s90")
        k.raw("s_cbranch_scc1 %s_spin2" % N)
    k.dump_stamps(rWS, 0)
    k("s_endpgm")
    k.label(N + "_cfallback")
    k("s_mov_b32", s(sMode), 1)
    k.raw("s_waitcnt vmcnt(0) lgkmcnt(0)")
    k("s_barrier")
    k("s_barrier")
    k("s_branch", N + "_cstart")

    role[0] = "H"
    k.vmq = []; k.lgq = []
    k.label(N + "_helper")
    k("s_sub_u32", s(sH), s(sW), 8)
    k("s_mul_i32", s(sHq), s(sH), 49152)
    k("s_lshl_b32", s(sH1k), s(sH), 10)
    k("s_lshl_b32", s(sH8k), s(sH), 13)
    k("v_lshlrev_b32", v(vL4), 2, v(vL))
    k("v_lshlrev_b32", v(vPf), 7, v(vL))
    k("v_mov_b32", v(vZero), 0)
    k("v_lshrrev_b32", v(t0), 2, v(vL))
    k("v_and_b32", v(t1), 3, v(vL))
    k("v_lshrrev_b32", v(t2), 3, v(t0))
    k("v_lshlrev_b32", v(t2), 1, v(t2))
    k("v_xor_b32", v(t1), v(t1), v(t2))
    k("v_mul_u32_u24", v(vBq), "0xc00", v(t0))
    k("v_lshl_add_u32", v(vBq), v(t1), 4, v(vBq))
    k("s_lshl_b32", s(sx), s(sHg), 6)
    k("v_add_u32", v(vBq), s(sx), v(vBq))
    k("v_lshrrev_b32", v(t0), 3, v(vL))
    k("v_and_b32", v(t1), 7, v(vL))
    k("v_bfe_u32", v(t2), v(t0), 1, 2)
    k("v_lshlrev_b32", v(t2), 1, v(t2))
    k("v_xor_b32", v(t1), v(t1), v(t2))
    k("v_lshlrev_b32", v(vB64), 10, v(t0))
    k("v_lshl_add_u32", v(vB64), v(t1), 4, v(vB64))
    k("s_lshl_b32", s(sx), s(sNb), 7)
    k("v_add_u32", v(vB64), s(sx), v(vB64))
    k("s_mul_i32", s(sy), s(sHg), 224)
    k("s_and_b32", s(sx), s(sy), "0xffffffc0")
    k("v_lshrrev_b32", v(t0), 4, v(vL))
    k("s_lshl_b32", s(sO), s(sH), 2)
    k("v_add_u32", v(t0), s(sO), v(t0))
    k("v_and_b32", v(t1), 7, v(t0))
    k("v_lshlrev_b32", v(t1), 1, v(t1))
    k("v_and_b32", v(t2), 15, v(vL))
    k("v_xor_b32", v(t2), v(t2), v(t1))
    k("v_mul_u32_u24", v(vBw1), 3584, v(t0))
    k("v_lshl_add_u32", v(vBw1), v(t2), 4, v(vBw1))
    k("v_add_u32", v(vBw1), s(sx), v(vBw1))
    k.wait_smem()
    for r, sl, sz in srds:
        k("s_and_b32", s(r + 1), s(r + 1), "0xffff")

    k("s_mov_b32", s(sPp), s(rWS))
    k("s_mov_b32", s(sPp + 1), s(rWS + 1))
    if DIAG: k.raw("s_barrier")
    rC = k.salloc(4)
    k.raw("s_getpc_b64 s[%d:%d]" % (rC, rC + 1))
    k.label(N + "_pc")
    k.raw("s_sub_u32 s%d, s%d, %s_pc-%s" % (rC, rC, N, N))
    k.raw("s_subb_u32 s%d, s%d, 0" % (rC + 1, rC + 1))
    k.raw("s_and_b32 s%d, s%d, 0xffff" % (rC + 1, rC + 1))
    k.raw("s_mov_b32 s%d, %s_done-%s" % (rC + 2, N, N))
    k.raw("s_mov_b32 s%d, 0x20000" % (rC + 3))
    def code_touch(nwg):
        l = L("h2")
        n = 320 // nwg
        k("s_cmp_lg_u32", s(sH), 2)
        k("s_cbranch_scc1", l)
        k("s_and_b32", s(sx), s(sR), nwg - 1)
        k("s_mul_i32", s(sx), s(sx), n * 128)
        k("v_add_u32", v(t0), s(sx), v(vPf))
        k.raw("s_mov_b64 exec, 0x%x" % ((1 << n) - 1))
        k("buffer_load_dword", v(vDum), v(t0), s(rC, 4), 0, mods="offen", cond=True)
        k.raw("s_mov_b64 exec, -1")
        k.label(l)
    def h0_begin():
        l = L("h0")
        k("s_cmp_lg_u32", s(sH), 0)
        k("s_cbranch_scc1", l)
        return l
    def h0_end(l):
        k.raw("s_mov_b64 exec, -1")
        k.label(l)
    def ld_wq(seg, i):
        for u in range(2):
            k("s_add_u32", s(sO), s(sHq), hex((8 * i + 4 * u) * 49152 + seg * 1024))
            k("s_add_u32", "m0", s(sH1k), hex(seg * 32768 + i * 8192 + u * 4096))
            k("buffer_load_dwordx4", v(vBq), s(rWQ, 4), s(sO), mods="offen lds", tag="WQ")
    def ld_64(srd, NH, n, blk, tag):
        for u in range(2):
            k("s_add_u32", s(sO), s(sH8k), hex((u * NH + n) * 32768))
            k("s_add_u32", "m0", s(sH1k), hex(blk * BLK + u * 4096))
            k("buffer_load_dwordx4", v(vB64), s(srd, 4), s(sO), mods="offen lds", tag=tag)
    def ld_w1(j):
        for u in range(2):
            k("s_add_u32", "m0", s(sH1k), hex(W1BLK[j] * BLK + u * 4096))
            k("s_mov_b32", s(sO), hex((j * 32 + u * 16) * 3584))
            k("buffer_load_dwordx4", v(vBw1), s(rW1, 4), s(sO), mods="offen lds", tag="W1_%d" % j)
    def ld_w2(n):
        ld_64(rW2, 28, n, W2BLK[n], "W2_%d" % n)
    npf = [0]
    def prefetch(srd, base, total, nwg=32):
        q = total // (4 * nwg)
        assert q % 128 == 0
        k("s_and_b32", s(sx), s(sR), nwg - 1)
        k("s_lshl_b32", s(sx), s(sx), 2)
        k("s_add_u32", s(sx), s(sx), s(sH))
        k("s_mul_i32", s(sx), s(sx), q)
        if base: k("s_add_u32", s(sx), s(sx), hex(base))
        lines = q // 128
        while lines > 0:
            n = min(lines, 64)
            if n < 64:
                m = (1 << n) - 1
                k.raw("s_mov_b32 exec_lo, 0x%x" % (m & 0xffffffff))
                k.raw("s_mov_b32 exec_hi, 0x%x" % (m >> 32))
            k("buffer_load_dword", v(vDum), v(vPf), s(srd, 4), s(sx), mods="offen", tag="PF")
            npf[0] += 1
            if n < 64: k.raw("s_mov_b64 exec, -1")
            lines -= n
            if lines: k("s_add_u32", s(sx), s(sx), 8192)

    def touch_ws(kind):
        k("s_lshl_b32", s(sx), s(sX), 21)
        if kind == "r1":
            n = 16
            k("s_lshl_b32", s(sy), s(sR), 13)
            k("s_add_u32", s(sx), s(sx), s(sy))
            k("s_lshl_b32", s(sy), s(sH), 11)
        else:
            k("s_lshr_b32", s(sy), s(sR), 4)
            k("s_mul_i32", s(sy), s(sy), HALF)
            k("s_add_u32", s(sx), s(sx), s(sy))
            k("s_and_b32", s(sy), s(sR), 15)
            k("s_lshl_b32", s(sy), s(sy), 2)
            k("s_add_u32", s(sy), s(sy), s(sH))
            n = {"o": 16, "g": 40, "ga": 20, "gb": 20}[kind]
            k("s_mul_i32", s(sy), s(sy), n * 128)
            k("s_add_u32", s(sx), s(sx), hex(R2 + {"o": 0, "g": 128 * 1024, "ga": 128 * 1024, "gb": 288 * 1024}[kind]))
        k("s_add_u32", s(sx), s(sx), s(sy))
        m = (1 << n) - 1
        k.raw("s_mov_b32 exec_lo, 0x%x" % (m & 0xffffffff))
        k.raw("s_mov_b32 exec_hi, 0x%x" % (m >> 32))
        k("buffer_load_dword", v(vDum), v(vPf), s(rWS, 4), s(sx), mods="offen sc1", tag="PF")
        k.raw("s_mov_b64 exec, -1")
    def slot(name, nwg=32):
        for pc in SCHED.get(name, "").split("."):
            if not pc: continue
            if pc in ("o", "g", "ga", "gb"): touch_ws(pc)
            elif pc == "c": code_touch(nwg)
            elif pc == "q":
                k("v_lshrrev_b32", v(t0), 3, v(vL))
                k("v_mul_u32_u24", v(t0), "0xc00", v(t0))
                k("v_and_b32", v(t1), 7, v(vL))
                k("v_lshl_add_u32", v(t0), v(t1), 7, v(t0))
                k("s_lshl_b32", s(sx), s(sR), 2)
                k("s_add_u32", s(sx), s(sx), s(sH))
                k("s_mul_i32", s(sx), s(sx), 4 * 3072)
                k.raw("s_mov_b32 exec_hi, 0")
                k("buffer_load_dword", v(vDum), v(t0), s(rWQ, 4), s(sx), mods="offen", tag="PF")
                k.raw("s_mov_b64 exec, -1")
            elif pc in "ab": prefetch(rWO, (pc == "b") * 262144, 262144, nwg)
            elif pc[0] in "wv":
                srd = rW1 if pc[0] == "w" else rW2
                if pc[-1] in "ab": prefetch(srd, int(pc[1:-1]) * 262144 + (pc[-1] == "b") * 131072, 131072, nwg)
                else: prefetch(srd, int(pc[1:]) * 262144, 262144, nwg)
            elif pc[0] == "z": k("s_sleep", int(pc[1:]))
            else: assert 0, pc
    def wback(name):
        if WB != name: return
        l = L("wb")
        k("s_lshl_b32", s(sy), s(sH), 5)
        k("s_add_u32", s(sy), s(sy), s(sR))
        k("s_cmp_lg_u32", s(sy), WBR)
        k("s_cbranch_scc1", l)
        k.raw("buffer_wbl2 sc1")
        k.label(l)
    def gbar(i):
        k.raw("buffer_wbl2 sc1")
        k.raw("s_waitcnt vmcnt(0)")
        k.raw("s_mov_b64 exec, 1")
        k("v_mov_b32", v(t0), 1)
        k.raw("buffer_atomic_add v%d, v%d, s[%d:%d], 0 offen offset:%d sc1" % (t0, vZero, rDBG, rDBG + 3, 132 + 4 * i))
        k("s_mov_b32", s(sit), 0)
        lp, lx = L("gp"), L("gx")
        k.label(lp)
        k("s_sleep", 8)
        k("s_add_u32", s(sit), s(sit), 1)
        k("s_cmp_gt_u32", s(sit), LIMIT)
        k("s_cbranch_scc1", lx)
        k.raw("buffer_load_dword v%d, v%d, s[%d:%d], 0 offen offset:%d sc1" % (t0, vZero, rDBG, rDBG + 3, 132 + 4 * i))
        k.raw("s_waitcnt vmcnt(0)")
        k("v_cmp_gt_u32", "vcc", 256, v(t0))
        k.raw("s_nop 4")
        k.raw("s_cbranch_vccnz %s" % lp)
        k.label(lx)
        k.raw("s_mov_b64 exec, -1")
        k.raw("buffer_inv sc1")
        k.raw("s_waitcnt vmcnt(0)")
    def publish(srd, off_fn, val, mn, bits):
        off_fn()
        k("v_mov_b32", v(t0), val)
        k.raw("s_mov_b64 exec, 1")
        k(mn, v(t0), v(vZero), s(srd, 4), s(sx), mods=("offen " + bits).strip(), cond=True)
    def poll(srd, off_fn, nl, mask_fn, stage, checkbad):
        k.raw("s_mov_b64 exec, 0x%x" % ((1 << nl) - 1))
        off_fn()
        mask_fn()
        k("s_mov_b32", s(sit), 0)
        lp, lx, lt = L("p"), L("x"), L("t")
        k.label(lp)
        k.raw("buffer_load_dword v%d, v%d, s[%d:%d], s%d offen sc1" % (t0, vL4, srd, srd + 3, sx))
        k.raw("s_waitcnt vmcnt(0)")
        k("v_or_b32", v(t0), "0x80808080", v(t0))
        k("v_subrev_u32", v(t0), hex(stage * 0x01010101), v(t0))
        k("v_and_b32", v(t0), v(t0), v(vMask))
        k("v_cmp_ne_u32", "vcc", v(t0), v(vMask))
        k.raw("s_nop 4")
        k.raw("s_cbranch_vccz %s" % lx)
        k("s_add_u32", s(sit), s(sit), 1)
        k("s_cmp_gt_u32", s(sit), LIMIT)
        k("s_cbranch_scc1", lt)
        if checkbad:
            k("s_and_b32", s(sy), s(sit), 7)
            k("s_cmp_lg_u32", s(sy), 0)
            k("s_cbranch_scc1", lp)
            k.raw("buffer_load_dword v%d, v%d, s[%d:%d], 0 offen offset:128 sc1" % (t1, vZero, rDBG, rDBG + 3))
            k.raw("s_waitcnt vmcnt(0)")
            k("v_readfirstlane_b32", s(sy), v(t1))
            k("s_lshr_b32", s(sy), s(sy), 16)
            k("s_cmp_eq_u32", s(sy), 0)
            k("s_cbranch_scc1", lp)
        else:
            k("s_branch", lp)
        k.label(lt)
        k("s_mov_b32", s(sAb), 1)
        k.label(lx)
    def sync(idx, fast_fn, nofb=False):
        l = h0_begin()
        lf = L("fb")
        k("s_cmp_lg_u32", s(sMode), 0)
        k("s_cbranch_scc1", l if nofb else lf)
        fast_fn()
        k.raw("s_mov_b64 exec, -1")
        if not nofb:
            k("s_branch", l)
            k.label(lf)
            gbar(idx)
        h0_end(l)
    def prog_off():
        k("s_lshl_b32", s(sx), s(sX), 21)
        k("s_add_u32", s(sx), s(sx), hex(PROGO))
    def prog_own_off():
        prog_off()
        k("s_add_u32", s(sx), s(sx), s(sR))
    def mask_all(sval_fn):
        def f():
            sval_fn()
            k("v_mov_b32", v(vMask), s(sy))
        return f
    def mask_range(slo_fn, n):
        def f():
            slo_fn()
            k("v_subrev_u32", v(t1), s(sy), v(vL))
            k("v_cmp_gt_u32", "vcc", n, v(t1))
            k("v_mov_b32", v(t1), "0x80808080")
            k("v_cndmask_b32", v(vMask), 0, v(t1), "vcc")
        return f
    def fla_off():
        k("s_mul_i32", s(sx), s(sHg), 4352)
        k("s_add_u32", s(sx), s(sx), hex(WS_FLA))
    def fla_own():
        fla_off()
        k("s_lshl_b32", s(sy), s(sX), 3)
        k("s_add_u32", s(sx), s(sx), s(sy))
        k("s_lshl_b32", s(sy), s(sB), 2)
        k("s_add_u32", s(sx), s(sx), s(sy))

    l = L("h1")
    k("s_cmp_lg_u32", s(sH), 1)
    k("s_cbranch_scc1", l)
    k("s_cmp_ge_u32", s(sR), 16)
    k("s_cbranch_scc1", l)
    for i in range(4): k("v_mov_b32", v(vBt + i), -1)
    k("s_and_b32", s(sx), s(sR), 7)
    k("s_lshl_b32", s(sx), s(sx), 5)
    k("s_lshl_b32", s(sy), s(sX), 1)
    k("s_add_u32", s(sx), s(sx), s(sy))
    k("s_lshr_b32", s(sy), s(sR), 3)
    k("s_add_u32", s(sx), s(sx), s(sy))
    k("s_lshl_b32", s(sx), s(sx), 12)
    k("s_add_u32", s(sx), s(sx), hex(WS_PART))
    k("s_add_u32", s(sy), s(sx), 65536)
    for so in (sx, sy):
        k("buffer_store_dwordx4", v(vBt, 4), v(vL16), s(rWS, 4), s(so), mods="offen sc1", cond=True)
        k("buffer_store_dwordx4", v(vBt, 4), v(vL16), s(rWS, 4), s(so), mods="offen offset:1024 sc1", cond=True)
    k.raw("s_mov_b64 exec, 0xff")
    for so in (sx, sy):
        k("buffer_store_dwordx4", v(vBt, 4), v(vL16), s(rWS, 4), s(so), mods="offen offset:2048 sc1", cond=True)
    l2 = L("z")
    k("s_cmp_lg_u32", s(sR), 0)
    k("s_cbranch_scc1", l2)
    prog_off()
    k("buffer_store_dword", v(vZero), v(vL4), s(rWS, 4), s(sx), mods="offen", cond=True)
    k.label(l2)
    k.raw("s_mov_b64 exec, -1")
    k.label(l)
    lg = L("good")
    k("s_cmp_eq_u32", s(sBad), 0)
    k("s_cbranch_scc1", lg)
    l = L("h1")
    k("s_cmp_lg_u32", s(sH), 1)
    k("s_cbranch_scc1", l)
    k("v_mov_b32", v(vReg), "0x10000")
    k.raw("s_mov_b64 exec, 1")
    k("buffer_atomic_add", v(vReg), v(vZero), s(rDBG, 4), 0, mods="offen offset:128 sc1", cond=True)
    k.raw("s_mov_b64 exec, -1")
    k.label(l)
    k("s_branch", N + "_hfallback")
    k.label(lg)
    k.label(N + "_hstart")
    code_touch(32)
    l = L("h3")
    k("s_cmp_lg_u32", s(sH), 3)
    k("s_cbranch_scc1", l)
    k.raw("s_mov_b64 exec, 7")
    k("s_mul_i32", s(sx), s(sHg), 224)
    k("v_mul_u32_u24", v(t0), 110, v(vL))
    k("buffer_load_ubyte", v(vDum), v(t0), s(rB1, 4), s(sx), mods="offen", cond=True)
    k.raw("s_mov_b64 exec, 1")
    k("s_lshl_b32", s(sx), s(sNb), 7)
    k("buffer_load_dword", v(vDum), v(vZero), s(rB2, 4), s(sx), mods="offen", cond=True)
    k.raw("s_mov_b64 exec, -1")
    k.label(l)
    l = h0_begin()
    k.raw("s_mov_b64 exec, 1")
    prog_off()
    k("buffer_load_dword", v(vDum), v(vZero), s(rWS, 4), s(sx), mods="offen sc1", cond=True)
    h0_end(l)
    BAR("p")
    k.raw("s_waitcnt vmcnt(0)")
    k.vmq = []
    BAR("X0")
    def s0_off():
        k("s_lshl_b32", s(sx), s(sX), 4)
    l = h0_begin()
    k("s_cmp_lg_u32", s(sMode), 0)
    k("s_cbranch_scc1", l)
    k("s_cmp_ge_u32", s(sR), 16)
    k("s_cbranch_scc1", l)
    def own():
        s0_off()
        k("s_add_u32", s(sx), s(sx), s(sR))
    publish(rDBG, own, 1, "buffer_store_byte", "")
    h0_end(l)
    ST("hpf", "a")
    BAR("d")
    touch_ws("r1")
    slot("d")
    sync(0, lambda: poll(rDBG, s0_off, 4, mask_range(lambda: k("s_lshl_b32", s(sy), s(sB), 1), 2), 1, True))
    l = L("ld")
    k("s_lshl_b32", s(sy), s(sMode), 2)
    k("s_add_u32", s(sy), s(sy), s(sH))
    k("s_lshl_b32", s(sy), s(sy), 5)
    k("s_add_u32", s(sy), s(sy), s(sR))
    k("s_cmp_lg_u32", s(sy), 3 * 32 + 16)
    k("s_cbranch_scc1", l)
    poll(rDBG, s0_off, 4, mask_all(lambda: k("s_mov_b32", s(sy), "0x80808080")), 1, True)
    k.raw("s_mov_b64 exec, 1")
    k("v_mov_b32", v(t0), 1)
    k("s_cmp_lg_u32", s(sAb), 0)
    k("s_mov_b32", s(sAb), 0)
    l2 = L("ld")
    k("s_cbranch_scc1", l2)
    k("buffer_atomic_add", v(t0), v(vZero), s(rDBG, 4), 0, mods="offen offset:128 sc1", cond=True)
    k.label(l2)
    k.raw("s_mov_b64 exec, -1")
    k.label(l)
    ST("hs0", "a")
    BAR("Y0")
    BAR("a1")
    l = h0_begin()
    lx = L("rx")
    k("s_cmp_lg_u32", s(sMode), 0)
    k("s_cbranch_scc1", lx)
    k.raw("s_mov_b64 exec, 1")
    k("s_mov_b32", s(sit), 0)
    lp, lt = L("rp"), L("rt")
    k.label(lp)
    k.raw("buffer_load_dword v%d, v%d, s[%d:%d], 0 offen offset:128 sc1" % (vReg, vZero, rDBG, rDBG + 3))
    k.raw("s_waitcnt vmcnt(0)")
    k("v_readfirstlane_b32", s(sy), v(vReg))
    k("s_lshr_b32", s(sx), s(sy), 16)
    k("s_cmp_lg_u32", s(sx), 0)
    k("s_cbranch_scc1", lt)
    k("s_cmp_eq_u32", s(sy), 8)
    k("s_cbranch_scc1", lx)
    k("s_add_u32", s(sit), s(sit), 1)
    k("s_cmp_gt_u32", s(sit), LIMIT)
    k("s_cbranch_scc1", lt)
    k("s_sleep", 4)
    k("s_branch", lp)
    k.label(lt)
    k("s_mov_b32", s(sAb), 1)
    k.label(lx)
    h0_end(l)
    slot("a0")
    k.wait_vm("PF")
    for i in range(4): ld_wq(0, i)
    slot("a1")
    BAR("k")
    l = h0_begin()
    k.raw("s_mov_b64 exec, 1")
    k("v_mov_b32", v(t0), s(sAb))
    k("v_mov_b32", v(t1), ABW)
    k.raw("ds_write_b32 v%d, v%d" % (t1, t0))
    k.raw("s_waitcnt lgkmcnt(0)")
    h0_end(l)
    BAR("s")
    k("v_mov_b32", v(t1), ABW)
    k("ds_read_b32", v(t3), v(t1))
    k.wait_lg()
    k("v_readfirstlane_b32", s(sy), v(t3))
    k("s_cmp_lg_u32", s(sy), 0)
    k("s_cbranch_scc1", N + "_hfallback")
    k.wait_vm("WQ")
    BAR("ps")
    if WOE:
        k.wait_vm("PF")
        for n in range(8): ld_64(rWO, 8, n, WOBLK[n], "WO")
    slot("ps")
    BAR("X1")
    sync(1, lambda: None)
    BAR("Y1")
    k.wait_vm("PF")
    ST("hpf1", "f")
    if not WOE:
        for n in range(8): ld_64(rWO, 8, n, WOBLK[n], "WO")
    for j in range(6): ld_w1(j)
    slot("y1")
    BAR("o")
    ST("hdi", "f")
    k.wait_vm("W1_5")
    ST("hw5", "f")
    BAR("X2")
    def m_half():
        k("s_bfe_u32", s(sy), s(sR), "0x10001")
        k("s_lshl_b32", s(sy), s(sy), 3)
        k("s_lshl_b32", s(sy), "0x00800080", s(sy))
    def lsync(idx, stage, mask_fn, xs=None, nwg=32):
        if xs and SCHED.get(xs):
            sync(idx, lambda: publish(rWS, prog_own_off, stage, "buffer_store_byte", ""), nofb=True)
            l = L("xs")
            k("s_cmp_eq_u32", s(sH), 0)
            k("s_cbranch_scc1", l)
            k("s_sleep", 2)
            k.label(l)
            slot(xs, nwg)
            sync(idx, lambda: poll(rWS, prog_off, 8, mask_fn, stage, False))
            return
        def f():
            publish(rWS, prog_own_off, stage, "buffer_store_byte", "")
            poll(rWS, prog_off, 8, mask_fn, stage, False)
        sync(idx, f)
    lsync(2, 1, mask_all(m_half), "x2")
    BAR("Y2")
    BAR("a3")
    for j in range(6, 12): ld_w1(j)
    slot("a3")
    BAR("w")
    BAR("r")
    k.wait_vm("W1_11")
    ST("hw11", "e")
    BAR("X3")
    def m_quarter():
        k("s_lshr_b32", s(sy), s(sR), 2)
        k("s_lshl_b32", s(sy), s(sy), 3)
        k("s_lshl_b32", s(sy), "0x80", s(sy))
    lfree, ljoin = L("hfree"), L("hjoin")
    k("s_cmp_ge_u32", s(sR), 16)
    k("s_cbranch_scc1", lfree)
    sp0 = {"lines": list(spq["lines"]), "q": list(spq["q"])}
    lsync(3, 2, mask_all(m_quarter), "x3", 16)
    BAR("Y3")
    BAR("h")
    q0 = list(k.vmq)
    for j in range(12, 16): ld_w1(j)
    slot("xl", 16)
    BAR("l")
    k.wait_vm("W1_15")
    k("s_branch", ljoin)
    k.label(lfree)
    k.vmq = q0
    sync(3, lambda: publish(rWS, prog_own_off, 2, "buffer_store_byte", ""))
    for j in range(12, 16): ld_w1(j)
    slot("xf", 16)
    spq.update(sp0)
    sp(sum(SS.get(x, 0) + SAF.get(x, 0) for x in ("Y3", "h", "l")))
    k.wait_vm("W1_15")
    k.label(ljoin)
    k.vmq = [("?", "PF")]
    ST("hw15", "e")
    BAR("X4")
    lsync(4, 3, mask_range(lambda: k("s_lshl_b32", s(sy), s(sB), 1), 2), "x4")
    BAR("Y4")
    BAR("a4")
    slot("a4")
    for n in range(4): ld_w2(n)
    BAR("g")
    for n in range(4, 20): ld_w2(n)
    if not X5E: k.wait_vm("W2_19")
    ST("hw2", "m")
    BAR("X5")
    lsync(5, 4, mask_all(m_half), "x5")
    if X5E: k.wait_vm("W2_19")
    BAR("Y5")
    BAR("b5")
    for n in range(20, 24): ld_w2(n)
    BAR("b9")
    for n in range(24, 28): ld_w2(n)
    for j in (20, 24):
        k.wait_vm("W2_%d" % (j + 3))
        BAR("b%d" % j)
        wback("b%d" % j)
    BAR("r2")
    wback("r2")
    k.dump_stamps(rWS, 0)
    k("s_endpgm")
    k.label(N + "_hfallback")
    k("s_mov_b32", s(sMode), 1)
    k("s_mov_b32", s(sAb), 0)
    k.raw("s_waitcnt vmcnt(0) lgkmcnt(0)")
    k("s_barrier")
    l = h0_begin()
    gbar(6)
    h0_end(l)
    k("s_barrier")
    k("s_branch", N + "_hstart")
    k.label(N + "_done")
    k("s_endpgm")
    if DIAG == "i":
        k.raw(".p2align 8")
        k.label(N + "_icode")
        for i in range(512): k.raw("s_nop 0")
        k.raw("s_branch %s_iret" % N)
    assert bars["C"] == bars["H"], (bars["C"], bars["H"])
    n = len(bars["C"])
    assert cbars[0][:n] == bars["C"] and cbars[1][:n] == bars["C"], (cbars, bars["C"])
    assert k.snext <= 80, k.snext
    if spq["lines"] or spq["q"]: print("WARNING scalar stream left:", len(spq["lines"]), spq["q"])
    if PROF: print("STAMPS", " ".join(sorted(slots, key=slots.get)))
    return k, 768, 163840

if __name__ == "__main__":
    gen.build_list([gen_main()], sys.argv[1] if len(sys.argv) > 1 else "cdna_kernels/%s.s" % NAME)
```
